```python
import torch

def _softmax(x, axis=-1):
    return torch.softmax(x, dim=axis)
def _gelu(x):
    return torch.nn.functional.gelu(x, approximate="tanh")
def _silu(x):
    return torch.nn.functional.silu(x)
def _sigmoid(x):
    return torch.sigmoid(x)
def _layernorm(x, axis=-1, eps=1e-5):
    m = x.mean(dim=axis, keepdim=True)
    v = x.var(dim=axis, keepdim=True, unbiased=False)
    return (x - m) / torch.sqrt(v + eps)
def _scatter_add(tgt, idx, src, axis=0):
    return tgt.clone().index_add_(axis, idx, src)
def _segment_sum(src, seg, n):
    out = torch.zeros((n,) + src.shape[1:], dtype=src.dtype)
    return out.index_add_(0, seg, src)
def _pad(x, pw):
    flat = tuple(v for pair in reversed(pw) for v in pair)
    return torch.nn.functional.pad(x, flat)

kernel_name = 'recurrent_scan__mha_block_cached__dense_activation_gelu__decode'

def setup_inputs():

    _w = (lambda a: (lambda t: t.to(torch.bfloat16) if t.is_floating_point() else t)(torch.as_tensor(a)))
    def _A_setup():
        B, Sq, D = 8, 1, 576
        H, Sk, Dh = 32, 4096, 128
        return {
            "x": _w((lambda *s: torch.randn(*s, dtype=torch.bfloat16) * 0.05)(B, Sq, D)),
            "k_cache": _w((lambda *s: torch.randn(*s, dtype=torch.bfloat16) * 3.2)(B, H, Sk, Dh)),
            "v_cache": _w((lambda *s: torch.randn(*s, dtype=torch.bfloat16) * 3.2)(B, H, Sk, Dh)),
            "wq": _w((lambda *s: torch.randn(*s, dtype=torch.bfloat16) * 3.2)(D, H * Dh) * (D ** -0.5)),
            "wo": _w((lambda *s: torch.randn(*s, dtype=torch.bfloat16) * 3.2)(H * Dh, D) * ((H * Dh) ** -0.5)),
        }
    _A_in = _A_setup()

    def _B_setup():
        B, S, D, F = 8, 1, 576, 4608
        return {
            "x": _w((lambda *s: torch.randn(*s, dtype=torch.bfloat16) * 0.05)(B, S, D)),
            "w1": _w((lambda *s: torch.randn(*s, dtype=torch.bfloat16) * 3.2)(D, F) * (D ** -0.5)),
            "b1": _w((lambda *s: torch.randn(*s, dtype=torch.bfloat16) * 3.2)(F) * 0.01),
            "w2": _w((lambda *s: torch.randn(*s, dtype=torch.bfloat16) * 0.4)(F, D) * (F ** -0.5)),
            "b2": _w((lambda *s: torch.randn(*s, dtype=torch.bfloat16) * 0.4)(D) * 0.01),
        }
    _B_in = _B_setup()

    return {
        "A_x": _A_in["x"],
        "A_k_cache": _A_in["k_cache"],
        "A_v_cache": _A_in["v_cache"],
        "A_wq": _A_in["wq"],
        "A_wo": _A_in["wo"],
        "B_x": _B_in["x"],
        "B_w1": _B_in["w1"],
        "B_b1": _B_in["b1"],
        "B_w2": _B_in["w2"],
        "B_b2": _B_in["b2"],
    }

def reference(A_x, A_k_cache, A_v_cache, A_wq, A_wo, B_x, B_w1, B_b1, B_w2, B_b2):
    def _A_ref(x, k_cache, v_cache, wq, wo):
        B, Sq, D = x.shape
        H, Dh = 32, 128
        q = (lambda x, *d: x.permute(*d))((x @ wq).reshape(B, Sq, H, Dh), 0, 2, 1, 3)
        scores = torch.einsum("bhqd,bhkd->bhqk", q, k_cache) * (Dh ** -0.5)
        p = _softmax(scores, axis=-1)
        o = torch.einsum("bhqk,bhkd->bhqd", p, v_cache)
        return (lambda x, *d: x.permute(*d))(o, 0, 2, 1, 3).reshape(B, Sq, H * Dh) @ wo

    def _B_ref(x, w1, b1, w2, b2):
        h = torch.einsum("bsd,df->bsf", x, w1) + b1
        h = _gelu(h)
        return torch.einsum("bsf,fd->bsd", h, w2) + b2

    x = A_x
    xn = _layernorm(x, axis=-1)
    s = _A_ref(xn, A_k_cache, A_v_cache, A_wq, A_wo)
    g = _silu(_B_ref(xn, B_w1, B_b1, B_w2, B_b2))
    return x + s * g
```

```python
import struct, sys, json

NAME = "recurrent_scan__mha_block_cached__dense_activation_gelu__decode"
HEADER = open("header.txt").read()

WS_P1 = 0x000000
WS_G = 0x300000
WS_Y = 0x400000
WS_STAMP = 0x20000000

L_V = 0x00000
L_B = 0x20000
O_OP = 0x0000
O_E = 0x1000
O_ST = 0x1800
O_CNT = 0x1840
O_Q = 0x1880
O_HR = 0x1980
O_XN = 0x19C0
LDS_BYTES = L_B + 0x2000
C_LN, C_S1, C_Q, C_H, C_S2 = 0, 4, 8, 12, 16

SENT = 0xFFFFFFFF
LOG2E = 1.4426950408889634


def f32(x):
    return "0x%08x" % struct.unpack("<I", struct.pack("<f", x))[0]


def vr(a, n=1):
    return f"v{a}" if n == 1 else f"v[{a}:{a+n-1}]"


DPP_ALL = "row_mask:0xf bank_mask:0xf"


def cl(i):
    return ((i & 1) << 3) | (((i >> 1) & 1) << 2) | (i >> 2)


def gen(D=6, stag_shift=15, stamps=False, hprio=0, dump=False):
    o = []
    A = lambda s: o.append("  " + s)
    Lb = lambda s: o.append(s + ":")

    VST = 255

    def stamp(i):
        if stamps:
            A("s_memrealtime s[70:71]")
            A("s_waitcnt lgkmcnt(0)")
            A(f"v_writelane_b32 v{VST}, s70, {i}")

    def bfround(dst, src):
        A(f"v_cvt_pk_bf16_f32 v{dst}, v{src}, v{src}")
        A(f"v_and_b32 v{dst}, 0xffff0000, v{dst}")

    def allreduce_row(op, v):
        for sh in (8, 4, 2, 1):
            A("s_nop 1")
            A(f"{op}_dpp v{v}, v{v}, v{v} row_ror:{sh} {DPP_ALL}")

    def swap_reduce(op, v, t, which):
        A(f"v_mov_b32 v{t}, v{v}")
        A("s_nop 1")
        A(f"v_permlane{which}_swap_b32 v{t}, v{v}")
        A("s_nop 1")
        A(f"{op} v{v}, v{v}, v{t}")

    def lds_spin(label, vaddr, off, vtmp, target, sleep=1):
        Lb(label)
        A(f"ds_read_b32 v{vtmp}, v{vaddr} offset:{off}")
        A("s_waitcnt lgkmcnt(0)")
        A(f"v_readfirstlane_b32 s3, v{vtmp}")
        A(f"s_cmp_ge_u32 s3, {target}")
        A(f"s_cbranch_scc1 {label}_ok")
        if sleep:
            A(f"s_sleep {sleep}")
        A("s_sub_u32 s69, s69, 1")
        A(f"s_cbranch_scc0 {label}")
        A("s_mov_b32 s69, 0")
        Lb(label + "_ok")

    def pv_masks(vm, vc, t0):
        A(f"v_and_b32 v{t0}, 1, v{vc}")
        A(f"v_lshlrev_b32 v{t0}, 4, v{t0}")
        A(f"v_mov_b32 v{t0+1}, 0xffff")
        A(f"v_lshlrev_b32 v{t0}, v{t0}, v{t0+1}")
        A(f"v_lshrrev_b32 v{t0+1}, 1, v{vc}")
        for r in range(4):
            A(f"v_cmp_eq_u32 vcc, {r}, v{t0+1}")
            A("s_nop 1")
            A(f"v_cndmask_b32 v{vm+r}, 0, v{t0}, vcc")

    def softmax_factor(vbase, vst, vf, vown):
        A(f"ds_read_b128 {vr(vst,4)}, v{vbase} offset:{O_ST}")
        A(f"ds_read_b128 {vr(vst+4,4)}, v{vbase} offset:{O_ST+16}")
        A("s_waitcnt lgkmcnt(0)")
        m, t = vst + 8, vst + 9
        A(f"v_max3_f32 v{m}, v{vst}, v{vst+2}, v{vst+4}")
        A(f"v_max_f32 v{m}, v{m}, v{vst+6}")
        for k in range(4):
            A(f"v_sub_f32 v{vst+2*k}, v{vst+2*k}, v{m}")
        A(f"v_sub_f32 v{t}, v{vown}, v{m}")
        for k in range(4):
            A(f"v_mul_f32 v{vst+2*k}, {f32(LOG2E)}, v{vst+2*k}")
        A(f"v_mul_f32 v{t}, {f32(LOG2E)}, v{t}")
        for k in range(4):
            A(f"v_exp_f32 v{vst+2*k}, v{vst+2*k}")
        A(f"v_exp_f32 v{t}, v{t}")
        A(f"v_mul_f32 v{m}, v{vst}, v{vst+1}")
        for k in range(1, 4):
            A(f"v_fmac_f32 v{m}, v{vst+2*k}, v{vst+2*k+1}")
        A(f"v_rcp_f32 v{m}, v{m}")
        A("s_nop 0")
        A(f"v_mul_f32 v{vf}, v{t}, v{m}")

    o.append(HEADER.rstrip())
    o.append(f"; @launch grid=(256,1,1) block=(512,1,1) lds={LDS_BYTES}")
    o.append('.amdgcn_target "amdgcn-amd-amdhsa--gfx950"')
    o.append(".text")
    o.append(f".globl {NAME}_kernel")
    o.append(".p2align 8")
    o.append(f".type {NAME}_kernel,@function")
    Lb(f"{NAME}_kernel")
    A("s_cmp_ge_u32 s2, 256")
    A("s_cbranch_scc1 L_end")
    A("s_load_dwordx4 s[4:7], s[0:1], 8")
    if stamps:
        A("s_load_dwordx2 s[72:73], s[0:1], 96")
        A(f"v_mov_b32 v{VST}, 0")
    A("v_lshrrev_b32 v1, 6, v0")
    A("v_and_b32 v2, 63, v0")
    A("v_readfirstlane_b32 s28, v1")
    A("s_mov_b32 s69, 0x200000")
    stamp(0)
    A("s_cmp_ge_u32 s28, 4")
    A("s_cbranch_scc1 L_helper")

    RING = 64
    VQ, VP, VA0, VA1, VB, VC, VS, VMAX = 4, 8, 10, 11, 12, 13, 14, 15
    VE, VM, VAO, VACC, VT, VLB = 16, 32, 36, 44, 48, 60
    A("v_lshlrev_b32 v3, 4, v2")
    A("s_lshl_b32 s3, s28, 12")
    A("v_add_u32 v3, s3, v3")
    A(f"s_lshl_b32 s29, s2, {stag_shift}")
    A("s_lshl_b32 s3, s2, 20")
    A("s_mov_b32 s18, 0x100000")
    A("s_mov_b32 s19, 0x20000")

    def tile_offsets():
        for k in range(4):
            A(f"s_add_u32 s{36+k}, s29, {k*16384}")
            A(f"s_and_b32 s{36+k}, s{36+k}, 0xfffff")

    def ring_load(i):
        A(f"buffer_load_dwordx4 {vr(RING+4*i,4)}, v3, s[16:19], s{36+i//4} offen offset:{(i%4)*1024} nt")

    tile_offsets()
    A("s_waitcnt lgkmcnt(0)")
    A("s_add_u32 s16, s4, s3")
    A("s_addc_u32 s17, s5, 0")
    for i in range(D):
        ring_load(i)
    A("s_add_u32 s12, s6, s3")
    A("s_addc_u32 s13, s7, 0")
    A("s_mov_b32 s14, 0x100000")
    A("s_mov_b32 s15, 0x20000")
    A("s_barrier")
    for i in range(D, 16):
        A(f"s_waitcnt vmcnt({D-1})")
        ring_load(i)
    A(f"s_add_u32 s35, s29, {56*16384}")
    A("s_lshl_b32 s33, s28, 15")
    A("s_mov_b32 s34, 8")
    Lb("L_vdma")
    A("s_and_b32 s36, s35, 0xfffff")
    A("s_mov_b32 m0, s33")
    for j in range(4):
        A(f"s_waitcnt vmcnt({D-1})")
        A(f"buffer_load_dwordx4 v3, s[12:15], s36 offen offset:{j*1024} nt lds")
    A("s_add_u32 s35, s35, 16384")
    A("s_add_u32 s33, s33, 4096")
    A("s_sub_u32 s34, s34, 1")
    A("s_cmp_lg_u32 s34, 0")
    A("s_cbranch_scc1 L_vdma")
    stamp(1)
    A(f"v_mov_b32 v{VLB}, {L_B}")
    A(f"v_and_b32 v{VT+2}, 15, v2")
    pv_masks(VM, VT + 2, VT)
    for k in (1, 2, 3):
        A(f"s_mov_b32 s{38+2*k}, 0x{(0x11111111 << k) & 0xffffffff:08x}")
        A(f"s_mov_b32 s{39+2*k}, 0x{(0x11111111 << k) & 0xffffffff:08x}")
    A(f"v_mov_b32 v{VMAX}, 0xff800000")
    for r in range(4):
        A(f"v_mov_b32 v{VACC+r}, 0")
    A(f"v_lshl_add_u32 v{VT+3}, v{VT+2}, 4, v{VLB}")
    lds_spin("L_qwait", VLB, O_CNT + C_Q, VT, 1)
    A(f"ds_read_b128 {vr(VQ,4)}, v{VT+3} offset:{O_Q}")
    A("s_mov_b32 s34, 16")
    stamp(2)
    A("s_waitcnt lgkmcnt(0)")

    Lb("L_kloop")
    A("s_add_u32 s29, s29, 65536")
    tile_offsets()
    A("s_cmp_eq_u32 s34, 1")
    A("s_cselect_b32 s16, s12, s16")
    A("s_cselect_b32 s17, s13, s17")

    def red_a(i):
        j = i & 3
        dst = VA0 if j < 2 else VA1
        bm = "0x3" if (j & 1) == 0 else "0xc"
        p = VP + (i & 1)
        A(f"v_add_f32_dpp v{dst}, v{p}, v{p} row_ror:8 row_mask:0xf bank_mask:{bm}")

    def red_b(which):
        src = VA0 if which == 0 else VA1
        bm = "0x5" if which == 0 else "0xa"
        A(f"v_add_f32_dpp v{VB}, v{src}, v{src} row_half_mirror row_mask:0xf bank_mask:{bm}")

    def red_c():
        A(f"v_add_f32_dpp v{VC}, v{VB}, v{VB} quad_perm:[1,0,3,2] {DPP_ALL}")

    def red_d(k):
        dst = VS if k == 0 else VB
        A(f"v_add_f32_dpp v{dst}, v{VC}, v{VC} quad_perm:[2,3,0,1] {DPP_ALL}")

    def red_e(k):
        if k:
            A(f"v_cndmask_b32 v{VS}, v{VS}, v{VB}, s[{38+2*k}:{39+2*k}]")

    for i in range(16):
        k, j = i >> 2, i & 3
        p = VP + (i & 1)
        R = RING + 4 * i
        A(f"v_dot2_f32_bf16 v{p}, v{R}, v{VQ}, 0")
        A(f"v_dot2_f32_bf16 v{p}, v{R+1}, v{VQ+1}, v{p}")
        if i > 0:
            red_a(i - 1)
        A(f"v_dot2_f32_bf16 v{p}, v{R+2}, v{VQ+2}, v{p}")
        if k > 0:
            if j == 0:
                red_b(0)
            elif j == 1:
                red_b(1)
            elif j == 2:
                red_c()
            else:
                red_d(k - 1)
        A(f"v_dot2_f32_bf16 v{p}, v{R+3}, v{VQ+3}, v{p}")
        if k > 0 and j == 3:
            red_e(k - 1)
        A(f"s_waitcnt vmcnt({D-1})")
        ring_load(i)
    rot = [f"v_mov_b32 v{VE+u}, v{VE+u+1}" for u in range(15)]
    A(rot.pop(0))
    red_a(15)
    red_b(0)
    A(rot.pop(0))
    red_b(1)
    A(rot.pop(0)); A(rot.pop(0))
    red_c()
    A(rot.pop(0)); A(rot.pop(0))
    red_d(3)
    red_e(3)
    bfround(VS, VS)
    A(f"v_mul_f32 v{VS}, {f32(128 ** -0.5)}, v{VS}")
    for s in rot:
        A(s)
    bfround(VE + 15, VS)
    A(f"v_max_f32 v{VMAX}, v{VMAX}, v{VE+15}")
    A("s_sub_u32 s34, s34, 1")
    A("s_cmp_lg_u32 s34, 0")
    A("s_cbranch_scc1 L_kloop")
    stamp(3)

    allreduce_row("v_max_f32", VMAX)
    swap_reduce("v_max_f32", VMAX, VT, 16)
    swap_reduce("v_max_f32", VMAX, VT, 32)
    for u in range(16):
        A(f"v_sub_f32 v{VE+u}, v{VE+u}, v{VMAX}")
    for u in range(16):
        A(f"v_mul_f32 v{VE+u}, {f32(LOG2E)}, v{VE+u}")
    for u in range(16):
        A(f"v_exp_f32 v{VE+u}, v{VE+u}")
    A(f"v_add_f32 v{VS}, v{VE}, v{VE+1}")
    for u in range(2, 16):
        A(f"v_add_f32 v{VS}, v{VS}, v{VE+u}")
    A(f"s_lshl_b32 s3, s28, 9")
    A(f"v_lshl_add_u32 v{VT+2}, v2, 2, v{VLB}")
    A(f"v_add_u32 v{VT+2}, s3, v{VT+2}")
    A(f"ds_write_b32 v{VT+2}, v{VE+14} offset:{O_E}")
    A(f"ds_write_b32 v{VT+2}, v{VE+15} offset:{O_E+256}")
    allreduce_row("v_add_f32", VS)
    swap_reduce("v_add_f32", VS, VT, 16)
    swap_reduce("v_add_f32", VS, VT, 32)
    A(f"s_lshl_b32 s3, s28, 3")
    A(f"v_add_u32 v{VT+2}, s3, v{VLB}")
    A(f"ds_write_b32 v{VT+2}, v{VMAX} offset:{O_ST}")
    A(f"ds_write_b32 v{VT+2}, v{VS} offset:{O_ST+4}")
    A("s_waitcnt lgkmcnt(0)")
    A("s_barrier")
    softmax_factor(VLB, VT, VS, VMAX)
    for u in range(14):
        A(f"v_mul_f32 v{VE+u}, v{VE+u}, v{VS}")
    for u in range(14):
        A(f"v_cvt_pk_bf16_f32 v{VE+u}, v{VE+u}, v{VE+u}")
    A("s_mov_b32 s34, 14")
    stamp(4)

    def build_a(i, vp, vm, vao):
        for r in range(4):
            A(f"v_and_b32_dpp v{vao+4*(i&1)+r}, v{vp}, v{vm+r} row_newbcast:{cl(i)} {DPP_ALL}")

    Lb("L_vloop")
    A("s_add_u32 s29, s29, 65536")
    tile_offsets()
    A("s_cmp_eq_u32 s34, 1")
    A("s_cselect_b32 s18, 0, s18")
    build_a(0, VE, VM, VAO)
    for i in range(16):
        if i < 15:
            build_a(i + 1, VE, VM, VAO)
        else:
            for u in range(13):
                A(f"v_mov_b32 v{VE+u}, v{VE+u+1}")
        A(f"v_mfma_f32_16x16x32_bf16 {vr(VACC,4)}, {vr(VAO+4*(i&1),4)}, {vr(RING+4*i,4)}, {vr(VACC,4)}")
        A(f"s_waitcnt vmcnt({D-1})")
        ring_load(i)
    A("s_sub_u32 s34, s34, 1")
    A("s_cmp_lg_u32 s34, 0")
    A("s_cbranch_scc1 L_vloop")
    A(f"v_and_b32 v{VT}, 15, v2")
    A(f"v_lshrrev_b32 v{VT+1}, 4, v2")
    A(f"v_lshlrev_b32 v{VT}, 5, v{VT}")
    A(f"v_lshl_add_u32 v{VT}, v{VT+1}, 4, v{VT}")
    A("s_lshl_b32 s3, s28, 9")
    A(f"v_add3_u32 v{VT}, v{VT}, s3, v{VLB}")
    A("s_mov_b32 exec_hi, 0")
    A(f"ds_write_b128 v{VT}, {vr(VACC,4)} offset:{O_OP}")
    A("s_mov_b32 exec_hi, -1")
    A("s_waitcnt lgkmcnt(0)")
    stamp(5)
    A("s_barrier")
    A("s_branch L_fin")

    HC, HG, HLB = 4, 5, 6
    HVB, HVS = 7, 8
    HPM, HPR = 9, 10
    HOP = 11
    HGV, HXV, HOA = 12, 13, 14
    HT = 226
    HD = 16
    HA = 232
    HF = 64
    HF2 = 208
    SX, SWQ, SWO, SW1, SB1, SW2, SB2, SOUT, SDBG, SWS = 36, 40, 42, 44, 46, 48, 50, 52, 54, 56

    def srd(n, base, off_s, size):
        if off_s is None:
            A(f"s_mov_b32 s{n}, s{base}")
            A(f"s_mov_b32 s{n+1}, s{base+1}")
        else:
            A(f"s_add_u32 s{n}, s{base}, {off_s}")
            A(f"s_addc_u32 s{n+1}, s{base+1}, 0")
        A(f"s_mov_b32 s{n+2}, {size}")
        A(f"s_mov_b32 s{n+3}, 0x20000")

    Lb("L_helper")
    A(f"s_load_dwordx2 s[{SX}:{SX+1}], s[0:1], 0")
    A(f"s_load_dwordx4 s[{SWQ}:{SWQ+3}], s[0:1], 24")
    A(f"s_load_dwordx8 s[{SW1}:{SW1+7}], s[0:1], 48")
    A(f"s_load_dwordx4 s[{SOUT}:{SOUT+3}], s[0:1], 80")
    A(f"s_load_dwordx2 s[{SWS}:{SWS+1}], s[0:1], 96")
    if hprio:
        A(f"s_setprio {hprio}")
    A("s_sub_u32 s28, s28, 4")
    A("s_and_b32 s29, s2, 31")
    A("s_lshr_b32 s30, s2, 5")
    A("s_and_b32 s31, s2, 7")
    A("s_lshl_b32 s31, s31, 2")
    A("s_lshr_b32 s3, s29, 3")
    A("s_add_u32 s31, s31, s3")
    A(f"v_and_b32 v{HC}, 15, v2")
    A(f"v_lshrrev_b32 v{HG}, 4, v2")
    A(f"v_mov_b32 v{HLB}, {L_B}")
    for r in range(4):
        A(f"v_mov_b32 v{HD+r}, 0")
    A(f"v_subrev_u32 v{HT}, 256, v0")
    A(f"v_lshl_add_u32 v{HT+1}, v{HT}, 4, v{HLB}")
    A(f"ds_write_b128 v{HT+1}, {vr(HD,4)} offset:{O_OP}")
    A(f"v_lshl_add_u32 v{HT+1}, v{HC}, 2, v{HLB}")
    A(f"ds_write_b32 v{HT+1}, v{HD} offset:{O_CNT}")
    A(f"v_mul_u32_u24 v{HT}, 36, v{HT}")
    A("s_mov_b32 s58, 0x05040100")
    A("s_mov_b32 s59, 0x07060302")
    A("s_waitcnt lgkmcnt(0)")
    XR = 52
    srd(8, SX, None, 9216)
    A(f"buffer_load_dwordx4 {vr(XR,4)}, v{HT}, s[8:11], 0 offen")
    A(f"buffer_load_dwordx4 {vr(XR+4,4)}, v{HT}, s[8:11], 0 offen offset:16")
    A(f"buffer_load_dword v{XR+8}, v{HT}, s[8:11], 0 offen offset:32")
    A("s_cmp_eq_u32 s28, 0")
    A(f"s_cselect_b32 s12, s{SWQ}, s{SW1}")
    A(f"s_cselect_b32 s13, s{SWQ+1}, s{SW1+1}")
    A(f"s_mov_b32 s14, {576*9216}")
    A(f"s_cselect_b32 s14, {576*8192}, s14")
    A("s_mov_b32 s15, 0x20000")
    A("s_movk_i32 s32, 9216")
    A("s_cselect_b32 s32, 8192, s32")
    A("s_mul_i32 s33, s31, 288")
    A("s_lshl_b32 s3, s29, 8")
    A("s_cmp_eq_u32 s28, 0")
    A("s_cselect_b32 s33, s3, s33")
    A("s_mul_i32 s3, s32, 72")
    A("s_mul_i32 s3, s3, s30")
    A("s_add_u32 s33, s33, s3")
    A("s_mul_i32 s3, s32, 18")
    A(f"v_mul_lo_u32 v{HT+1}, s3, v{HG}")
    L1 = HF
    A("s_cmp_ge_u32 s28, 2")
    A("s_cbranch_scc1 L_h_ld_narrow")
    A(f"v_lshl_add_u32 v{HT+1}, v{HC}, 4, v{HT+1}")
    for e in range(18):
        A(f"buffer_load_dwordx4 {vr(L1+4*e,4)}, v{HT+1}, s[12:15], s33 offen nt")
        A("s_add_u32 s33, s33, s32")
    A("s_barrier")
    A("s_waitcnt vmcnt(18)")
    A("s_branch L_h_ln")
    Lb("L_h_ld_narrow")
    A("s_cmp_eq_u32 s28, 3")
    A("s_cbranch_scc1 L_h_ld_none")
    A(f"v_lshl_add_u32 v{HT+1}, v{HC}, 1, v{HT+1}")
    for e in range(18):
        A(f"buffer_load_ushort v{L1+e}, v{HT+1}, s[12:15], s33 offen offset:256 nt")
        A("s_add_u32 s33, s33, s32")
    A("s_barrier")
    A("s_waitcnt vmcnt(18)")
    A("s_branch L_h_ln")
    Lb("L_h_ld_none")
    A("s_barrier")
    A("s_waitcnt vmcnt(0)")

    Lb("L_h_ln")
    stamp(1)
    XF = HD
    SUM, T1, MEAN = 34, 35, 36
    for d in range(9):
        A(f"v_lshlrev_b32 v{XF+2*d}, 16, v{XR+d}")
        A(f"v_and_b32 v{XF+2*d+1}, 0xffff0000, v{XR+d}")
    A(f"v_add_f32 v{SUM}, v{XF}, v{XF+1}")
    for e in range(2, 18):
        A(f"v_add_f32 v{SUM}, v{SUM}, v{XF+e}")
    allreduce_row("v_add_f32", SUM)
    swap_reduce("v_add_f32", SUM, T1, 16)
    A(f"v_mul_f32 v{MEAN}, {f32(1/576)}, v{SUM}")
    A(f"v_mov_b32 v{SUM}, 0")
    for e in range(18):
        t = 38 + (e & 1)
        A(f"v_sub_f32 v{t}, v{XF+e}, v{MEAN}")
        A(f"v_fmac_f32 v{SUM}, v{t}, v{t}")
    allreduce_row("v_add_f32", SUM)
    swap_reduce("v_add_f32", SUM, T1, 16)
    A(f"v_mul_f32 v{SUM}, {f32(1/576)}, v{SUM}")
    bfround(MEAN, MEAN)
    bfround(SUM, SUM)
    A(f"v_add_f32 v{SUM}, {f32(1e-5)}, v{SUM}")
    bfround(SUM, SUM)
    A(f"v_sqrt_f32 v{SUM}, v{SUM}")
    A("s_nop 0")
    bfround(SUM, SUM)
    A(f"v_rcp_f32 v{SUM}, v{SUM}")
    for e in range(18):
        A(f"v_sub_f32 v{XF+e}, v{XF+e}, v{MEAN}")
    for d in range(9):
        A(f"v_cvt_pk_bf16_f32 v{XR+d}, v{XF+2*d}, v{XF+2*d+1}")
    for d in range(9):
        A(f"v_lshlrev_b32 v{XF+2*d}, 16, v{XR+d}")
        A(f"v_and_b32 v{XF+2*d+1}, 0xffff0000, v{XR+d}")
    for e in range(18):
        A(f"v_mul_f32 v{XF+e}, v{XF+e}, v{SUM}")
    for d in range(9):
        A(f"v_cvt_pk_bf16_f32 v{XR+d}, v{XF+2*d}, v{XF+2*d+1}")
    A(f"v_lshrrev_b32 v{HT}, 5, v2")
    A("s_lshl_b32 s3, s28, 1")
    A(f"v_add_u32 v{HT}, s3, v{HT}")
    A(f"v_and_b32 v{HT+1}, 3, v2")
    A(f"v_lshl_add_u32 v{HT}, v{HT}, 2, v{HT+1}")
    A(f"v_mul_u32_u24 v{HT}, 48, v{HT}")
    A(f"v_add_u32 v{HT}, v{HT}, v{HLB}")
    A(f"v_bfe_u32 v{HT+1}, v2, 2, 3")
    A(f"v_mov_b32 v{HT+2}, 1")
    A(f"v_cmp_eq_u32 vcc, s30, v{HT+1}")
    A("s_and_saveexec_b64 s[34:35], vcc")
    A(f"ds_write_b128 v{HT}, {vr(XR,4)} offset:{O_XN}")
    A(f"ds_write_b128 v{HT}, {vr(XR+4,4)} offset:{O_XN+16}")
    A(f"ds_write_b32 v{HT}, v{XR+8} offset:{O_XN+32}")
    A("s_mov_b64 exec, 1")
    A("s_waitcnt lgkmcnt(0)")
    A(f"ds_add_u32 v{HLB}, v{HT+2} offset:{O_CNT+C_LN}")
    A("s_mov_b64 exec, -1")
    A(f"v_mul_u32_u24 v{HVB}, {32*1152}, v{HG}")
    A("s_lshl_b32 s3, s28, 5")
    A(f"v_lshl_add_u32 v{HVS}, v{HC}, 1, v{HVB}")
    A(f"v_add_u32 v{HVS}, s3, v{HVS}")
    A(f"v_add_u32 v{HVS}, 1024, v{HVS}")
    A("s_lshl_b32 s3, s28, 8")
    A(f"v_lshl_add_u32 v{HVB}, v{HC}, 4, v{HVB}")
    A(f"v_add_u32 v{HVB}, s3, v{HVB}")
    A(f"v_lshlrev_b32 v{HPM}, 5, v{HC}")
    A(f"v_lshl_add_u32 v{HPM}, v{HG}, 4, v{HPM}")
    A("s_lshl_b32 s3, s28, 9")
    A(f"v_add_u32 v{HPM}, s3, v{HPM}")
    A(f"v_mov_b32 v{HT}, 0x10000000")
    A(f"v_cmp_gt_u32 vcc, 2, v{HG}")
    A("s_lshl_b32 s3, s28, 6")
    A("s_add_u32 s3, s3, 2048")
    A(f"v_cndmask_b32 v{HPM}, v{HT}, v{HPM}, vcc")
    A(f"v_lshl_add_u32 v{HPR}, v{HC}, 2, s3")
    A(f"v_cmp_eq_u32 vcc, 0, v{HG}")
    A(f"v_lshl_add_u32 v{HOP}, v2, 3, v{HLB}")
    A("s_mov_b32 s60, 0xffff0000")
    A(f"v_cndmask_b32 v{HPR}, v{HT}, v{HPR}, vcc")
    A("s_mov_b32 s61, 0xffff0000")
    A("s_cmp_eq_u32 s28, 3")
    A("s_cbranch_scc1 L_h_w2")

    A(f"s_mul_i32 s3, s29, {8*8*1152}")
    A(f"s_add_u32 s3, s3, {WS_P1}") if WS_P1 else None
    srd(16, SWS, "s3", 8 * 8 * 1152)
    A(f"v_and_b32 v{HT}, 7, v{HC}")
    A(f"v_lshl_add_u32 v{HT+1}, v{HT}, 2, v{HG}")
    A(f"v_mul_u32_u24 v{HT+1}, 48, v{HT+1}")
    A(f"v_add_u32 v{HT+1}, v{HT+1}, v{HLB}")
    A(f"v_mul_u32_u24 v{HT+3}, 9216, v{HT}")
    A(f"v_lshl_add_u32 v{HT+3}, v{HG}, 4, v{HT+3}")
    A("s_mul_i32 s33, s30, 1152")
    A("s_lshl_b32 s3, s28, 9")
    A("s_add_u32 s33, s33, s3")
    A(f"v_cmp_le_u32 s[34:35], 8, v{HC}")
    lds_spin("L_h_lnwait", HLB, O_CNT + C_LN, HT + 4, 4, sleep=0)
    A(f"ds_read_b128 {vr(XR,4)}, v{HT+1} offset:{O_XN}")
    A(f"ds_read_b128 {vr(XR+4,4)}, v{HT+1} offset:{O_XN+16}")
    A(f"ds_read_b32 v{XR+8}, v{HT+1} offset:{O_XN+32}")
    A(f"v_mov_b32 v{XR+9}, 0")
    stamp(2)
    A("s_cmp_eq_u32 s28, 2")
    A("s_cbranch_scc1 L_h_s1_narrow")
    W0 = HA
    for s in range(2):
        A(f"s_waitcnt vmcnt({10 - 8*s}) lgkmcnt(0)")
        for t in range(9):
            if t < 8:
                for r in range(4):
                    lo = L1 + 4 * (8 * s + 2 * r) + (t >> 1)
                    A(f"v_perm_b32 v{W0+4*(t&1)+r}, v{lo+4}, v{lo}, s{58+(t&1)}")
            else:
                A("s_nop 1")
            if t > 0:
                tt = t - 1
                c_in = "0" if s == 0 else vr(HD + 4 * tt, 4)
                A(f"v_mfma_f32_16x16x32_bf16 {vr(HD+4*tt,4)}, {vr(W0+4*(tt&1),4)}, {vr(XR+4*s,4)}, {c_in}")
    A("s_waitcnt vmcnt(0)")
    W2 = HA
    A("s_nop 1")
    for t in range(8):
        lo = L1 + 4 * 16 + (t >> 1)
        A(f"v_perm_b32 v{W2+2*t}, v{lo+4}, v{lo}, s{58+(t&1)}")
        A(f"v_mov_b32 v{W2+2*t+1}, 0")
    A("s_nop 1")
    for t in range(8):
        A(f"v_mfma_f32_16x16x16_bf16 {vr(HD+4*t,4)}, {vr(W2+2*t,2)}, {vr(XR+8,2)}, {vr(HD+4*t,4)}")
    A(f"v_lshrrev_b32 v{HT+4}, 3, v{HC}")
    A(f"v_lshl_add_u32 v{HT+3}, v{HT+4}, 6, v{HT+3}")
    A("s_nop 7")
    for tt in range(0, 8, 2):
        for r in range(4):
            A(f"v_cndmask_b32 v{HD+4*tt+r}, v{HD+4*tt+r}, v{HD+4*tt+4+r}, s[34:35]")
        A(f"buffer_store_dwordx4 {vr(HD+4*tt,4)}, v{HT+3}, s[16:19], s33 offen offset:{tt*64} sc1")
    A("s_branch L_h_s1_done")
    Lb("L_h_s1_narrow")
    A("s_waitcnt vmcnt(0) lgkmcnt(0)")
    for d in range(9):
        A(f"v_lshl_or_b32 v{HA+d}, v{L1+2*d+1}, 16, v{L1+2*d}")
    A(f"v_mov_b32 v{HA+9}, 0")
    A(f"v_mov_b32 v{HT+4}, 0x10000000")
    A(f"v_cndmask_b32 v{HT+3}, v{HT+3}, v{HT+4}, s[34:35]")
    A(f"v_mfma_f32_16x16x32_bf16 {vr(HD,4)}, {vr(HA,4)}, {vr(XR,4)}, 0")
    A(f"v_mfma_f32_16x16x32_bf16 {vr(HD,4)}, {vr(HA+4,4)}, {vr(XR+4,4)}, {vr(HD,4)}")
    A("s_nop 7")
    A(f"v_mfma_f32_16x16x16_bf16 {vr(HD,4)}, {vr(HA+8,2)}, {vr(XR+8,2)}, {vr(HD,4)}")
    A("s_nop 7")
    A(f"buffer_store_dwordx4 {vr(HD,4)}, v{HT+3}, s[16:19], s33 offen sc1")
    Lb("L_h_s1_done")
    stamp(3)
    A("s_and_b32 s3, s29, 1")
    A("s_lshl_b32 s3, s3, 7")
    A("s_lshr_b32 s33, s29, 1")
    A("s_lshl_b32 s33, s33, 2")
    A("s_add_u32 s3, s3, s33")
    A(f"v_mov_b32 v{HT}, s3")
    A("s_mov_b64 exec, 1")
    A("s_waitcnt vmcnt(0)")
    A(f"ds_add_rtn_u32 v{HT+4}, v{HLB}, v{HT+2} offset:{O_CNT+C_S1}")
    A("s_waitcnt lgkmcnt(0)")
    A(f"v_readfirstlane_b32 s3, v{HT+4}")
    A("s_cmp_lg_u32 s3, 2")
    A("s_cbranch_scc1 L_h_s1_nosig")
    A(f"global_atomic_add v{HT}, v{HT+2}, s[{SDBG}:{SDBG+1}]")
    Lb("L_h_s1_nosig")
    A("s_mov_b64 exec, -1")
    stamp(4)
    A("s_cmp_lg_u32 s28, 0")
    A("s_cbranch_scc1 L_h_w2")

    GB = 52
    A(f"v_and_b32 v{HT+4}, 3, v2")
    A(f"v_bfe_u32 v{HT+5}, v2, 2, 3")
    A(f"v_lshl_add_u32 v{HT+4}, v{HT+4}, 5, v{HT+5}")
    A("s_mul_i32 s33, s31, 288")
    srd(12, SB1, "s33", 288)
    A(f"v_lshlrev_b32 v{HT+5}, 1, v{HT+4}")
    for r in range(4):
        A(f"buffer_load_ushort v{GB+r}, v{HT+5}, s[12:15], 0 offen offset:{16*r}")
    A(f"v_lshlrev_b32 v{HT+6}, 1, v{HC}")
    A(f"buffer_load_ushort v{GB+4}, v{HT+6}, s[12:15], 0 offen offset:256")
    A(f"v_lshlrev_b32 v{HT+7}, 4, v2")
    A(f"v_lshlrev_b32 v{HT+8}, 2, v{HC}")
    A("s_mul_i32 s33, s30, 9216")
    Lb("L_h_gpoll")
    A(f"global_load_dword v{HT+9}, v{HT}, s[{SDBG}:{SDBG+1}] sc1")
    A("s_waitcnt vmcnt(0)")
    A(f"v_readfirstlane_b32 s3, v{HT+9}")
    A("s_cmp_ge_u32 s3, 8")
    A("s_cbranch_scc1 L_h_gpoll_ok")
    A("s_sub_u32 s69, s69, 16")
    A("s_cbranch_scc0 L_h_gpoll")
    A("s_mov_b32 s69, 0")
    Lb("L_h_gpoll_ok")
    stamp(5)
    GL = HF
    for p in range(8):
        A(f"buffer_load_dwordx4 {vr(GL+4*p,4)}, v{HT+7}, s[16:19], s33 offen sc1")
        A(f"buffer_load_dword v{GL+32+p}, v{HT+8}, s[16:19], s33 offen offset:1024 sc1")
        A("s_add_u32 s33, s33, 1152")
    A(f"v_add_u32 v{HT+5}, v{HT+5}, v{HLB}")
    A(f"v_lshl_add_u32 v{HT+4}, v{HT+4}, 2, v{HLB}")
    A(f"v_add_u32 v{HT+6}, v{HT+6}, v{HLB}")
    for p in range(1, 8):
        A(f"s_waitcnt vmcnt({14-2*p})")
        for r in range(4):
            A(f"v_add_f32 v{GL+r}, v{GL+r}, v{GL+4*p+r}")
        A(f"v_add_f32 v{GL+32}, v{GL+32}, v{GL+32+p}")
    A(f"v_mov_b32 v{GL+4}, v{GL+32}")
    for r in range(5):
        A(f"v_cvt_pk_bf16_f32 v{GL+r}, v{GL+r}, v{GL+r}")
    A("s_mov_b32 exec_hi, 0")
    for r in range(4):
        A(f"ds_write_b16 v{HT+5}, v{GL+r} offset:{O_Q+16*r}")
    A("s_waitcnt lgkmcnt(0)")
    A(f"ds_write_b32 v{HLB}, v{HT+2} offset:{O_CNT+C_Q}")
    A("s_mov_b32 exec_hi, -1")
    stamp(6)
    c1 = -2.0 * LOG2E * 0.7978845608028654
    for r in range(5):
        A(f"v_and_b32 v{GL+r}, 0xffff0000, v{GL+r}")
        A(f"v_lshlrev_b32 v{GB+r}, 16, v{GB+r}")
        A(f"v_add_f32 v{GL+r}, v{GL+r}, v{GB+r}")
        bfround(GL + r, GL + r)
        A(f"v_mul_f32 v{GB+r}, v{GL+r}, v{GL+r}")
        A(f"v_mov_b32 v{GL+8}, {f32(c1)}")
        A(f"v_fmac_f32 v{GL+8}, {f32(c1*0.044715)}, v{GB+r}")
        A(f"v_mul_f32 v{GB+r}, v{GL+8}, v{GL+r}")
        A(f"v_exp_f32 v{GB+r}, v{GB+r}")
        A("s_nop 0")
        A(f"v_add_f32 v{GB+r}, 1.0, v{GB+r}")
        A(f"v_rcp_f32 v{GB+r}, v{GB+r}")
        A("s_nop 0")
        A(f"v_mul_f32 v{GL+r}, v{GL+r}, v{GB+r}")
        bfround(GL + r, GL + r)
    A("s_mov_b32 exec_lo, 0")
    for r in range(4):
        A(f"ds_write_b32 v{HT+4}, v{GL+r} offset:{O_OP+32*r}")
    A(f"ds_write_b16_d16_hi v{HT+6}, v{GL+4} offset:{O_HR}")
    A("s_waitcnt lgkmcnt(0)")
    A(f"ds_write_b32 v{HLB}, v{HT+2} offset:{O_CNT+C_H}")
    A("s_mov_b32 exec_lo, -1")

    Lb("L_h_w2")
    if hprio:
        A("s_setprio 0")
    A(f"s_mul_i32 s3, s31, {144*1152}")
    srd(20, SW2, "s3", 144 * 1152)
    ST = HD
    A(f"v_mul_u32_u24 v{HT}, {28*1152}, v{HG}")
    A(f"v_sub_u32 v{HT+1}, v{HVS}, v{HT}")
    A(f"v_sub_u32 v{HT}, v{HVB}, v{HT}")
    A(f"s_mov_b32 s33, {128*1152}")
    for e in range(4):
        A(f"buffer_load_dwordx4 {vr(ST+4*e,4)}, v{HT}, s[20:23], s33 offen offset:{e*1152} nt")
        A(f"buffer_load_ushort v{ST+16+e}, v{HT+1}, s[20:23], s33 offen offset:{e*1152} nt")
    A("s_waitcnt vmcnt(0)")
    for r in range(2):
        for t in range(8):
            lo = ST + 8 * r + (t >> 1)
            A(f"v_perm_b32 v{HF2+2*t+r}, v{lo+4}, v{lo}, s{58+(t&1)}")
        A(f"v_lshl_or_b32 v{HF2+16+r}, v{ST+17+2*r}, 16, v{ST+16+2*r}")
    A("s_call_b64 s[62:63], L_sub_load")
    stamp(7)
    lds_spin("L_h_hwait", HLB, O_CNT + C_H, HT, 1)
    A(f"v_lshl_add_u32 v{HT}, v{HG}, 3, v{HLB}")
    A(f"ds_read_b64 {vr(HT+2,2)}, v{HT} offset:{O_HR}")
    A(f"s_mul_i32 s3, s2, 2304")
    A(f"s_add_u32 s3, s3, {WS_G}")
    srd(24, SWS, "s3", 2304)
    A("s_waitcnt lgkmcnt(0)")
    for t in range(9):
        A(f"v_mfma_f32_16x16x16_bf16 {vr(HD+4*t,4)}, {vr(HT+2,2)}, {vr(HF2+2*t,2)}, 0")
    A("s_call_b64 s[62:63], L_sub_gemv")
    A(f"s_add_u32 s24, s24, {WS_Y-WS_G}")
    A("s_addc_u32 s25, s25, 0")
    for r in range(4):
        A(f"v_mov_b32 v{HT+2+r}, -1")
    A(f"buffer_store_dwordx4 {vr(HT+2,4)}, v{HPM}, s[24:27], 0 offen sc1")
    A(f"buffer_store_dword v{HT+2}, v{HPR}, s[24:27], 0 offen sc1")
    A("s_lshl_b32 s3, s30, 2")
    A("s_add_u32 s3, s3, 64")
    A(f"v_mov_b32 v15, s3")
    A(f"v_mov_b32 v{HT}, 1")
    A("s_mov_b64 exec, 1")
    A("s_waitcnt vmcnt(0)")
    A(f"ds_add_rtn_u32 v{HT+1}, v{HLB}, v{HT} offset:{O_CNT+C_S2}")
    A("s_waitcnt lgkmcnt(0)")
    A(f"v_readfirstlane_b32 s3, v{HT+1}")
    A("s_cmp_lg_u32 s3, 3")
    A("s_cbranch_scc1 L_h_s2_nosig")
    A(f"global_atomic_add v15, v{HT}, s[{SDBG}:{SDBG+1}]")
    Lb("L_h_s2_nosig")
    A("s_mov_b64 exec, -1")
    stamp(8)
    A(f"s_mul_i32 s3, s29, {128*1152}")
    srd(20, SWO, "s3", 128 * 1152)
    A("s_call_b64 s[62:63], L_sub_load")
    stamp(9)
    PM, PAO, PACC, PE, PV_ = 208, 212, 220, 224, 16
    pv_masks(PM, HC, HT)
    for r in range(4):
        A(f"v_mov_b32 v{PACC+r}, 0")
    A("s_barrier")
    A("s_lshl_b32 s3, s28, 3")
    A(f"v_add_u32 v{HT}, s3, v{HLB}")
    A(f"ds_read_b32 v{HT+1}, v{HT} offset:{O_ST}")
    A("s_lshl_b32 s3, s28, 9")
    A(f"v_lshl_add_u32 v{HT}, v2, 2, v{HLB}")
    A(f"v_add_u32 v{HT}, s3, v{HT}")
    A(f"ds_read_b32 v{PE}, v{HT} offset:{O_E}")
    A(f"ds_read_b32 v{PE+1}, v{HT} offset:{O_E+256}")
    softmax_factor(HLB, HA, HT, HT + 1)
    for u in range(2):
        A(f"v_mul_f32 v{PE+u}, v{PE+u}, v{HT}")
        A(f"v_cvt_pk_bf16_f32 v{PE+u}, v{PE+u}, v{PE+u}")
    A("s_lshl_b32 s3, s28, 15")
    A(f"v_lshl_add_u32 v{HT}, v2, 4, s3")
    A("s_mov_b32 s34, 2")
    Lb("L_h_pv")
    for half in range(2):
        for i in range(8):
            A(f"ds_read_b128 {vr(PV_+4*i,4)}, v{HT} offset:{(8*half+i)*1024}")
        for i in range(8):
            build_a(8 * half + i, PE, PM, PAO)
            A(f"s_waitcnt lgkmcnt({7-i})")
            A("s_nop 0")
            A(f"v_mfma_f32_16x16x32_bf16 {vr(PACC,4)}, {vr(PAO+4*(i&1),4)}, {vr(PV_+4*i,4)}, {vr(PACC,4)}")
    A(f"v_mov_b32 v{PE}, v{PE+1}")
    A(f"v_add_u32 v{HT}, 16384, v{HT}")
    A("s_sub_u32 s34, s34, 1")
    A("s_cmp_lg_u32 s34, 0")
    A("s_cbranch_scc1 L_h_pv")
    A(f"v_lshlrev_b32 v{HT}, 5, v{HC}")
    A(f"v_lshl_add_u32 v{HT}, v{HG}, 4, v{HT}")
    A("s_lshl_b32 s3, s28, 9")
    A(f"v_add3_u32 v{HT}, v{HT}, s3, v{HLB}")
    A("s_mov_b32 exec_hi, 0")
    A(f"ds_write_b128 v{HT}, {vr(PACC,4)} offset:{O_OP+2048}")
    A("s_mov_b32 exec_hi, -1")
    stamp(10)
    A("s_cmp_eq_u32 s28, 3")
    A("s_cselect_b32 s64, 1, 0")
    A("s_cmp_lt_u32 s29, 18")
    A("s_cselect_b32 s64, s64, 0")
    GA, GS = 208, 224
    A(f"s_mul_i32 s3, s30, {32*2304}")
    A(f"s_add_u32 s3, s3, {WS_G}")
    srd(12, SWS, "s3", 32 * 2304)
    A(f"v_lshrrev_b32 v{HT}, 3, v2")
    A(f"v_mul_u32_u24 v{HT}, 2304, v{HT}")
    A(f"v_and_b32 v{HT+1}, 7, v2")
    A(f"v_lshl_add_u32 v{HT}, v{HT+1}, 4, v{HT}")
    A("s_lshl_b32 s3, s29, 7")
    A(f"v_add_u32 v{GS}, s3, v{HT}")
    A(f"s_mov_b32 s65, {8*2304}")
    A(f"s_mov_b32 s66, {16*2304}")
    A(f"s_mov_b32 s67, {24*2304}")
    A(f"v_bfe_u32 v{HT+2}, v2, 4, 1")
    A(f"v_lshrrev_b32 v{HT+3}, 5, v2")
    A(f"v_lshl_add_u32 v{HT+2}, v{HT+2}, 1, v{HT+3}")
    A(f"v_lshl_add_u32 v{HT+2}, v{HT+1}, 2, v{HT+2}")
    A("s_lshl_b32 s3, s29, 5")
    A(f"v_add_lshl_u32 v{HOA}, v{HT+2}, s3, 1")
    A("s_mul_i32 s68, s30, 1152")
    srd(16, SOUT, None, 9216)
    A("s_cmp_eq_u32 s64, 0")
    A("s_cbranch_scc1 L_h_tail")
    srd(20, SB2, None, 1152)
    A(f"buffer_load_ushort v{HXV}, v{HOA}, s[8:11], s68 offen")
    A(f"buffer_load_ushort v{HGV}, v{HOA}, s[20:23], 0 offen")
    Lb("L_h_bpoll")
    A(f"global_load_dword v{HT}, v15, s[{SDBG}:{SDBG+1}] sc1")
    A("s_waitcnt vmcnt(0)")
    A(f"v_readfirstlane_b32 s3, v{HT}")
    A("s_cmp_ge_u32 s3, 32")
    A("s_cbranch_scc1 L_h_bpoll_ok")
    A("s_sub_u32 s69, s69, 16")
    A("s_cbranch_scc0 L_h_bpoll")
    A("s_mov_b32 s69, 0")
    Lb("L_h_bpoll_ok")
    A("s_call_b64 s[62:63], L_sub_gather")
    A(f"v_lshlrev_b32 v{HXV}, 16, v{HXV}")
    A(f"v_lshlrev_b32 v{HGV}, 16, v{HGV}")
    A(f"v_add_f32 v{HGV}, v{HGV}, v{HT}")
    bfround(HGV, HGV)
    A(f"v_mul_f32 v{HT}, {f32(-LOG2E)}, v{HGV}")
    A(f"v_exp_f32 v{HT}, v{HT}")
    A("s_nop 0")
    A(f"v_add_f32 v{HT}, 1.0, v{HT}")
    A(f"v_rcp_f32 v{HT}, v{HT}")
    A("s_nop 0")
    A(f"v_mul_f32 v{HGV}, v{HGV}, v{HT}")
    bfround(HGV, HGV)
    A(f"s_add_u32 s12, s12, {WS_Y-WS_G}")
    A("s_addc_u32 s13, s13, 0")
    A(f"v_mov_b32 v{HT}, 0x10000000")
    A(f"v_and_b32 v{HT+1}, 8, v2")
    A(f"v_cmp_eq_u32 vcc, 0, v{HT+1}")
    A("s_nop 1")
    A(f"v_cndmask_b32 v{HOA}, v{HT}, v{HOA}, vcc")
    Lb("L_h_tail")
    for r in range(36):
        A(f"v_mov_b32 v{HD+r}, 0")
    stamp(11)
    A("s_waitcnt lgkmcnt(0)")
    A("s_barrier")
    stamp(12)
    A("s_call_b64 s[62:63], L_sub_gemv")
    stamp(13)
    A("s_cmp_eq_u32 s64, 0")
    A("s_cbranch_scc1 L_fin")
    A("s_call_b64 s[62:63], L_sub_gather")
    A(f"v_mul_f32 v{HT}, v{HT}, v{HGV}")
    bfround(HT, HT)
    A(f"v_add_f32 v{HT}, v{HT}, v{HXV}")
    A(f"v_cvt_pk_bf16_f32 v{HT}, v{HT}, v{HT}")
    A(f"buffer_store_short v{HT}, v{HOA}, s[16:19], s68 offen")
    stamp(14)

    Lb("L_fin")
    if stamps:
        A("s_waitcnt vmcnt(0)")
        stamp(15)
        A("s_getreg_b32 s70, hwreg(HW_REG_XCC_ID)")
        A(f"v_writelane_b32 v{VST}, s70, 16")
        A(f"s_add_u32 s72, s72, {WS_STAMP}")
        A("s_addc_u32 s73, s73, 0")
        A("s_lshl_b32 s3, s2, 11")
        A("v_lshlrev_b32 v0, 2, v0")
        A("v_add_u32 v0, s3, v0")
        A(f"global_store_dword v0, v{VST}, s[72:73]")
    Lb("L_end")
    A("s_endpgm")

    Lb("L_sub_load")
    ST = HD

    def issue_pair(n):
        sl = ST + 10 * (n & 1)
        A(f"s_mov_b32 s33, {2*n*1152}")
        A(f"buffer_load_dwordx4 {vr(sl,4)}, v{HVB}, s[20:23], s33 offen nt")
        A(f"buffer_load_dwordx4 {vr(sl+4,4)}, v{HVB}, s[20:23], s33 offen offset:1152 nt")
        A(f"buffer_load_ushort v{sl+8}, v{HVS}, s[20:23], s33 offen nt")
        A(f"buffer_load_ushort v{sl+9}, v{HVS}, s[20:23], s33 offen offset:1152 nt")

    issue_pair(0)
    issue_pair(1)
    for n in range(16):
        s, r = n >> 2, n & 3
        sl = ST + 10 * (n & 1)
        A(f"s_waitcnt vmcnt({4 if n < 15 else 0})")
        for t in range(8):
            A(f"v_perm_b32 v{HF+36*s+4*t+r}, v{sl+4+(t>>1)}, v{sl+(t>>1)}, s{58+(t&1)}")
        A(f"v_lshl_or_b32 v{HF+36*s+32+r}, v{sl+9}, 16, v{sl+8}")
        if n + 2 < 16:
            issue_pair(n + 2)
    A("s_setpc_b64 s[62:63]")

    Lb("L_sub_gemv")
    OR = 208
    for k in range(8):
        A(f"ds_read_b64 {vr(OR+2*k,2)}, v{HOP} offset:{O_OP+512*k}")
    for k in range(1, 8):
        A(f"s_waitcnt lgkmcnt({7-k})")
        A(f"v_add_f32 v{OR}, v{OR}, v{OR+2*k}")
        A(f"v_add_f32 v{OR+1}, v{OR+1}, v{OR+2*k+1}")
    A(f"v_cvt_pk_bf16_f32 v{OR}, v{OR}, v{OR+1}")
    A("s_nop 1")
    bc = [f"v_mov_b32_dpp v{HA+n}, v{OR} row_newbcast:{n} {DPP_ALL}" for n in range(16)]
    for n in range(6):
        A(bc.pop(0))
    for s in range(4):
        order = range(9) if s < 3 else (8, 0, 4, 1, 5, 2, 6, 3, 7)
        for t in order:
            A(f"v_mfma_f32_16x16x32_bf16 {vr(HD+4*t,4)}, {vr(HA+4*s,4)}, {vr(HF+36*s+4*t,4)}, {vr(HD+4*t,4)}")
            if bc:
                A(bc.pop(0))
    A(f"buffer_store_dword v{HD+32}, v{HPR}, s[24:27], 0 offen sc1")
    A("s_nop 4")
    for r in range(4):
        A(f"v_cndmask_b32 v{OR+4+r}, v{HD+4*r}, v{HD+16+4*r}, s[60:61]")
    A(f"buffer_store_dwordx4 {vr(OR+4,4)}, v{HPM}, s[24:27], 0 offen sc1")
    A("s_setpc_b64 s[62:63]")

    Lb("L_sub_gather")
    A(f"buffer_load_dwordx4 {vr(GA,4)}, v{GS}, s[12:15], 0 offen sc1")
    for k in range(1, 4):
        A(f"buffer_load_dwordx4 {vr(GA+4*k,4)}, v{GS}, s[12:15], s{64+k} offen sc1")
    A("s_waitcnt vmcnt(0)")
    A(f"v_max3_u32 v{HT}, v{GA}, v{GA+1}, v{GA+2}")
    for n in range(3, 15, 2):
        A(f"v_max3_u32 v{HT}, v{HT}, v{GA+n}, v{GA+n+1}")
    A(f"v_max_u32 v{HT}, v{HT}, v{GA+15}")
    A(f"v_cmp_eq_u32 vcc, -1, v{HT}")
    for r in range(4):
        A(f"v_add_f32 v{GA+r}, v{GA+r}, v{GA+4+r}")
    for r in range(4):
        A(f"v_add_f32 v{GA+8+r}, v{GA+8+r}, v{GA+12+r}")
    A("s_cbranch_vccnz L_sub_gather_again")
    Lb("L_sub_gather_ok")
    for r in range(4):
        A(f"v_add_f32 v{GA+r}, v{GA+r}, v{GA+8+r}")
    A("s_nop 0")
    A(f"v_permlane32_swap_b32 v{GA}, v{GA+1}")
    A(f"v_permlane32_swap_b32 v{GA+2}, v{GA+3}")
    A("s_nop 0")
    A(f"v_add_f32 v{GA}, v{GA}, v{GA+1}")
    A(f"v_add_f32 v{GA+2}, v{GA+2}, v{GA+3}")
    A("s_nop 1")
    A(f"v_permlane16_swap_b32 v{GA}, v{GA+2}")
    A("s_nop 1")
    A(f"v_add_f32 v{GA}, v{GA}, v{GA+2}")
    A("s_nop 1")
    A(f"v_add_f32_dpp v{HT}, v{GA}, v{GA} row_ror:8 {DPP_ALL}")
    bfround(HT, HT)
    A("s_setpc_b64 s[62:63]")
    Lb("L_sub_gather_again")
    A("s_sub_u32 s69, s69, 16")
    A("s_cbranch_scc0 L_sub_gather")
    A("s_mov_b32 s69, 0")
    A("s_branch L_sub_gather_ok")

    o.append('.section .rodata,"a"')
    o.append(".p2align 6")
    o.append(f".amdhsa_kernel {NAME}_kernel")
    o.append("  .amdhsa_next_free_vgpr 256")
    o.append("  .amdhsa_next_free_sgpr 80")
    o.append("  .amdhsa_accum_offset 256")
    o.append("  .amdhsa_group_segment_fixed_size 0")
    o.append("  .amdhsa_kernarg_size 104")
    o.append("  .amdhsa_user_sgpr_count 2")
    o.append("  .amdhsa_user_sgpr_kernarg_segment_ptr 1")
    o.append("  .amdhsa_system_sgpr_workgroup_id_x 1")
    o.append("  .amdhsa_float_denorm_mode_32 3")
    o.append(".end_amdhsa_kernel")
    return "\n".join(o) + "\n"


if __name__ == "__main__":
    cfg = json.loads(sys.argv[2]) if len(sys.argv) > 2 else {}
    open(sys.argv[1], "w").write(gen(**cfg))
```

```python
import struct, sys, json

NAME = "recurrent_scan__mha_block_cached__dense_activation_gelu__decode"
HEADER = open("header.txt").read()

WS_P1 = 0x000000
WS_G = 0x300000
WS_Y = 0x400000
WS_STAMP = 0x20000000

L_V = 0x00000
L_B = 0x20000
O_OP = 0x0000
O_E = 0x1000
O_ST = 0x1800
O_CNT = 0x1840
O_Q = 0x1880
O_HR = 0x1980
O_XN = 0x19C0
LDS_BYTES = L_B + 0x2000
C_LN, C_S1, C_Q, C_H, C_S2 = 0, 4, 8, 12, 16

SENT = 0xFFFFFFFF
LOG2E = 1.4426950408889634


def f32(x):
    return "0x%08x" % struct.unpack("<I", struct.pack("<f", x))[0]


def vr(a, n=1):
    return f"v{a}" if n == 1 else f"v[{a}:{a+n-1}]"


DPP_ALL = "row_mask:0xf bank_mask:0xf"


def cl(i):
    return ((i & 1) << 3) | (((i >> 1) & 1) << 2) | (i >> 2)


def gen(D=6, stag_shift=15, stamps=False, hprio=0, nonarrow=False, sleep0=0, sleep1=0, fakepoll=False, kvpol="nt", wpol="nt", stpol="sc1", ldpol="sc1"):
    o = []
    A = lambda s: o.append("  " + s)
    Lb = lambda s: o.append(s + ":")

    VST = 255

    def stamp(i):
        if stamps:
            A("s_memrealtime s[70:71]")
            A("s_waitcnt lgkmcnt(0)")
            A(f"v_writelane_b32 v{VST}, s70, {i}")

    def bfround(dst, src):
        A(f"v_cvt_pk_bf16_f32 v{dst}, v{src}, v{src}")
        A(f"v_and_b32 v{dst}, 0xffff0000, v{dst}")

    def allreduce_row(op, v):
        for sh in (8, 4, 2, 1):
            A("s_nop 1")
            A(f"{op}_dpp v{v}, v{v}, v{v} row_ror:{sh} {DPP_ALL}")

    def swap_reduce(op, v, t, which):
        A(f"v_mov_b32 v{t}, v{v}")
        A("s_nop 1")
        A(f"v_permlane{which}_swap_b32 v{t}, v{v}")
        A("s_nop 1")
        A(f"{op} v{v}, v{v}, v{t}")

    def lds_spin(label, vaddr, off, vtmp, target, sleep=1):
        Lb(label)
        A(f"ds_read_b32 v{vtmp}, v{vaddr} offset:{off}")
        A("s_waitcnt lgkmcnt(0)")
        A(f"v_readfirstlane_b32 s3, v{vtmp}")
        A(f"s_cmp_ge_u32 s3, {target}")
        A(f"s_cbranch_scc1 {label}_ok")
        if sleep:
            A(f"s_sleep {sleep}")
        A("s_sub_u32 s69, s69, 1")
        A(f"s_cbranch_scc0 {label}")
        A("s_mov_b32 s69, 0")
        Lb(label + "_ok")

    def pv_masks(vm, vc, t0):
        A(f"v_and_b32 v{t0}, 1, v{vc}")
        A(f"v_lshlrev_b32 v{t0}, 4, v{t0}")
        A(f"v_mov_b32 v{t0+1}, 0xffff")
        A(f"v_lshlrev_b32 v{t0}, v{t0}, v{t0+1}")
        A(f"v_lshrrev_b32 v{t0+1}, 1, v{vc}")
        for r in range(4):
            A(f"v_cmp_eq_u32 vcc, {r}, v{t0+1}")
            A("s_nop 1")
            A(f"v_cndmask_b32 v{vm+r}, 0, v{t0}, vcc")

    def softmax_factor(vbase, vst, vf, vown):
        A(f"ds_read_b128 {vr(vst,4)}, v{vbase} offset:{O_ST}")
        A(f"ds_read_b128 {vr(vst+4,4)}, v{vbase} offset:{O_ST+16}")
        A("s_waitcnt lgkmcnt(0)")
        m, t = vst + 8, vst + 9
        A(f"v_max3_f32 v{m}, v{vst}, v{vst+2}, v{vst+4}")
        A(f"v_max_f32 v{m}, v{m}, v{vst+6}")
        for k in range(4):
            A(f"v_sub_f32 v{vst+2*k}, v{vst+2*k}, v{m}")
        A(f"v_sub_f32 v{t}, v{vown}, v{m}")
        for k in range(4):
            A(f"v_mul_f32 v{vst+2*k}, {f32(LOG2E)}, v{vst+2*k}")
        A(f"v_mul_f32 v{t}, {f32(LOG2E)}, v{t}")
        for k in range(4):
            A(f"v_exp_f32 v{vst+2*k}, v{vst+2*k}")
        A(f"v_exp_f32 v{t}, v{t}")
        A(f"v_mul_f32 v{m}, v{vst}, v{vst+1}")
        for k in range(1, 4):
            A(f"v_fmac_f32 v{m}, v{vst+2*k}, v{vst+2*k+1}")
        A(f"v_rcp_f32 v{m}, v{m}")
        A("s_nop 0")
        A(f"v_mul_f32 v{vf}, v{t}, v{m}")

    o.append(HEADER.rstrip())
    o.append(f"; @launch grid=(256,1,1) block=(512,1,1) lds={LDS_BYTES}")
    o.append('.amdgcn_target "amdgcn-amd-amdhsa--gfx950"')
    o.append(".text")
    o.append(f".globl {NAME}_kernel")
    o.append(".p2align 8")
    o.append(f".type {NAME}_kernel,@function")
    Lb(f"{NAME}_kernel")
    A("s_cmp_ge_u32 s2, 256")
    A("s_cbranch_scc1 L_end")
    A("s_load_dwordx4 s[4:7], s[0:1], 8")
    if stamps:
        A("s_load_dwordx2 s[72:73], s[0:1], 96")
        A(f"v_mov_b32 v{VST}, 0")
    A("v_lshrrev_b32 v1, 6, v0")
    A("v_and_b32 v2, 63, v0")
    A("v_readfirstlane_b32 s28, v1")
    A("s_mov_b32 s69, 0x200000")
    stamp(0)
    A("s_cmp_ge_u32 s28, 4")
    A("s_cbranch_scc1 L_helper")

    RING = 64
    VQ, VP, VA0, VA1, VB, VC, VS, VMAX = 4, 8, 10, 11, 12, 13, 14, 15
    VE, VM, VAO, VACC, VT, VLB = 16, 32, 36, 44, 48, 60
    A("v_lshlrev_b32 v3, 4, v2")
    A("s_lshl_b32 s3, s28, 12")
    A("v_add_u32 v3, s3, v3")
    A(f"s_lshl_b32 s29, s2, {stag_shift}")
    A("s_lshl_b32 s3, s2, 20")
    A("s_mov_b32 s18, 0x100000")
    A("s_mov_b32 s19, 0x20000")

    def tile_offsets():
        for k in range(4):
            A(f"s_add_u32 s{36+k}, s29, {k*16384}")
            A(f"s_and_b32 s{36+k}, s{36+k}, 0xfffff")

    def ring_load(i):
        A(f"buffer_load_dwordx4 {vr(RING+4*i,4)}, v3, s[16:19], s{36+i//4} offen offset:{(i%4)*1024} {kvpol}")

    tile_offsets()
    A("s_waitcnt lgkmcnt(0)")
    A("s_add_u32 s16, s4, s3")
    A("s_addc_u32 s17, s5, 0")
    for i in range(D):
        ring_load(i)
    A("s_add_u32 s12, s6, s3")
    A("s_addc_u32 s13, s7, 0")
    A("s_mov_b32 s14, 0x100000")
    A("s_mov_b32 s15, 0x20000")
    A("s_barrier")
    for i in range(D, 16):
        A(f"s_waitcnt vmcnt({D-1})")
        ring_load(i)
    A(f"s_add_u32 s35, s29, {56*16384}")
    A("s_lshl_b32 s33, s28, 15")
    A("s_mov_b32 s34, 8")
    Lb("L_vdma")
    A("s_and_b32 s36, s35, 0xfffff")
    A("s_mov_b32 m0, s33")
    for j in range(4):
        A(f"s_waitcnt vmcnt({D-1})")
        A(f"buffer_load_dwordx4 v3, s[12:15], s36 offen offset:{j*1024} {kvpol} lds")
    A("s_add_u32 s35, s35, 16384")
    A("s_add_u32 s33, s33, 4096")
    A("s_sub_u32 s34, s34, 1")
    A("s_cmp_lg_u32 s34, 0")
    A("s_cbranch_scc1 L_vdma")
    stamp(1)
    A(f"v_mov_b32 v{VLB}, {L_B}")
    A(f"v_and_b32 v{VT+2}, 15, v2")
    pv_masks(VM, VT + 2, VT)
    for k in (1, 2, 3):
        A(f"s_mov_b32 s{38+2*k}, 0x{(0x11111111 << k) & 0xffffffff:08x}")
        A(f"s_mov_b32 s{39+2*k}, 0x{(0x11111111 << k) & 0xffffffff:08x}")
    A(f"v_mov_b32 v{VMAX}, 0xff800000")
    for r in range(4):
        A(f"v_mov_b32 v{VACC+r}, 0")
    A(f"v_lshl_add_u32 v{VT+3}, v{VT+2}, 4, v{VLB}")
    lds_spin("L_qwait", VLB, O_CNT + C_Q, VT, 1)
    A(f"ds_read_b128 {vr(VQ,4)}, v{VT+3} offset:{O_Q}")
    A("s_mov_b32 s34, 16")
    stamp(2)
    A("s_waitcnt lgkmcnt(0)")

    Lb("L_kloop")
    A("s_add_u32 s29, s29, 65536")
    tile_offsets()
    A("s_cmp_eq_u32 s34, 1")
    A("s_cselect_b32 s16, s12, s16")
    A("s_cselect_b32 s17, s13, s17")

    def red_a(i):
        j = i & 3
        dst = VA0 if j < 2 else VA1
        bm = "0x3" if (j & 1) == 0 else "0xc"
        p = VP + (i & 1)
        A(f"v_add_f32_dpp v{dst}, v{p}, v{p} row_ror:8 row_mask:0xf bank_mask:{bm}")

    def red_b(which):
        src = VA0 if which == 0 else VA1
        bm = "0x5" if which == 0 else "0xa"
        A(f"v_add_f32_dpp v{VB}, v{src}, v{src} row_half_mirror row_mask:0xf bank_mask:{bm}")

    def red_c():
        A(f"v_add_f32_dpp v{VC}, v{VB}, v{VB} quad_perm:[1,0,3,2] {DPP_ALL}")

    def red_d(k):
        dst = VS if k == 0 else VB
        A(f"v_add_f32_dpp v{dst}, v{VC}, v{VC} quad_perm:[2,3,0,1] {DPP_ALL}")

    def red_e(k):
        if k:
            A(f"v_cndmask_b32 v{VS}, v{VS}, v{VB}, s[{38+2*k}:{39+2*k}]")

    for i in range(16):
        k, j = i >> 2, i & 3
        p = VP + (i & 1)
        R = RING + 4 * i
        A(f"v_dot2_f32_bf16 v{p}, v{R}, v{VQ}, 0")
        A(f"v_dot2_f32_bf16 v{p}, v{R+1}, v{VQ+1}, v{p}")
        if i > 0:
            red_a(i - 1)
        A(f"v_dot2_f32_bf16 v{p}, v{R+2}, v{VQ+2}, v{p}")
        if k > 0:
            if j == 0:
                red_b(0)
            elif j == 1:
                red_b(1)
            elif j == 2:
                red_c()
            else:
                red_d(k - 1)
        A(f"v_dot2_f32_bf16 v{p}, v{R+3}, v{VQ+3}, v{p}")
        if k > 0 and j == 3:
            red_e(k - 1)
        A(f"s_waitcnt vmcnt({D-1})")
        ring_load(i)
    rot = [f"v_mov_b32 v{VE+u}, v{VE+u+1}" for u in range(15)]
    A(rot.pop(0))
    red_a(15)
    red_b(0)
    A(rot.pop(0))
    red_b(1)
    A(rot.pop(0)); A(rot.pop(0))
    red_c()
    A(rot.pop(0)); A(rot.pop(0))
    red_d(3)
    red_e(3)
    bfround(VS, VS)
    A(f"v_mul_f32 v{VS}, {f32(128 ** -0.5)}, v{VS}")
    for s in rot:
        A(s)
    bfround(VE + 15, VS)
    A(f"v_max_f32 v{VMAX}, v{VMAX}, v{VE+15}")
    A("s_sub_u32 s34, s34, 1")
    A("s_cmp_lg_u32 s34, 0")
    A("s_cbranch_scc1 L_kloop")
    stamp(3)

    allreduce_row("v_max_f32", VMAX)
    swap_reduce("v_max_f32", VMAX, VT, 16)
    swap_reduce("v_max_f32", VMAX, VT, 32)
    for u in range(16):
        A(f"v_sub_f32 v{VE+u}, v{VE+u}, v{VMAX}")
    for u in range(16):
        A(f"v_mul_f32 v{VE+u}, {f32(LOG2E)}, v{VE+u}")
    for u in range(16):
        A(f"v_exp_f32 v{VE+u}, v{VE+u}")
    A(f"v_add_f32 v{VS}, v{VE}, v{VE+1}")
    for u in range(2, 16):
        A(f"v_add_f32 v{VS}, v{VS}, v{VE+u}")
    A(f"s_lshl_b32 s3, s28, 9")
    A(f"v_lshl_add_u32 v{VT+2}, v2, 2, v{VLB}")
    A(f"v_add_u32 v{VT+2}, s3, v{VT+2}")
    A(f"ds_write_b32 v{VT+2}, v{VE+14} offset:{O_E}")
    A(f"ds_write_b32 v{VT+2}, v{VE+15} offset:{O_E+256}")
    allreduce_row("v_add_f32", VS)
    swap_reduce("v_add_f32", VS, VT, 16)
    swap_reduce("v_add_f32", VS, VT, 32)
    A(f"s_lshl_b32 s3, s28, 3")
    A(f"v_add_u32 v{VT+2}, s3, v{VLB}")
    A(f"ds_write_b32 v{VT+2}, v{VMAX} offset:{O_ST}")
    A(f"ds_write_b32 v{VT+2}, v{VS} offset:{O_ST+4}")
    A("s_waitcnt lgkmcnt(0)")
    A("s_barrier")
    softmax_factor(VLB, VT, VS, VMAX)
    for u in range(14):
        A(f"v_mul_f32 v{VE+u}, v{VE+u}, v{VS}")
    for u in range(14):
        A(f"v_cvt_pk_bf16_f32 v{VE+u}, v{VE+u}, v{VE+u}")
    A("s_mov_b32 s34, 14")
    stamp(4)

    def build_a(i, vp, vm, vao):
        for r in range(4):
            A(f"v_and_b32_dpp v{vao+4*(i&1)+r}, v{vp}, v{vm+r} row_newbcast:{cl(i)} {DPP_ALL}")

    Lb("L_vloop")
    A("s_add_u32 s29, s29, 65536")
    tile_offsets()
    A("s_cmp_eq_u32 s34, 1")
    A("s_cselect_b32 s18, 0, s18")
    build_a(0, VE, VM, VAO)
    for i in range(16):
        if i < 15:
            build_a(i + 1, VE, VM, VAO)
        else:
            for u in range(13):
                A(f"v_mov_b32 v{VE+u}, v{VE+u+1}")
        A(f"v_mfma_f32_16x16x32_bf16 {vr(VACC,4)}, {vr(VAO+4*(i&1),4)}, {vr(RING+4*i,4)}, {vr(VACC,4)}")
        A(f"s_waitcnt vmcnt({D-1})")
        ring_load(i)
    A("s_sub_u32 s34, s34, 1")
    A("s_cmp_lg_u32 s34, 0")
    A("s_cbranch_scc1 L_vloop")
    A(f"v_and_b32 v{VT}, 15, v2")
    A(f"v_lshrrev_b32 v{VT+1}, 4, v2")
    A(f"v_lshlrev_b32 v{VT}, 5, v{VT}")
    A(f"v_lshl_add_u32 v{VT}, v{VT+1}, 4, v{VT}")
    A("s_lshl_b32 s3, s28, 9")
    A(f"v_add3_u32 v{VT}, v{VT}, s3, v{VLB}")
    A("s_mov_b32 exec_hi, 0")
    A(f"ds_write_b128 v{VT}, {vr(VACC,4)} offset:{O_OP}")
    A("s_mov_b32 exec_hi, -1")
    A("s_waitcnt lgkmcnt(0)")
    stamp(5)
    A("s_barrier")
    A("s_branch L_fin")

    HC, HG, HLB = 4, 5, 6
    HVB, HVS = 7, 8
    HPM, HPR = 9, 10
    HOP = 11
    HGV, HXV, HOA = 12, 13, 14
    HT = 226
    HD = 16
    HA = 232
    HF = 64
    HF2 = 208
    SX, SWQ, SWO, SW1, SB1, SW2, SB2, SOUT, SDBG, SWS = 36, 40, 42, 44, 46, 48, 50, 52, 54, 56

    def srd(n, base, off_s, size):
        if off_s is None:
            A(f"s_mov_b32 s{n}, s{base}")
            A(f"s_mov_b32 s{n+1}, s{base+1}")
        else:
            A(f"s_add_u32 s{n}, s{base}, {off_s}")
            A(f"s_addc_u32 s{n+1}, s{base+1}, 0")
        A(f"s_mov_b32 s{n+2}, {size}")
        A(f"s_mov_b32 s{n+3}, 0x20000")

    Lb("L_helper")
    A(f"s_load_dwordx2 s[{SX}:{SX+1}], s[0:1], 0")
    A(f"s_load_dwordx4 s[{SWQ}:{SWQ+3}], s[0:1], 24")
    A(f"s_load_dwordx8 s[{SW1}:{SW1+7}], s[0:1], 48")
    A(f"s_load_dwordx4 s[{SOUT}:{SOUT+3}], s[0:1], 80")
    A(f"s_load_dwordx2 s[{SWS}:{SWS+1}], s[0:1], 96")
    if hprio:
        A(f"s_setprio {hprio}")
    A("s_sub_u32 s28, s28, 4")
    A("s_and_b32 s29, s2, 31")
    A("s_lshr_b32 s30, s2, 5")
    A("s_and_b32 s31, s2, 7")
    A("s_lshl_b32 s31, s31, 2")
    A("s_lshr_b32 s3, s29, 3")
    A("s_add_u32 s31, s31, s3")
    A(f"v_and_b32 v{HC}, 15, v2")
    A(f"v_lshrrev_b32 v{HG}, 4, v2")
    A(f"v_mov_b32 v{HLB}, {L_B}")
    for r in range(4):
        A(f"v_mov_b32 v{HD+r}, 0")
    A(f"v_subrev_u32 v{HT}, 256, v0")
    A(f"v_lshl_add_u32 v{HT+1}, v{HT}, 4, v{HLB}")
    A(f"ds_write_b128 v{HT+1}, {vr(HD,4)} offset:{O_OP}")
    A(f"v_lshl_add_u32 v{HT+1}, v{HC}, 2, v{HLB}")
    A(f"ds_write_b32 v{HT+1}, v{HD} offset:{O_CNT}")
    A(f"v_mul_u32_u24 v{HT}, 36, v{HT}")
    A("s_mov_b32 s58, 0x05040100")
    A("s_mov_b32 s59, 0x07060302")
    A("s_waitcnt lgkmcnt(0)")
    XR = 52
    srd(8, SX, None, 9216)
    A(f"buffer_load_dwordx4 {vr(XR,4)}, v{HT}, s[8:11], 0 offen")
    A(f"buffer_load_dwordx4 {vr(XR+4,4)}, v{HT}, s[8:11], 0 offen offset:16")
    A(f"buffer_load_dword v{XR+8}, v{HT}, s[8:11], 0 offen offset:32")
    A("s_cmp_eq_u32 s28, 0")
    A(f"s_cselect_b32 s12, s{SWQ}, s{SW1}")
    A(f"s_cselect_b32 s13, s{SWQ+1}, s{SW1+1}")
    A(f"s_mov_b32 s14, {576*9216}")
    A(f"s_cselect_b32 s14, {576*8192}, s14")
    A("s_mov_b32 s15, 0x20000")
    A("s_movk_i32 s32, 9216")
    A("s_cselect_b32 s32, 8192, s32")
    A("s_mul_i32 s33, s31, 288")
    A("s_lshl_b32 s3, s29, 8")
    A("s_cmp_eq_u32 s28, 0")
    A("s_cselect_b32 s33, s3, s33")
    A("s_mul_i32 s3, s32, 72")
    A("s_mul_i32 s3, s3, s30")
    A("s_add_u32 s33, s33, s3")
    A("s_mul_i32 s3, s32, 18")
    A(f"v_mul_lo_u32 v{HT+1}, s3, v{HG}")
    L1 = HF
    A("s_cmp_ge_u32 s28, 2")
    A("s_cbranch_scc1 L_h_ld_narrow")
    A(f"v_lshl_add_u32 v{HT+1}, v{HC}, 4, v{HT+1}")
    for e in range(18):
        A(f"buffer_load_dwordx4 {vr(L1+4*e,4)}, v{HT+1}, s[12:15], s33 offen {wpol}")
        A("s_add_u32 s33, s33, s32")
    A("s_barrier")
    A("s_waitcnt vmcnt(18)")
    A("s_branch L_h_ln")
    Lb("L_h_ld_narrow")
    A("s_cmp_eq_u32 s28, 3")
    A("s_cbranch_scc1 L_h_ld_none")
    A(f"v_lshl_add_u32 v{HT+1}, v{HC}, 1, v{HT+1}")
    for e in range(18):
        A(f"buffer_load_ushort v{L1+e}, v{HT+1}, s[12:15], s33 offen offset:256 {wpol}")
        A("s_add_u32 s33, s33, s32")
    A("s_barrier")
    A("s_waitcnt vmcnt(18)")
    A("s_branch L_h_ln")
    Lb("L_h_ld_none")
    A("s_barrier")
    A("s_waitcnt vmcnt(0)")

    Lb("L_h_ln")
    stamp(1)
    XF = HD
    SUM, T1, MEAN = 34, 35, 36
    for d in range(9):
        A(f"v_lshlrev_b32 v{XF+2*d}, 16, v{XR+d}")
        A(f"v_and_b32 v{XF+2*d+1}, 0xffff0000, v{XR+d}")
    A(f"v_add_f32 v{SUM}, v{XF}, v{XF+1}")
    for e in range(2, 18):
        A(f"v_add_f32 v{SUM}, v{SUM}, v{XF+e}")
    allreduce_row("v_add_f32", SUM)
    swap_reduce("v_add_f32", SUM, T1, 16)
    A(f"v_mul_f32 v{MEAN}, {f32(1/576)}, v{SUM}")
    A(f"v_mov_b32 v{SUM}, 0")
    for e in range(18):
        t = 38 + (e & 1)
        A(f"v_sub_f32 v{t}, v{XF+e}, v{MEAN}")
        A(f"v_fmac_f32 v{SUM}, v{t}, v{t}")
    allreduce_row("v_add_f32", SUM)
    swap_reduce("v_add_f32", SUM, T1, 16)
    A(f"v_mul_f32 v{SUM}, {f32(1/576)}, v{SUM}")
    bfround(MEAN, MEAN)
    bfround(SUM, SUM)
    A(f"v_add_f32 v{SUM}, {f32(1e-5)}, v{SUM}")
    bfround(SUM, SUM)
    A(f"v_sqrt_f32 v{SUM}, v{SUM}")
    A("s_nop 0")
    bfround(SUM, SUM)
    A(f"v_rcp_f32 v{SUM}, v{SUM}")
    for e in range(18):
        A(f"v_sub_f32 v{XF+e}, v{XF+e}, v{MEAN}")
    for d in range(9):
        A(f"v_cvt_pk_bf16_f32 v{XR+d}, v{XF+2*d}, v{XF+2*d+1}")
    for d in range(9):
        A(f"v_lshlrev_b32 v{XF+2*d}, 16, v{XR+d}")
        A(f"v_and_b32 v{XF+2*d+1}, 0xffff0000, v{XR+d}")
    for e in range(18):
        A(f"v_mul_f32 v{XF+e}, v{XF+e}, v{SUM}")
    for d in range(9):
        A(f"v_cvt_pk_bf16_f32 v{XR+d}, v{XF+2*d}, v{XF+2*d+1}")
    A(f"v_lshrrev_b32 v{HT}, 5, v2")
    A("s_lshl_b32 s3, s28, 1")
    A(f"v_add_u32 v{HT}, s3, v{HT}")
    A(f"v_and_b32 v{HT+1}, 3, v2")
    A(f"v_lshl_add_u32 v{HT}, v{HT}, 2, v{HT+1}")
    A(f"v_mul_u32_u24 v{HT}, 48, v{HT}")
    A(f"v_add_u32 v{HT}, v{HT}, v{HLB}")
    A(f"v_bfe_u32 v{HT+1}, v2, 2, 3")
    A(f"v_mov_b32 v{HT+2}, 1")
    A(f"v_cmp_eq_u32 vcc, s30, v{HT+1}")
    A("s_and_saveexec_b64 s[34:35], vcc")
    A(f"ds_write_b128 v{HT}, {vr(XR,4)} offset:{O_XN}")
    A(f"ds_write_b128 v{HT}, {vr(XR+4,4)} offset:{O_XN+16}")
    A(f"ds_write_b32 v{HT}, v{XR+8} offset:{O_XN+32}")
    A("s_mov_b64 exec, 1")
    A("s_waitcnt lgkmcnt(0)")
    A(f"ds_add_u32 v{HLB}, v{HT+2} offset:{O_CNT+C_LN}")
    A("s_mov_b64 exec, -1")
    A(f"v_mul_u32_u24 v{HVB}, {32*1152}, v{HG}")
    A("s_lshl_b32 s3, s28, 5")
    A(f"v_lshl_add_u32 v{HVS}, v{HC}, 1, v{HVB}")
    A(f"v_add_u32 v{HVS}, s3, v{HVS}")
    A(f"v_add_u32 v{HVS}, 1024, v{HVS}")
    A("s_lshl_b32 s3, s28, 8")
    A(f"v_lshl_add_u32 v{HVB}, v{HC}, 4, v{HVB}")
    A(f"v_add_u32 v{HVB}, s3, v{HVB}")
    A(f"v_lshlrev_b32 v{HPM}, 5, v{HC}")
    A(f"v_lshl_add_u32 v{HPM}, v{HG}, 4, v{HPM}")
    A("s_lshl_b32 s3, s28, 9")
    A(f"v_add_u32 v{HPM}, s3, v{HPM}")
    A(f"v_mov_b32 v{HT}, 0x10000000")
    A(f"v_cmp_gt_u32 vcc, 2, v{HG}")
    A("s_lshl_b32 s3, s28, 6")
    A("s_add_u32 s3, s3, 2048")
    A(f"v_cndmask_b32 v{HPM}, v{HT}, v{HPM}, vcc")
    A(f"v_lshl_add_u32 v{HPR}, v{HC}, 2, s3")
    A(f"v_cmp_eq_u32 vcc, 0, v{HG}")
    A(f"v_lshl_add_u32 v{HOP}, v2, 3, v{HLB}")
    A("s_mov_b32 s60, 0xffff0000")
    A(f"v_cndmask_b32 v{HPR}, v{HT}, v{HPR}, vcc")
    A("s_mov_b32 s61, 0xffff0000")
    A("s_cmp_eq_u32 s28, 3")
    A("s_cbranch_scc1 L_h_w2")

    A(f"s_mul_i32 s3, s29, {8*8*1152}")
    A(f"s_add_u32 s3, s3, {WS_P1}") if WS_P1 else None
    srd(16, SWS, "s3", 8 * 8 * 1152)
    A(f"v_and_b32 v{HT}, 7, v{HC}")
    A(f"v_lshl_add_u32 v{HT+1}, v{HT}, 2, v{HG}")
    A(f"v_mul_u32_u24 v{HT+1}, 48, v{HT+1}")
    A(f"v_add_u32 v{HT+1}, v{HT+1}, v{HLB}")
    A(f"v_mul_u32_u24 v{HT+3}, 9216, v{HT}")
    A(f"v_lshl_add_u32 v{HT+3}, v{HG}, 4, v{HT+3}")
    A("s_mul_i32 s33, s30, 1152")
    A("s_lshl_b32 s3, s28, 9")
    A("s_add_u32 s33, s33, s3")
    A(f"v_cmp_le_u32 s[34:35], 8, v{HC}")
    lds_spin("L_h_lnwait", HLB, O_CNT + C_LN, HT + 4, 4, sleep=0)
    A(f"ds_read_b128 {vr(XR,4)}, v{HT+1} offset:{O_XN}")
    A(f"ds_read_b128 {vr(XR+4,4)}, v{HT+1} offset:{O_XN+16}")
    A(f"ds_read_b32 v{XR+8}, v{HT+1} offset:{O_XN+32}")
    A(f"v_mov_b32 v{XR+9}, 0")
    stamp(2)
    A("s_cmp_eq_u32 s28, 2")
    A("s_cbranch_scc1 L_h_s1_narrow")
    W0 = HA
    for s in range(2):
        A(f"s_waitcnt vmcnt({10 - 8*s}) lgkmcnt(0)")
        for t in range(9):
            if t < 8:
                for r in range(4):
                    lo = L1 + 4 * (8 * s + 2 * r) + (t >> 1)
                    A(f"v_perm_b32 v{W0+4*(t&1)+r}, v{lo+4}, v{lo}, s{58+(t&1)}")
            else:
                A("s_nop 1")
            if t > 0:
                tt = t - 1
                c_in = "0" if s == 0 else vr(HD + 4 * tt, 4)
                A(f"v_mfma_f32_16x16x32_bf16 {vr(HD+4*tt,4)}, {vr(W0+4*(tt&1),4)}, {vr(XR+4*s,4)}, {c_in}")
    A("s_waitcnt vmcnt(0)")
    W2 = HA
    A("s_nop 1")
    for t in range(8):
        lo = L1 + 4 * 16 + (t >> 1)
        A(f"v_perm_b32 v{W2+2*t}, v{lo+4}, v{lo}, s{58+(t&1)}")
        A(f"v_mov_b32 v{W2+2*t+1}, 0")
    A("s_nop 1")
    for t in range(8):
        A(f"v_mfma_f32_16x16x16_bf16 {vr(HD+4*t,4)}, {vr(W2+2*t,2)}, {vr(XR+8,2)}, {vr(HD+4*t,4)}")
    A(f"v_lshrrev_b32 v{HT+4}, 3, v{HC}")
    A(f"v_lshl_add_u32 v{HT+3}, v{HT+4}, 6, v{HT+3}")
    A("s_nop 7")
    for tt in range(0, 8, 2):
        for r in range(4):
            A(f"v_cndmask_b32 v{HD+4*tt+r}, v{HD+4*tt+r}, v{HD+4*tt+4+r}, s[34:35]")
        A(f"buffer_store_dwordx4 {vr(HD+4*tt,4)}, v{HT+3}, s[16:19], s33 offen offset:{tt*64} {stpol}")
    A("s_branch L_h_s1_done")
    Lb("L_h_s1_narrow")
    A("s_waitcnt vmcnt(0) lgkmcnt(0)")
    for d in range(9):
        A(f"v_lshl_or_b32 v{HA+d}, v{L1+2*d+1}, 16, v{L1+2*d}")
    A(f"v_mov_b32 v{HA+9}, 0")
    A(f"v_mov_b32 v{HT+4}, 0x10000000")
    A(f"v_cndmask_b32 v{HT+3}, v{HT+3}, v{HT+4}, s[34:35]")
    A(f"v_mfma_f32_16x16x32_bf16 {vr(HD,4)}, {vr(HA,4)}, {vr(XR,4)}, 0")
    A(f"v_mfma_f32_16x16x32_bf16 {vr(HD,4)}, {vr(HA+4,4)}, {vr(XR+4,4)}, {vr(HD,4)}")
    A("s_nop 7")
    A(f"v_mfma_f32_16x16x16_bf16 {vr(HD,4)}, {vr(HA+8,2)}, {vr(XR+8,2)}, {vr(HD,4)}")
    A("s_nop 7")
    A(f"buffer_store_dwordx4 {vr(HD,4)}, v{HT+3}, s[16:19], s33 offen {stpol}")
    Lb("L_h_s1_done")
    stamp(3)
    A("s_and_b32 s3, s29, 1")
    A("s_lshl_b32 s3, s3, 7")
    A("s_lshr_b32 s33, s29, 1")
    A("s_lshl_b32 s33, s33, 2")
    A("s_add_u32 s3, s3, s33")
    A(f"v_mov_b32 v{HT}, s3")
    A("s_mov_b64 exec, 1")
    A("s_waitcnt vmcnt(0)")
    A(f"ds_add_rtn_u32 v{HT+4}, v{HLB}, v{HT+2} offset:{O_CNT+C_S1}")
    A("s_waitcnt lgkmcnt(0)")
    A(f"v_readfirstlane_b32 s3, v{HT+4}")
    A("s_cmp_lg_u32 s3, 2")
    A("s_cbranch_scc1 L_h_s1_nosig")
    A(f"global_atomic_add v{HT}, v{HT+2}, s[{SDBG}:{SDBG+1}]")
    Lb("L_h_s1_nosig")
    A("s_mov_b64 exec, -1")
    stamp(4)
    A("s_cmp_lg_u32 s28, 0")
    A("s_cbranch_scc1 L_h_w2")

    GB = 52
    A(f"v_and_b32 v{HT+4}, 3, v2")
    A(f"v_bfe_u32 v{HT+5}, v2, 2, 3")
    A(f"v_lshl_add_u32 v{HT+4}, v{HT+4}, 5, v{HT+5}")
    A("s_mul_i32 s33, s31, 288")
    srd(12, SB1, "s33", 288)
    A(f"v_lshlrev_b32 v{HT+5}, 1, v{HT+4}")
    for r in range(4):
        A(f"buffer_load_ushort v{GB+r}, v{HT+5}, s[12:15], 0 offen offset:{16*r}")
    A(f"v_lshlrev_b32 v{HT+6}, 1, v{HC}")
    A(f"buffer_load_ushort v{GB+4}, v{HT+6}, s[12:15], 0 offen offset:256")
    A(f"v_lshlrev_b32 v{HT+7}, 4, v2")
    A(f"v_lshlrev_b32 v{HT+8}, 2, v{HC}")
    A("s_mul_i32 s33, s30, 9216")
    for _ in range(sleep0):
        A("s_sleep 32")
    Lb("L_h_gpoll")
    A(f"global_load_dword v{HT+9}, v{HT}, s[{SDBG}:{SDBG+1}] sc1")
    A("s_waitcnt vmcnt(0)")
    A(f"v_readfirstlane_b32 s3, v{HT+9}")
    A("s_cmp_ge_u32 s3, 8")
    A("s_cbranch_scc1 L_h_gpoll_ok")
    if fakepoll:
        A("s_branch L_h_gpoll_ok")
    if sleep1:
        A(f"s_sleep {sleep1}")
    A("s_sub_u32 s69, s69, 16")
    A("s_cbranch_scc0 L_h_gpoll")
    A("s_mov_b32 s69, 0")
    Lb("L_h_gpoll_ok")
    stamp(5)
    GL = HF
    for p in range(8):
        A(f"buffer_load_dwordx4 {vr(GL+4*p,4)}, v{HT+7}, s[16:19], s33 offen {ldpol}")
        A(f"buffer_load_dword v{GL+32+p}, v{HT+8}, s[16:19], s33 offen offset:1024 {ldpol}")
        A("s_add_u32 s33, s33, 1152")
    A(f"v_add_u32 v{HT+5}, v{HT+5}, v{HLB}")
    A(f"v_lshl_add_u32 v{HT+4}, v{HT+4}, 2, v{HLB}")
    A(f"v_add_u32 v{HT+6}, v{HT+6}, v{HLB}")
    for p in range(1, 8):
        A(f"s_waitcnt vmcnt({14-2*p})")
        for r in range(4):
            A(f"v_add_f32 v{GL+r}, v{GL+r}, v{GL+4*p+r}")
        A(f"v_add_f32 v{GL+32}, v{GL+32}, v{GL+32+p}")
    A(f"v_mov_b32 v{GL+4}, v{GL+32}")
    for r in range(5):
        A(f"v_cvt_pk_bf16_f32 v{GL+r}, v{GL+r}, v{GL+r}")
    A("s_mov_b32 exec_hi, 0")
    for r in range(4):
        A(f"ds_write_b16 v{HT+5}, v{GL+r} offset:{O_Q+16*r}")
    A("s_waitcnt lgkmcnt(0)")
    A(f"ds_write_b32 v{HLB}, v{HT+2} offset:{O_CNT+C_Q}")
    A("s_mov_b32 exec_hi, -1")
    stamp(6)
    c1 = -2.0 * LOG2E * 0.7978845608028654
    for r in range(5):
        A(f"v_and_b32 v{GL+r}, 0xffff0000, v{GL+r}")
        A(f"v_lshlrev_b32 v{GB+r}, 16, v{GB+r}")
        A(f"v_add_f32 v{GL+r}, v{GL+r}, v{GB+r}")
        bfround(GL + r, GL + r)
        A(f"v_mul_f32 v{GB+r}, v{GL+r}, v{GL+r}")
        A(f"v_mov_b32 v{GL+8}, {f32(c1)}")
        A(f"v_fmac_f32 v{GL+8}, {f32(c1*0.044715)}, v{GB+r}")
        A(f"v_mul_f32 v{GB+r}, v{GL+8}, v{GL+r}")
        A(f"v_exp_f32 v{GB+r}, v{GB+r}")
        A("s_nop 0")
        A(f"v_add_f32 v{GB+r}, 1.0, v{GB+r}")
        A(f"v_rcp_f32 v{GB+r}, v{GB+r}")
        A("s_nop 0")
        A(f"v_mul_f32 v{GL+r}, v{GL+r}, v{GB+r}")
        bfround(GL + r, GL + r)
    A("s_mov_b32 exec_lo, 0")
    for r in range(4):
        A(f"ds_write_b32 v{HT+4}, v{GL+r} offset:{O_OP+32*r}")
    A(f"ds_write_b16_d16_hi v{HT+6}, v{GL+4} offset:{O_HR}")
    A("s_waitcnt lgkmcnt(0)")
    A(f"ds_write_b32 v{HLB}, v{HT+2} offset:{O_CNT+C_H}")
    A("s_mov_b32 exec_lo, -1")

    Lb("L_h_w2")
    if hprio:
        A("s_setprio 0")
    A(f"s_mul_i32 s3, s31, {144*1152}")
    srd(20, SW2, "s3", 144 * 1152)
    ST = HD
    A(f"v_mul_u32_u24 v{HT}, {28*1152}, v{HG}")
    A(f"v_sub_u32 v{HT+1}, v{HVS}, v{HT}")
    A(f"v_sub_u32 v{HT}, v{HVB}, v{HT}")
    A(f"s_mov_b32 s33, {128*1152}")
    for e in range(4):
        A(f"buffer_load_dwordx4 {vr(ST+4*e,4)}, v{HT}, s[20:23], s33 offen offset:{e*1152} {wpol}")
        A(f"buffer_load_ushort v{ST+16+e}, v{HT+1}, s[20:23], s33 offen offset:{e*1152} {wpol}")
    A("s_waitcnt vmcnt(0)")
    for r in range(2):
        for t in range(8):
            lo = ST + 8 * r + (t >> 1)
            A(f"v_perm_b32 v{HF2+2*t+r}, v{lo+4}, v{lo}, s{58+(t&1)}")
        A(f"v_lshl_or_b32 v{HF2+16+r}, v{ST+17+2*r}, 16, v{ST+16+2*r}")
    A("s_call_b64 s[62:63], L_sub_load")
    stamp(7)
    lds_spin("L_h_hwait", HLB, O_CNT + C_H, HT, 1)
    A(f"v_lshl_add_u32 v{HT}, v{HG}, 3, v{HLB}")
    A(f"ds_read_b64 {vr(HT+2,2)}, v{HT} offset:{O_HR}")
    A(f"s_mul_i32 s3, s2, 2304")
    A(f"s_add_u32 s3, s3, {WS_G}")
    srd(24, SWS, "s3", 2304)
    A("s_waitcnt lgkmcnt(0)")
    for t in range(9):
        A(f"v_mfma_f32_16x16x16_bf16 {vr(HD+4*t,4)}, {vr(HT+2,2)}, {vr(HF2+2*t,2)}, 0")
    A("s_call_b64 s[62:63], L_sub_gemv")
    A(f"s_add_u32 s24, s24, {WS_Y-WS_G}")
    A("s_addc_u32 s25, s25, 0")
    for r in range(4):
        A(f"v_mov_b32 v{HT+2+r}, -1")
    A(f"buffer_store_dwordx4 {vr(HT+2,4)}, v{HPM}, s[24:27], 0 offen {stpol}")
    A(f"buffer_store_dword v{HT+2}, v{HPR}, s[24:27], 0 offen {stpol}")
    A("s_lshl_b32 s3, s30, 2")
    A("s_add_u32 s3, s3, 64")
    A(f"v_mov_b32 v15, s3")
    A(f"v_mov_b32 v{HT}, 1")
    A("s_mov_b64 exec, 1")
    A("s_waitcnt vmcnt(0)")
    A(f"ds_add_rtn_u32 v{HT+1}, v{HLB}, v{HT} offset:{O_CNT+C_S2}")
    A("s_waitcnt lgkmcnt(0)")
    A(f"v_readfirstlane_b32 s3, v{HT+1}")
    A("s_cmp_lg_u32 s3, 3")
    A("s_cbranch_scc1 L_h_s2_nosig")
    A(f"global_atomic_add v15, v{HT}, s[{SDBG}:{SDBG+1}]")
    Lb("L_h_s2_nosig")
    A("s_mov_b64 exec, -1")
    stamp(8)
    A(f"s_mul_i32 s3, s29, {128*1152}")
    srd(20, SWO, "s3", 128 * 1152)
    A("s_call_b64 s[62:63], L_sub_load")
    stamp(9)
    PM, PAO, PACC, PE, PV_ = 208, 212, 220, 224, 16
    pv_masks(PM, HC, HT)
    for r in range(4):
        A(f"v_mov_b32 v{PACC+r}, 0")
    A("s_barrier")
    A("s_lshl_b32 s3, s28, 3")
    A(f"v_add_u32 v{HT}, s3, v{HLB}")
    A(f"ds_read_b32 v{HT+1}, v{HT} offset:{O_ST}")
    A("s_lshl_b32 s3, s28, 9")
    A(f"v_lshl_add_u32 v{HT}, v2, 2, v{HLB}")
    A(f"v_add_u32 v{HT}, s3, v{HT}")
    A(f"ds_read_b32 v{PE}, v{HT} offset:{O_E}")
    A(f"ds_read_b32 v{PE+1}, v{HT} offset:{O_E+256}")
    softmax_factor(HLB, HA, HT, HT + 1)
    for u in range(2):
        A(f"v_mul_f32 v{PE+u}, v{PE+u}, v{HT}")
        A(f"v_cvt_pk_bf16_f32 v{PE+u}, v{PE+u}, v{PE+u}")
    A("s_lshl_b32 s3, s28, 15")
    A(f"v_lshl_add_u32 v{HT}, v2, 4, s3")
    A("s_mov_b32 s34, 2")
    Lb("L_h_pv")
    for half in range(2):
        for i in range(8):
            A(f"ds_read_b128 {vr(PV_+4*i,4)}, v{HT} offset:{(8*half+i)*1024}")
        for i in range(8):
            build_a(8 * half + i, PE, PM, PAO)
            A(f"s_waitcnt lgkmcnt({7-i})")
            A("s_nop 0")
            A(f"v_mfma_f32_16x16x32_bf16 {vr(PACC,4)}, {vr(PAO+4*(i&1),4)}, {vr(PV_+4*i,4)}, {vr(PACC,4)}")
    A(f"v_mov_b32 v{PE}, v{PE+1}")
    A(f"v_add_u32 v{HT}, 16384, v{HT}")
    A("s_sub_u32 s34, s34, 1")
    A("s_cmp_lg_u32 s34, 0")
    A("s_cbranch_scc1 L_h_pv")
    A(f"v_lshlrev_b32 v{HT}, 5, v{HC}")
    A(f"v_lshl_add_u32 v{HT}, v{HG}, 4, v{HT}")
    A("s_lshl_b32 s3, s28, 9")
    A(f"v_add3_u32 v{HT}, v{HT}, s3, v{HLB}")
    A("s_mov_b32 exec_hi, 0")
    A(f"ds_write_b128 v{HT}, {vr(PACC,4)} offset:{O_OP+2048}")
    A("s_mov_b32 exec_hi, -1")
    stamp(10)
    A("s_cmp_eq_u32 s28, 3")
    A("s_cselect_b32 s64, 1, 0")
    A("s_cmp_lt_u32 s29, 18")
    A("s_cselect_b32 s64, s64, 0")
    GA, GS = 208, 224
    A(f"s_mul_i32 s3, s30, {32*2304}")
    A(f"s_add_u32 s3, s3, {WS_G}")
    srd(12, SWS, "s3", 32 * 2304)
    A(f"v_lshrrev_b32 v{HT}, 3, v2")
    A(f"v_mul_u32_u24 v{HT}, 2304, v{HT}")
    A(f"v_and_b32 v{HT+1}, 7, v2")
    A(f"v_lshl_add_u32 v{HT}, v{HT+1}, 4, v{HT}")
    A("s_lshl_b32 s3, s29, 7")
    A(f"v_add_u32 v{GS}, s3, v{HT}")
    A(f"s_mov_b32 s65, {8*2304}")
    A(f"s_mov_b32 s66, {16*2304}")
    A(f"s_mov_b32 s67, {24*2304}")
    A(f"v_bfe_u32 v{HT+2}, v2, 4, 1")
    A(f"v_lshrrev_b32 v{HT+3}, 5, v2")
    A(f"v_lshl_add_u32 v{HT+2}, v{HT+2}, 1, v{HT+3}")
    A(f"v_lshl_add_u32 v{HT+2}, v{HT+1}, 2, v{HT+2}")
    A("s_lshl_b32 s3, s29, 5")
    A(f"v_add_lshl_u32 v{HOA}, v{HT+2}, s3, 1")
    A("s_mul_i32 s68, s30, 1152")
    srd(16, SOUT, None, 9216)
    A("s_cmp_eq_u32 s64, 0")
    A("s_cbranch_scc1 L_h_tail")
    srd(20, SB2, None, 1152)
    A(f"buffer_load_ushort v{HXV}, v{HOA}, s[8:11], s68 offen")
    A(f"buffer_load_ushort v{HGV}, v{HOA}, s[20:23], 0 offen")
    Lb("L_h_bpoll")
    A(f"global_load_dword v{HT}, v15, s[{SDBG}:{SDBG+1}] sc1")
    A("s_waitcnt vmcnt(0)")
    A(f"v_readfirstlane_b32 s3, v{HT}")
    A("s_cmp_ge_u32 s3, 32")
    A("s_cbranch_scc1 L_h_bpoll_ok")
    A("s_sub_u32 s69, s69, 16")
    A("s_cbranch_scc0 L_h_bpoll")
    A("s_mov_b32 s69, 0")
    Lb("L_h_bpoll_ok")
    A("s_call_b64 s[62:63], L_sub_gather")
    A(f"v_lshlrev_b32 v{HXV}, 16, v{HXV}")
    A(f"v_lshlrev_b32 v{HGV}, 16, v{HGV}")
    A(f"v_add_f32 v{HGV}, v{HGV}, v{HT}")
    bfround(HGV, HGV)
    A(f"v_mul_f32 v{HT}, {f32(-LOG2E)}, v{HGV}")
    A(f"v_exp_f32 v{HT}, v{HT}")
    A("s_nop 0")
    A(f"v_add_f32 v{HT}, 1.0, v{HT}")
    A(f"v_rcp_f32 v{HT}, v{HT}")
    A("s_nop 0")
    A(f"v_mul_f32 v{HGV}, v{HGV}, v{HT}")
    bfround(HGV, HGV)
    A(f"s_add_u32 s12, s12, {WS_Y-WS_G}")
    A("s_addc_u32 s13, s13, 0")
    A(f"v_mov_b32 v{HT}, 0x10000000")
    A(f"v_and_b32 v{HT+1}, 8, v2")
    A(f"v_cmp_eq_u32 vcc, 0, v{HT+1}")
    A("s_nop 1")
    A(f"v_cndmask_b32 v{HOA}, v{HT}, v{HOA}, vcc")
    Lb("L_h_tail")
    for r in range(36):
        A(f"v_mov_b32 v{HD+r}, 0")
    stamp(11)
    A("s_waitcnt lgkmcnt(0)")
    A("s_barrier")
    stamp(12)
    A("s_call_b64 s[62:63], L_sub_gemv")
    stamp(13)
    A("s_cmp_eq_u32 s64, 0")
    A("s_cbranch_scc1 L_fin")
    A("s_call_b64 s[62:63], L_sub_gather")
    A(f"v_mul_f32 v{HT}, v{HT}, v{HGV}")
    bfround(HT, HT)
    A(f"v_add_f32 v{HT}, v{HT}, v{HXV}")
    A(f"v_cvt_pk_bf16_f32 v{HT}, v{HT}, v{HT}")
    A(f"buffer_store_short v{HT}, v{HOA}, s[16:19], s68 offen")
    stamp(14)

    Lb("L_fin")
    if stamps:
        A("s_waitcnt vmcnt(0)")
        stamp(15)
        A("s_getreg_b32 s70, hwreg(HW_REG_XCC_ID)")
        A(f"v_writelane_b32 v{VST}, s70, 16")
        A(f"s_add_u32 s72, s72, {WS_STAMP}")
        A("s_addc_u32 s73, s73, 0")
        A("s_lshl_b32 s3, s2, 11")
        A("v_lshlrev_b32 v0, 2, v0")
        A("v_add_u32 v0, s3, v0")
        A(f"global_store_dword v0, v{VST}, s[72:73]")
    Lb("L_end")
    A("s_endpgm")

    Lb("L_sub_load")
    ST = HD

    def issue_pair(n):
        sl = ST + 10 * (n & 1)
        A(f"s_mov_b32 s33, {2*n*1152}")
        A(f"buffer_load_dwordx4 {vr(sl,4)}, v{HVB}, s[20:23], s33 offen {wpol}")
        A(f"buffer_load_dwordx4 {vr(sl+4,4)}, v{HVB}, s[20:23], s33 offen offset:1152 {wpol}")
        if not nonarrow:
            A(f"buffer_load_ushort v{sl+8}, v{HVS}, s[20:23], s33 offen {wpol}")
            A(f"buffer_load_ushort v{sl+9}, v{HVS}, s[20:23], s33 offen offset:1152 {wpol}")

    issue_pair(0)
    issue_pair(1)
    for n in range(16):
        s, r = n >> 2, n & 3
        sl = ST + 10 * (n & 1)
        A(f"s_waitcnt vmcnt({(2 if nonarrow else 4) if n < 15 else 0})")
        for t in range(8):
            A(f"v_perm_b32 v{HF+36*s+4*t+r}, v{sl+4+(t>>1)}, v{sl+(t>>1)}, s{58+(t&1)}")
        A(f"v_lshl_or_b32 v{HF+36*s+32+r}, v{sl+9}, 16, v{sl+8}")
        if n + 2 < 16:
            issue_pair(n + 2)
    A("s_setpc_b64 s[62:63]")

    Lb("L_sub_gemv")
    OR = 208
    for k in range(8):
        A(f"ds_read_b64 {vr(OR+2*k,2)}, v{HOP} offset:{O_OP+512*k}")
    for k in range(1, 8):
        A(f"s_waitcnt lgkmcnt({7-k})")
        A(f"v_add_f32 v{OR}, v{OR}, v{OR+2*k}")
        A(f"v_add_f32 v{OR+1}, v{OR+1}, v{OR+2*k+1}")
    A(f"v_cvt_pk_bf16_f32 v{OR}, v{OR}, v{OR+1}")
    A("s_nop 1")
    bc = [f"v_mov_b32_dpp v{HA+n}, v{OR} row_newbcast:{n} {DPP_ALL}" for n in range(16)]
    for n in range(6):
        A(bc.pop(0))
    for s in range(4):
        order = range(9) if s < 3 else (8, 0, 4, 1, 5, 2, 6, 3, 7)
        for t in order:
            A(f"v_mfma_f32_16x16x32_bf16 {vr(HD+4*t,4)}, {vr(HA+4*s,4)}, {vr(HF+36*s+4*t,4)}, {vr(HD+4*t,4)}")
            if bc:
                A(bc.pop(0))
    A(f"buffer_store_dword v{HD+32}, v{HPR}, s[24:27], 0 offen {stpol}")
    A("s_nop 4")
    for r in range(4):
        A(f"v_cndmask_b32 v{OR+4+r}, v{HD+4*r}, v{HD+16+4*r}, s[60:61]")
    A(f"buffer_store_dwordx4 {vr(OR+4,4)}, v{HPM}, s[24:27], 0 offen {stpol}")
    A("s_setpc_b64 s[62:63]")

    Lb("L_sub_gather")
    A(f"buffer_load_dwordx4 {vr(GA,4)}, v{GS}, s[12:15], 0 offen {ldpol}")
    for k in range(1, 4):
        A(f"buffer_load_dwordx4 {vr(GA+4*k,4)}, v{GS}, s[12:15], s{64+k} offen {ldpol}")
    A("s_waitcnt vmcnt(0)")
    A(f"v_max3_u32 v{HT}, v{GA}, v{GA+1}, v{GA+2}")
    for n in range(3, 15, 2):
        A(f"v_max3_u32 v{HT}, v{HT}, v{GA+n}, v{GA+n+1}")
    A(f"v_max_u32 v{HT}, v{HT}, v{GA+15}")
    A(f"v_cmp_eq_u32 vcc, -1, v{HT}")
    for r in range(4):
        A(f"v_add_f32 v{GA+r}, v{GA+r}, v{GA+4+r}")
    for r in range(4):
        A(f"v_add_f32 v{GA+8+r}, v{GA+8+r}, v{GA+12+r}")
    A("s_cbranch_vccnz L_sub_gather_again")
    Lb("L_sub_gather_ok")
    for r in range(4):
        A(f"v_add_f32 v{GA+r}, v{GA+r}, v{GA+8+r}")
    A("s_nop 0")
    A(f"v_permlane32_swap_b32 v{GA}, v{GA+1}")
    A(f"v_permlane32_swap_b32 v{GA+2}, v{GA+3}")
    A("s_nop 0")
    A(f"v_add_f32 v{GA}, v{GA}, v{GA+1}")
    A(f"v_add_f32 v{GA+2}, v{GA+2}, v{GA+3}")
    A("s_nop 1")
    A(f"v_permlane16_swap_b32 v{GA}, v{GA+2}")
    A("s_nop 1")
    A(f"v_add_f32 v{GA}, v{GA}, v{GA+2}")
    A("s_nop 1")
    A(f"v_add_f32_dpp v{HT}, v{GA}, v{GA} row_ror:8 {DPP_ALL}")
    bfround(HT, HT)
    A("s_setpc_b64 s[62:63]")
    Lb("L_sub_gather_again")
    A("s_sub_u32 s69, s69, 16")
    A("s_cbranch_scc0 L_sub_gather")
    A("s_mov_b32 s69, 0")
    A("s_branch L_sub_gather_ok")

    o.append('.section .rodata,"a"')
    o.append(".p2align 6")
    o.append(f".amdhsa_kernel {NAME}_kernel")
    o.append("  .amdhsa_next_free_vgpr 256")
    o.append("  .amdhsa_next_free_sgpr 80")
    o.append("  .amdhsa_accum_offset 256")
    o.append("  .amdhsa_group_segment_fixed_size 0")
    o.append("  .amdhsa_kernarg_size 104")
    o.append("  .amdhsa_user_sgpr_count 2")
    o.append("  .amdhsa_user_sgpr_kernarg_segment_ptr 1")
    o.append("  .amdhsa_system_sgpr_workgroup_id_x 1")
    o.append("  .amdhsa_float_denorm_mode_32 3")
    o.append(".end_amdhsa_kernel")
    return "\n".join(o) + "\n"


if __name__ == "__main__":
    cfg = json.loads(sys.argv[2]) if len(sys.argv) > 2 else {}
    open(sys.argv[1], "w").write(gen(**cfg))
```

```python
import struct, sys, json

NAME = "recurrent_scan__mha_block_cached__dense_activation_gelu__decode"
HEADER = open("header.txt").read()

WS_P1 = 0x000000
WS_G = 0x300000
WS_Y = 0x400000
WS_STAMP = 0x20000000

L_V = 0x00000
L_B = 0x20000
O_OP = 0x0000
O_E = 0x1000
O_ST = 0x1800
O_CNT = 0x1840
O_Q = 0x1880
O_HR = 0x1980
O_XN = 0x19C0
LDS_BYTES = L_B + 0x2000
C_LN, C_S1, C_Q, C_H, C_S2 = 0, 4, 8, 12, 16

SENT = 0xFFFFFFFF
LOG2E = 1.4426950408889634


def f32(x):
    return "0x%08x" % struct.unpack("<I", struct.pack("<f", x))[0]


def vr(a, n=1):
    return f"v{a}" if n == 1 else f"v[{a}:{a+n-1}]"


DPP_ALL = "row_mask:0xf bank_mask:0xf"


def cl(i):
    return ((i & 1) << 3) | (((i >> 1) & 1) << 2) | (i >> 2)


def gen(D=6, stag_shift=15, stamps=False, hprio=0, nonarrow=False, sleep0=0, sleep1=0, fakepoll=False, kvpol="nt", wpol="nt", stpol="sc1", ldpol="sc1", fixdur=0):
    o = []
    A = lambda s: o.append("  " + s)
    Lb = lambda s: o.append(s + ":")

    VST = 255

    def stamp(i):
        if stamps:
            A("s_memrealtime s[70:71]")
            A("s_waitcnt lgkmcnt(0)")
            A(f"v_writelane_b32 v{VST}, s70, {i}")

    def bfround(dst, src):
        A(f"v_cvt_pk_bf16_f32 v{dst}, v{src}, v{src}")
        A(f"v_and_b32 v{dst}, 0xffff0000, v{dst}")

    def allreduce_row(op, v):
        for sh in (8, 4, 2, 1):
            A("s_nop 1")
            A(f"{op}_dpp v{v}, v{v}, v{v} row_ror:{sh} {DPP_ALL}")

    def swap_reduce(op, v, t, which):
        A(f"v_mov_b32 v{t}, v{v}")
        A("s_nop 1")
        A(f"v_permlane{which}_swap_b32 v{t}, v{v}")
        A("s_nop 1")
        A(f"{op} v{v}, v{v}, v{t}")

    def lds_spin(label, vaddr, off, vtmp, target, sleep=1):
        Lb(label)
        A(f"ds_read_b32 v{vtmp}, v{vaddr} offset:{off}")
        A("s_waitcnt lgkmcnt(0)")
        A(f"v_readfirstlane_b32 s3, v{vtmp}")
        A(f"s_cmp_ge_u32 s3, {target}")
        A(f"s_cbranch_scc1 {label}_ok")
        if sleep:
            A(f"s_sleep {sleep}")
        A("s_sub_u32 s69, s69, 1")
        A(f"s_cbranch_scc0 {label}")
        A("s_mov_b32 s69, 0")
        Lb(label + "_ok")

    def pv_masks(vm, vc, t0):
        A(f"v_and_b32 v{t0}, 1, v{vc}")
        A(f"v_lshlrev_b32 v{t0}, 4, v{t0}")
        A(f"v_mov_b32 v{t0+1}, 0xffff")
        A(f"v_lshlrev_b32 v{t0}, v{t0}, v{t0+1}")
        A(f"v_lshrrev_b32 v{t0+1}, 1, v{vc}")
        for r in range(4):
            A(f"v_cmp_eq_u32 vcc, {r}, v{t0+1}")
            A("s_nop 1")
            A(f"v_cndmask_b32 v{vm+r}, 0, v{t0}, vcc")

    def softmax_factor(vbase, vst, vf, vown):
        A(f"ds_read_b128 {vr(vst,4)}, v{vbase} offset:{O_ST}")
        A(f"ds_read_b128 {vr(vst+4,4)}, v{vbase} offset:{O_ST+16}")
        A("s_waitcnt lgkmcnt(0)")
        m, t = vst + 8, vst + 9
        A(f"v_max3_f32 v{m}, v{vst}, v{vst+2}, v{vst+4}")
        A(f"v_max_f32 v{m}, v{m}, v{vst+6}")
        for k in range(4):
            A(f"v_sub_f32 v{vst+2*k}, v{vst+2*k}, v{m}")
        A(f"v_sub_f32 v{t}, v{vown}, v{m}")
        for k in range(4):
            A(f"v_mul_f32 v{vst+2*k}, {f32(LOG2E)}, v{vst+2*k}")
        A(f"v_mul_f32 v{t}, {f32(LOG2E)}, v{t}")
        for k in range(4):
            A(f"v_exp_f32 v{vst+2*k}, v{vst+2*k}")
        A(f"v_exp_f32 v{t}, v{t}")
        A(f"v_mul_f32 v{m}, v{vst}, v{vst+1}")
        for k in range(1, 4):
            A(f"v_fmac_f32 v{m}, v{vst+2*k}, v{vst+2*k+1}")
        A(f"v_rcp_f32 v{m}, v{m}")
        A("s_nop 0")
        A(f"v_mul_f32 v{vf}, v{t}, v{m}")

    o.append(HEADER.rstrip())
    o.append(f"; @launch grid=(256,1,1) block=(512,1,1) lds={LDS_BYTES}")
    o.append('.amdgcn_target "amdgcn-amd-amdhsa--gfx950"')
    o.append(".text")
    o.append(f".globl {NAME}_kernel")
    o.append(".p2align 8")
    o.append(f".type {NAME}_kernel,@function")
    Lb(f"{NAME}_kernel")
    A("s_cmp_ge_u32 s2, 256")
    A("s_cbranch_scc1 L_end")
    if fixdur:
        A("s_memrealtime s[74:75]")
    A("s_load_dwordx4 s[4:7], s[0:1], 8")
    if stamps:
        A("s_load_dwordx2 s[72:73], s[0:1], 96")
        A(f"v_mov_b32 v{VST}, 0")
    A("v_lshrrev_b32 v1, 6, v0")
    A("v_and_b32 v2, 63, v0")
    A("v_readfirstlane_b32 s28, v1")
    A("s_mov_b32 s69, 0x200000")
    stamp(0)
    A("s_cmp_ge_u32 s28, 4")
    A("s_cbranch_scc1 L_helper")

    RING = 64
    VQ, VP, VA0, VA1, VB, VC, VS, VMAX = 4, 8, 10, 11, 12, 13, 14, 15
    VE, VM, VAO, VACC, VT, VLB = 16, 32, 36, 44, 48, 60
    A("v_lshlrev_b32 v3, 4, v2")
    A("s_lshl_b32 s3, s28, 12")
    A("v_add_u32 v3, s3, v3")
    A(f"s_lshl_b32 s29, s2, {stag_shift}")
    A("s_lshl_b32 s3, s2, 20")
    A("s_mov_b32 s18, 0x100000")
    A("s_mov_b32 s19, 0x20000")

    def tile_offsets():
        for k in range(4):
            A(f"s_add_u32 s{36+k}, s29, {k*16384}")
            A(f"s_and_b32 s{36+k}, s{36+k}, 0xfffff")

    def ring_load(i):
        A(f"buffer_load_dwordx4 {vr(RING+4*i,4)}, v3, s[16:19], s{36+i//4} offen offset:{(i%4)*1024} {kvpol}")

    tile_offsets()
    A("s_waitcnt lgkmcnt(0)")
    A("s_add_u32 s16, s4, s3")
    A("s_addc_u32 s17, s5, 0")
    for i in range(D):
        ring_load(i)
    A("s_add_u32 s12, s6, s3")
    A("s_addc_u32 s13, s7, 0")
    A("s_mov_b32 s14, 0x100000")
    A("s_mov_b32 s15, 0x20000")
    A("s_barrier")
    for i in range(D, 16):
        A(f"s_waitcnt vmcnt({D-1})")
        ring_load(i)
    A(f"s_add_u32 s35, s29, {56*16384}")
    A("s_lshl_b32 s33, s28, 15")
    A("s_mov_b32 s34, 8")
    Lb("L_vdma")
    A("s_and_b32 s36, s35, 0xfffff")
    A("s_mov_b32 m0, s33")
    for j in range(4):
        A(f"s_waitcnt vmcnt({D-1})")
        A(f"buffer_load_dwordx4 v3, s[12:15], s36 offen offset:{j*1024} {kvpol} lds")
    A("s_add_u32 s35, s35, 16384")
    A("s_add_u32 s33, s33, 4096")
    A("s_sub_u32 s34, s34, 1")
    A("s_cmp_lg_u32 s34, 0")
    A("s_cbranch_scc1 L_vdma")
    stamp(1)
    A(f"v_mov_b32 v{VLB}, {L_B}")
    A(f"v_and_b32 v{VT+2}, 15, v2")
    pv_masks(VM, VT + 2, VT)
    for k in (1, 2, 3):
        A(f"s_mov_b32 s{38+2*k}, 0x{(0x11111111 << k) & 0xffffffff:08x}")
        A(f"s_mov_b32 s{39+2*k}, 0x{(0x11111111 << k) & 0xffffffff:08x}")
    A(f"v_mov_b32 v{VMAX}, 0xff800000")
    for r in range(4):
        A(f"v_mov_b32 v{VACC+r}, 0")
    A(f"v_lshl_add_u32 v{VT+3}, v{VT+2}, 4, v{VLB}")
    lds_spin("L_qwait", VLB, O_CNT + C_Q, VT, 1)
    A(f"ds_read_b128 {vr(VQ,4)}, v{VT+3} offset:{O_Q}")
    A("s_mov_b32 s34, 16")
    stamp(2)
    A("s_waitcnt lgkmcnt(0)")

    Lb("L_kloop")
    A("s_add_u32 s29, s29, 65536")
    tile_offsets()
    A("s_cmp_eq_u32 s34, 1")
    A("s_cselect_b32 s16, s12, s16")
    A("s_cselect_b32 s17, s13, s17")

    def red_a(i):
        j = i & 3
        dst = VA0 if j < 2 else VA1
        bm = "0x3" if (j & 1) == 0 else "0xc"
        p = VP + (i & 1)
        A(f"v_add_f32_dpp v{dst}, v{p}, v{p} row_ror:8 row_mask:0xf bank_mask:{bm}")

    def red_b(which):
        src = VA0 if which == 0 else VA1
        bm = "0x5" if which == 0 else "0xa"
        A(f"v_add_f32_dpp v{VB}, v{src}, v{src} row_half_mirror row_mask:0xf bank_mask:{bm}")

    def red_c():
        A(f"v_add_f32_dpp v{VC}, v{VB}, v{VB} quad_perm:[1,0,3,2] {DPP_ALL}")

    def red_d(k):
        dst = VS if k == 0 else VB
        A(f"v_add_f32_dpp v{dst}, v{VC}, v{VC} quad_perm:[2,3,0,1] {DPP_ALL}")

    def red_e(k):
        if k:
            A(f"v_cndmask_b32 v{VS}, v{VS}, v{VB}, s[{38+2*k}:{39+2*k}]")

    for i in range(16):
        k, j = i >> 2, i & 3
        p = VP + (i & 1)
        R = RING + 4 * i
        A(f"v_dot2_f32_bf16 v{p}, v{R}, v{VQ}, 0")
        A(f"v_dot2_f32_bf16 v{p}, v{R+1}, v{VQ+1}, v{p}")
        if i > 0:
            red_a(i - 1)
        A(f"v_dot2_f32_bf16 v{p}, v{R+2}, v{VQ+2}, v{p}")
        if k > 0:
            if j == 0:
                red_b(0)
            elif j == 1:
                red_b(1)
            elif j == 2:
                red_c()
            else:
                red_d(k - 1)
        A(f"v_dot2_f32_bf16 v{p}, v{R+3}, v{VQ+3}, v{p}")
        if k > 0 and j == 3:
            red_e(k - 1)
        A(f"s_waitcnt vmcnt({D-1})")
        ring_load(i)
    rot = [f"v_mov_b32 v{VE+u}, v{VE+u+1}" for u in range(15)]
    A(rot.pop(0))
    red_a(15)
    red_b(0)
    A(rot.pop(0))
    red_b(1)
    A(rot.pop(0)); A(rot.pop(0))
    red_c()
    A(rot.pop(0)); A(rot.pop(0))
    red_d(3)
    red_e(3)
    bfround(VS, VS)
    A(f"v_mul_f32 v{VS}, {f32(128 ** -0.5)}, v{VS}")
    for s in rot:
        A(s)
    bfround(VE + 15, VS)
    A(f"v_max_f32 v{VMAX}, v{VMAX}, v{VE+15}")
    A("s_sub_u32 s34, s34, 1")
    A("s_cmp_lg_u32 s34, 0")
    A("s_cbranch_scc1 L_kloop")
    stamp(3)

    allreduce_row("v_max_f32", VMAX)
    swap_reduce("v_max_f32", VMAX, VT, 16)
    swap_reduce("v_max_f32", VMAX, VT, 32)
    for u in range(16):
        A(f"v_sub_f32 v{VE+u}, v{VE+u}, v{VMAX}")
    for u in range(16):
        A(f"v_mul_f32 v{VE+u}, {f32(LOG2E)}, v{VE+u}")
    for u in range(16):
        A(f"v_exp_f32 v{VE+u}, v{VE+u}")
    A(f"v_add_f32 v{VS}, v{VE}, v{VE+1}")
    for u in range(2, 16):
        A(f"v_add_f32 v{VS}, v{VS}, v{VE+u}")
    A(f"s_lshl_b32 s3, s28, 9")
    A(f"v_lshl_add_u32 v{VT+2}, v2, 2, v{VLB}")
    A(f"v_add_u32 v{VT+2}, s3, v{VT+2}")
    A(f"ds_write_b32 v{VT+2}, v{VE+14} offset:{O_E}")
    A(f"ds_write_b32 v{VT+2}, v{VE+15} offset:{O_E+256}")
    allreduce_row("v_add_f32", VS)
    swap_reduce("v_add_f32", VS, VT, 16)
    swap_reduce("v_add_f32", VS, VT, 32)
    A(f"s_lshl_b32 s3, s28, 3")
    A(f"v_add_u32 v{VT+2}, s3, v{VLB}")
    A(f"ds_write_b32 v{VT+2}, v{VMAX} offset:{O_ST}")
    A(f"ds_write_b32 v{VT+2}, v{VS} offset:{O_ST+4}")
    A("s_waitcnt lgkmcnt(0)")
    A("s_barrier")
    softmax_factor(VLB, VT, VS, VMAX)
    for u in range(14):
        A(f"v_mul_f32 v{VE+u}, v{VE+u}, v{VS}")
    for u in range(14):
        A(f"v_cvt_pk_bf16_f32 v{VE+u}, v{VE+u}, v{VE+u}")
    A("s_mov_b32 s34, 14")
    stamp(4)

    def build_a(i, vp, vm, vao):
        for r in range(4):
            A(f"v_and_b32_dpp v{vao+4*(i&1)+r}, v{vp}, v{vm+r} row_newbcast:{cl(i)} {DPP_ALL}")

    Lb("L_vloop")
    A("s_add_u32 s29, s29, 65536")
    tile_offsets()
    A("s_cmp_eq_u32 s34, 1")
    A("s_cselect_b32 s18, 0, s18")
    build_a(0, VE, VM, VAO)
    for i in range(16):
        if i < 15:
            build_a(i + 1, VE, VM, VAO)
        else:
            for u in range(13):
                A(f"v_mov_b32 v{VE+u}, v{VE+u+1}")
        A(f"v_mfma_f32_16x16x32_bf16 {vr(VACC,4)}, {vr(VAO+4*(i&1),4)}, {vr(RING+4*i,4)}, {vr(VACC,4)}")
        A(f"s_waitcnt vmcnt({D-1})")
        ring_load(i)
    A("s_sub_u32 s34, s34, 1")
    A("s_cmp_lg_u32 s34, 0")
    A("s_cbranch_scc1 L_vloop")
    A(f"v_and_b32 v{VT}, 15, v2")
    A(f"v_lshrrev_b32 v{VT+1}, 4, v2")
    A(f"v_lshlrev_b32 v{VT}, 5, v{VT}")
    A(f"v_lshl_add_u32 v{VT}, v{VT+1}, 4, v{VT}")
    A("s_lshl_b32 s3, s28, 9")
    A(f"v_add3_u32 v{VT}, v{VT}, s3, v{VLB}")
    A("s_mov_b32 exec_hi, 0")
    A(f"ds_write_b128 v{VT}, {vr(VACC,4)} offset:{O_OP}")
    A("s_mov_b32 exec_hi, -1")
    A("s_waitcnt lgkmcnt(0)")
    stamp(5)
    A("s_barrier")
    A("s_branch L_fin")

    HC, HG, HLB = 4, 5, 6
    HVB, HVS = 7, 8
    HPM, HPR = 9, 10
    HOP = 11
    HGV, HXV, HOA = 12, 13, 14
    HT = 226
    HD = 16
    HA = 232
    HF = 64
    HF2 = 208
    SX, SWQ, SWO, SW1, SB1, SW2, SB2, SOUT, SDBG, SWS = 36, 40, 42, 44, 46, 48, 50, 52, 54, 56

    def srd(n, base, off_s, size):
        if off_s is None:
            A(f"s_mov_b32 s{n}, s{base}")
            A(f"s_mov_b32 s{n+1}, s{base+1}")
        else:
            A(f"s_add_u32 s{n}, s{base}, {off_s}")
            A(f"s_addc_u32 s{n+1}, s{base+1}, 0")
        A(f"s_mov_b32 s{n+2}, {size}")
        A(f"s_mov_b32 s{n+3}, 0x20000")

    Lb("L_helper")
    A(f"s_load_dwordx2 s[{SX}:{SX+1}], s[0:1], 0")
    A(f"s_load_dwordx4 s[{SWQ}:{SWQ+3}], s[0:1], 24")
    A(f"s_load_dwordx8 s[{SW1}:{SW1+7}], s[0:1], 48")
    A(f"s_load_dwordx4 s[{SOUT}:{SOUT+3}], s[0:1], 80")
    A(f"s_load_dwordx2 s[{SWS}:{SWS+1}], s[0:1], 96")
    if hprio:
        A(f"s_setprio {hprio}")
    A("s_sub_u32 s28, s28, 4")
    A("s_and_b32 s29, s2, 31")
    A("s_lshr_b32 s30, s2, 5")
    A("s_and_b32 s31, s2, 7")
    A("s_lshl_b32 s31, s31, 2")
    A("s_lshr_b32 s3, s29, 3")
    A("s_add_u32 s31, s31, s3")
    A(f"v_and_b32 v{HC}, 15, v2")
    A(f"v_lshrrev_b32 v{HG}, 4, v2")
    A(f"v_mov_b32 v{HLB}, {L_B}")
    for r in range(4):
        A(f"v_mov_b32 v{HD+r}, 0")
    A(f"v_subrev_u32 v{HT}, 256, v0")
    A(f"v_lshl_add_u32 v{HT+1}, v{HT}, 4, v{HLB}")
    A(f"ds_write_b128 v{HT+1}, {vr(HD,4)} offset:{O_OP}")
    A(f"v_lshl_add_u32 v{HT+1}, v{HC}, 2, v{HLB}")
    A(f"ds_write_b32 v{HT+1}, v{HD} offset:{O_CNT}")
    A(f"v_mul_u32_u24 v{HT}, 36, v{HT}")
    A("s_mov_b32 s58, 0x05040100")
    A("s_mov_b32 s59, 0x07060302")
    A("s_waitcnt lgkmcnt(0)")
    XR = 52
    srd(8, SX, None, 9216)
    A(f"buffer_load_dwordx4 {vr(XR,4)}, v{HT}, s[8:11], 0 offen")
    A(f"buffer_load_dwordx4 {vr(XR+4,4)}, v{HT}, s[8:11], 0 offen offset:16")
    A(f"buffer_load_dword v{XR+8}, v{HT}, s[8:11], 0 offen offset:32")
    A("s_cmp_eq_u32 s28, 0")
    A(f"s_cselect_b32 s12, s{SWQ}, s{SW1}")
    A(f"s_cselect_b32 s13, s{SWQ+1}, s{SW1+1}")
    A(f"s_mov_b32 s14, {576*9216}")
    A(f"s_cselect_b32 s14, {576*8192}, s14")
    A("s_mov_b32 s15, 0x20000")
    A("s_movk_i32 s32, 9216")
    A("s_cselect_b32 s32, 8192, s32")
    A("s_mul_i32 s33, s31, 288")
    A("s_lshl_b32 s3, s29, 8")
    A("s_cmp_eq_u32 s28, 0")
    A("s_cselect_b32 s33, s3, s33")
    A("s_mul_i32 s3, s32, 72")
    A("s_mul_i32 s3, s3, s30")
    A("s_add_u32 s33, s33, s3")
    A("s_mul_i32 s3, s32, 18")
    A(f"v_mul_lo_u32 v{HT+1}, s3, v{HG}")
    L1 = HF
    A("s_cmp_ge_u32 s28, 2")
    A("s_cbranch_scc1 L_h_ld_narrow")
    A(f"v_lshl_add_u32 v{HT+1}, v{HC}, 4, v{HT+1}")
    for e in range(18):
        A(f"buffer_load_dwordx4 {vr(L1+4*e,4)}, v{HT+1}, s[12:15], s33 offen {wpol}")
        A("s_add_u32 s33, s33, s32")
    A("s_barrier")
    A("s_waitcnt vmcnt(18)")
    A("s_branch L_h_ln")
    Lb("L_h_ld_narrow")
    A("s_cmp_eq_u32 s28, 3")
    A("s_cbranch_scc1 L_h_ld_none")
    A(f"v_lshl_add_u32 v{HT+1}, v{HC}, 1, v{HT+1}")
    for e in range(18):
        A(f"buffer_load_ushort v{L1+e}, v{HT+1}, s[12:15], s33 offen offset:256 {wpol}")
        A("s_add_u32 s33, s33, s32")
    A("s_barrier")
    A("s_waitcnt vmcnt(18)")
    A("s_branch L_h_ln")
    Lb("L_h_ld_none")
    A("s_barrier")
    A("s_waitcnt vmcnt(0)")

    Lb("L_h_ln")
    stamp(1)
    XF = HD
    SUM, T1, MEAN = 34, 35, 36
    for d in range(9):
        A(f"v_lshlrev_b32 v{XF+2*d}, 16, v{XR+d}")
        A(f"v_and_b32 v{XF+2*d+1}, 0xffff0000, v{XR+d}")
    A(f"v_add_f32 v{SUM}, v{XF}, v{XF+1}")
    for e in range(2, 18):
        A(f"v_add_f32 v{SUM}, v{SUM}, v{XF+e}")
    allreduce_row("v_add_f32", SUM)
    swap_reduce("v_add_f32", SUM, T1, 16)
    A(f"v_mul_f32 v{MEAN}, {f32(1/576)}, v{SUM}")
    A(f"v_mov_b32 v{SUM}, 0")
    for e in range(18):
        t = 38 + (e & 1)
        A(f"v_sub_f32 v{t}, v{XF+e}, v{MEAN}")
        A(f"v_fmac_f32 v{SUM}, v{t}, v{t}")
    allreduce_row("v_add_f32", SUM)
    swap_reduce("v_add_f32", SUM, T1, 16)
    A(f"v_mul_f32 v{SUM}, {f32(1/576)}, v{SUM}")
    bfround(MEAN, MEAN)
    bfround(SUM, SUM)
    A(f"v_add_f32 v{SUM}, {f32(1e-5)}, v{SUM}")
    bfround(SUM, SUM)
    A(f"v_sqrt_f32 v{SUM}, v{SUM}")
    A("s_nop 0")
    bfround(SUM, SUM)
    A(f"v_rcp_f32 v{SUM}, v{SUM}")
    for e in range(18):
        A(f"v_sub_f32 v{XF+e}, v{XF+e}, v{MEAN}")
    for d in range(9):
        A(f"v_cvt_pk_bf16_f32 v{XR+d}, v{XF+2*d}, v{XF+2*d+1}")
    for d in range(9):
        A(f"v_lshlrev_b32 v{XF+2*d}, 16, v{XR+d}")
        A(f"v_and_b32 v{XF+2*d+1}, 0xffff0000, v{XR+d}")
    for e in range(18):
        A(f"v_mul_f32 v{XF+e}, v{XF+e}, v{SUM}")
    for d in range(9):
        A(f"v_cvt_pk_bf16_f32 v{XR+d}, v{XF+2*d}, v{XF+2*d+1}")
    A(f"v_lshrrev_b32 v{HT}, 5, v2")
    A("s_lshl_b32 s3, s28, 1")
    A(f"v_add_u32 v{HT}, s3, v{HT}")
    A(f"v_and_b32 v{HT+1}, 3, v2")
    A(f"v_lshl_add_u32 v{HT}, v{HT}, 2, v{HT+1}")
    A(f"v_mul_u32_u24 v{HT}, 48, v{HT}")
    A(f"v_add_u32 v{HT}, v{HT}, v{HLB}")
    A(f"v_bfe_u32 v{HT+1}, v2, 2, 3")
    A(f"v_mov_b32 v{HT+2}, 1")
    A(f"v_cmp_eq_u32 vcc, s30, v{HT+1}")
    A("s_and_saveexec_b64 s[34:35], vcc")
    A(f"ds_write_b128 v{HT}, {vr(XR,4)} offset:{O_XN}")
    A(f"ds_write_b128 v{HT}, {vr(XR+4,4)} offset:{O_XN+16}")
    A(f"ds_write_b32 v{HT}, v{XR+8} offset:{O_XN+32}")
    A("s_mov_b64 exec, 1")
    A("s_waitcnt lgkmcnt(0)")
    A(f"ds_add_u32 v{HLB}, v{HT+2} offset:{O_CNT+C_LN}")
    A("s_mov_b64 exec, -1")
    A(f"v_mul_u32_u24 v{HVB}, {32*1152}, v{HG}")
    A("s_lshl_b32 s3, s28, 5")
    A(f"v_lshl_add_u32 v{HVS}, v{HC}, 1, v{HVB}")
    A(f"v_add_u32 v{HVS}, s3, v{HVS}")
    A(f"v_add_u32 v{HVS}, 1024, v{HVS}")
    A("s_lshl_b32 s3, s28, 8")
    A(f"v_lshl_add_u32 v{HVB}, v{HC}, 4, v{HVB}")
    A(f"v_add_u32 v{HVB}, s3, v{HVB}")
    A(f"v_lshlrev_b32 v{HPM}, 5, v{HC}")
    A(f"v_lshl_add_u32 v{HPM}, v{HG}, 4, v{HPM}")
    A("s_lshl_b32 s3, s28, 9")
    A(f"v_add_u32 v{HPM}, s3, v{HPM}")
    A(f"v_mov_b32 v{HT}, 0x10000000")
    A(f"v_cmp_gt_u32 vcc, 2, v{HG}")
    A("s_lshl_b32 s3, s28, 6")
    A("s_add_u32 s3, s3, 2048")
    A(f"v_cndmask_b32 v{HPM}, v{HT}, v{HPM}, vcc")
    A(f"v_lshl_add_u32 v{HPR}, v{HC}, 2, s3")
    A(f"v_cmp_eq_u32 vcc, 0, v{HG}")
    A(f"v_lshl_add_u32 v{HOP}, v2, 3, v{HLB}")
    A("s_mov_b32 s60, 0xffff0000")
    A(f"v_cndmask_b32 v{HPR}, v{HT}, v{HPR}, vcc")
    A("s_mov_b32 s61, 0xffff0000")
    A("s_cmp_eq_u32 s28, 3")
    A("s_cbranch_scc1 L_h_w2")

    A(f"s_mul_i32 s3, s29, {8*8*1152}")
    A(f"s_add_u32 s3, s3, {WS_P1}") if WS_P1 else None
    srd(16, SWS, "s3", 8 * 8 * 1152)
    A(f"v_and_b32 v{HT}, 7, v{HC}")
    A(f"v_lshl_add_u32 v{HT+1}, v{HT}, 2, v{HG}")
    A(f"v_mul_u32_u24 v{HT+1}, 48, v{HT+1}")
    A(f"v_add_u32 v{HT+1}, v{HT+1}, v{HLB}")
    A(f"v_mul_u32_u24 v{HT+3}, 9216, v{HT}")
    A(f"v_lshl_add_u32 v{HT+3}, v{HG}, 4, v{HT+3}")
    A("s_mul_i32 s33, s30, 1152")
    A("s_lshl_b32 s3, s28, 9")
    A("s_add_u32 s33, s33, s3")
    A(f"v_cmp_le_u32 s[34:35], 8, v{HC}")
    lds_spin("L_h_lnwait", HLB, O_CNT + C_LN, HT + 4, 4, sleep=0)
    A(f"ds_read_b128 {vr(XR,4)}, v{HT+1} offset:{O_XN}")
    A(f"ds_read_b128 {vr(XR+4,4)}, v{HT+1} offset:{O_XN+16}")
    A(f"ds_read_b32 v{XR+8}, v{HT+1} offset:{O_XN+32}")
    A(f"v_mov_b32 v{XR+9}, 0")
    stamp(2)
    A("s_cmp_eq_u32 s28, 2")
    A("s_cbranch_scc1 L_h_s1_narrow")
    W0 = HA
    for s in range(2):
        A(f"s_waitcnt vmcnt({10 - 8*s}) lgkmcnt(0)")
        for t in range(9):
            if t < 8:
                for r in range(4):
                    lo = L1 + 4 * (8 * s + 2 * r) + (t >> 1)
                    A(f"v_perm_b32 v{W0+4*(t&1)+r}, v{lo+4}, v{lo}, s{58+(t&1)}")
            else:
                A("s_nop 1")
            if t > 0:
                tt = t - 1
                c_in = "0" if s == 0 else vr(HD + 4 * tt, 4)
                A(f"v_mfma_f32_16x16x32_bf16 {vr(HD+4*tt,4)}, {vr(W0+4*(tt&1),4)}, {vr(XR+4*s,4)}, {c_in}")
    A("s_waitcnt vmcnt(0)")
    W2 = HA
    A("s_nop 1")
    for t in range(8):
        lo = L1 + 4 * 16 + (t >> 1)
        A(f"v_perm_b32 v{W2+2*t}, v{lo+4}, v{lo}, s{58+(t&1)}")
        A(f"v_mov_b32 v{W2+2*t+1}, 0")
    A("s_nop 1")
    for t in range(8):
        A(f"v_mfma_f32_16x16x16_bf16 {vr(HD+4*t,4)}, {vr(W2+2*t,2)}, {vr(XR+8,2)}, {vr(HD+4*t,4)}")
    A(f"v_lshrrev_b32 v{HT+4}, 3, v{HC}")
    A(f"v_lshl_add_u32 v{HT+3}, v{HT+4}, 6, v{HT+3}")
    A("s_nop 7")
    for tt in range(0, 8, 2):
        for r in range(4):
            A(f"v_cndmask_b32 v{HD+4*tt+r}, v{HD+4*tt+r}, v{HD+4*tt+4+r}, s[34:35]")
        A(f"buffer_store_dwordx4 {vr(HD+4*tt,4)}, v{HT+3}, s[16:19], s33 offen offset:{tt*64} {stpol}")
    A("s_branch L_h_s1_done")
    Lb("L_h_s1_narrow")
    A("s_waitcnt vmcnt(0) lgkmcnt(0)")
    for d in range(9):
        A(f"v_lshl_or_b32 v{HA+d}, v{L1+2*d+1}, 16, v{L1+2*d}")
    A(f"v_mov_b32 v{HA+9}, 0")
    A(f"v_mov_b32 v{HT+4}, 0x10000000")
    A(f"v_cndmask_b32 v{HT+3}, v{HT+3}, v{HT+4}, s[34:35]")
    A(f"v_mfma_f32_16x16x32_bf16 {vr(HD,4)}, {vr(HA,4)}, {vr(XR,4)}, 0")
    A(f"v_mfma_f32_16x16x32_bf16 {vr(HD,4)}, {vr(HA+4,4)}, {vr(XR+4,4)}, {vr(HD,4)}")
    A("s_nop 7")
    A(f"v_mfma_f32_16x16x16_bf16 {vr(HD,4)}, {vr(HA+8,2)}, {vr(XR+8,2)}, {vr(HD,4)}")
    A("s_nop 7")
    A(f"buffer_store_dwordx4 {vr(HD,4)}, v{HT+3}, s[16:19], s33 offen {stpol}")
    Lb("L_h_s1_done")
    stamp(3)
    A("s_and_b32 s3, s29, 1")
    A("s_lshl_b32 s3, s3, 7")
    A("s_lshr_b32 s33, s29, 1")
    A("s_lshl_b32 s33, s33, 2")
    A("s_add_u32 s3, s3, s33")
    A(f"v_mov_b32 v{HT}, s3")
    A("s_mov_b64 exec, 1")
    A("s_waitcnt vmcnt(0)")
    A(f"ds_add_rtn_u32 v{HT+4}, v{HLB}, v{HT+2} offset:{O_CNT+C_S1}")
    A("s_waitcnt lgkmcnt(0)")
    A(f"v_readfirstlane_b32 s3, v{HT+4}")
    A("s_cmp_lg_u32 s3, 2")
    A("s_cbranch_scc1 L_h_s1_nosig")
    A(f"global_atomic_add v{HT}, v{HT+2}, s[{SDBG}:{SDBG+1}]")
    Lb("L_h_s1_nosig")
    A("s_mov_b64 exec, -1")
    stamp(4)
    A("s_cmp_lg_u32 s28, 0")
    A("s_cbranch_scc1 L_h_w2")

    GB = 52
    A(f"v_and_b32 v{HT+4}, 3, v2")
    A(f"v_bfe_u32 v{HT+5}, v2, 2, 3")
    A(f"v_lshl_add_u32 v{HT+4}, v{HT+4}, 5, v{HT+5}")
    A("s_mul_i32 s33, s31, 288")
    srd(12, SB1, "s33", 288)
    A(f"v_lshlrev_b32 v{HT+5}, 1, v{HT+4}")
    for r in range(4):
        A(f"buffer_load_ushort v{GB+r}, v{HT+5}, s[12:15], 0 offen offset:{16*r}")
    A(f"v_lshlrev_b32 v{HT+6}, 1, v{HC}")
    A(f"buffer_load_ushort v{GB+4}, v{HT+6}, s[12:15], 0 offen offset:256")
    A(f"v_lshlrev_b32 v{HT+7}, 4, v2")
    A(f"v_lshlrev_b32 v{HT+8}, 2, v{HC}")
    A("s_mul_i32 s33, s30, 9216")
    for _ in range(sleep0):
        A("s_sleep 32")
    Lb("L_h_gpoll")
    A(f"global_load_dword v{HT+9}, v{HT}, s[{SDBG}:{SDBG+1}] sc1")
    A("s_waitcnt vmcnt(0)")
    A(f"v_readfirstlane_b32 s3, v{HT+9}")
    A("s_cmp_ge_u32 s3, 8")
    A("s_cbranch_scc1 L_h_gpoll_ok")
    if fakepoll:
        A("s_branch L_h_gpoll_ok")
    if sleep1:
        A(f"s_sleep {sleep1}")
    A("s_sub_u32 s69, s69, 16")
    A("s_cbranch_scc0 L_h_gpoll")
    A("s_mov_b32 s69, 0")
    Lb("L_h_gpoll_ok")
    stamp(5)
    GL = HF
    for p in range(8):
        A(f"buffer_load_dwordx4 {vr(GL+4*p,4)}, v{HT+7}, s[16:19], s33 offen {ldpol}")
        A(f"buffer_load_dword v{GL+32+p}, v{HT+8}, s[16:19], s33 offen offset:1024 {ldpol}")
        A("s_add_u32 s33, s33, 1152")
    A(f"v_add_u32 v{HT+5}, v{HT+5}, v{HLB}")
    A(f"v_lshl_add_u32 v{HT+4}, v{HT+4}, 2, v{HLB}")
    A(f"v_add_u32 v{HT+6}, v{HT+6}, v{HLB}")
    for p in range(1, 8):
        A(f"s_waitcnt vmcnt({14-2*p})")
        for r in range(4):
            A(f"v_add_f32 v{GL+r}, v{GL+r}, v{GL+4*p+r}")
        A(f"v_add_f32 v{GL+32}, v{GL+32}, v{GL+32+p}")
    A(f"v_mov_b32 v{GL+4}, v{GL+32}")
    for r in range(5):
        A(f"v_cvt_pk_bf16_f32 v{GL+r}, v{GL+r}, v{GL+r}")
    A("s_mov_b32 exec_hi, 0")
    for r in range(4):
        A(f"ds_write_b16 v{HT+5}, v{GL+r} offset:{O_Q+16*r}")
    A("s_waitcnt lgkmcnt(0)")
    A(f"ds_write_b32 v{HLB}, v{HT+2} offset:{O_CNT+C_Q}")
    A("s_mov_b32 exec_hi, -1")
    stamp(6)
    c1 = -2.0 * LOG2E * 0.7978845608028654
    for r in range(5):
        A(f"v_and_b32 v{GL+r}, 0xffff0000, v{GL+r}")
        A(f"v_lshlrev_b32 v{GB+r}, 16, v{GB+r}")
        A(f"v_add_f32 v{GL+r}, v{GL+r}, v{GB+r}")
        bfround(GL + r, GL + r)
        A(f"v_mul_f32 v{GB+r}, v{GL+r}, v{GL+r}")
        A(f"v_mov_b32 v{GL+8}, {f32(c1)}")
        A(f"v_fmac_f32 v{GL+8}, {f32(c1*0.044715)}, v{GB+r}")
        A(f"v_mul_f32 v{GB+r}, v{GL+8}, v{GL+r}")
        A(f"v_exp_f32 v{GB+r}, v{GB+r}")
        A("s_nop 0")
        A(f"v_add_f32 v{GB+r}, 1.0, v{GB+r}")
        A(f"v_rcp_f32 v{GB+r}, v{GB+r}")
        A("s_nop 0")
        A(f"v_mul_f32 v{GL+r}, v{GL+r}, v{GB+r}")
        bfround(GL + r, GL + r)
    A("s_mov_b32 exec_lo, 0")
    for r in range(4):
        A(f"ds_write_b32 v{HT+4}, v{GL+r} offset:{O_OP+32*r}")
    A(f"ds_write_b16_d16_hi v{HT+6}, v{GL+4} offset:{O_HR}")
    A("s_waitcnt lgkmcnt(0)")
    A(f"ds_write_b32 v{HLB}, v{HT+2} offset:{O_CNT+C_H}")
    A("s_mov_b32 exec_lo, -1")

    Lb("L_h_w2")
    if hprio:
        A("s_setprio 0")
    A(f"s_mul_i32 s3, s31, {144*1152}")
    srd(20, SW2, "s3", 144 * 1152)
    ST = HD
    A(f"v_mul_u32_u24 v{HT}, {28*1152}, v{HG}")
    A(f"v_sub_u32 v{HT+1}, v{HVS}, v{HT}")
    A(f"v_sub_u32 v{HT}, v{HVB}, v{HT}")
    A(f"s_mov_b32 s33, {128*1152}")
    for e in range(4):
        A(f"buffer_load_dwordx4 {vr(ST+4*e,4)}, v{HT}, s[20:23], s33 offen offset:{e*1152} {wpol}")
        A(f"buffer_load_ushort v{ST+16+e}, v{HT+1}, s[20:23], s33 offen offset:{e*1152} {wpol}")
    A("s_waitcnt vmcnt(0)")
    for r in range(2):
        for t in range(8):
            lo = ST + 8 * r + (t >> 1)
            A(f"v_perm_b32 v{HF2+2*t+r}, v{lo+4}, v{lo}, s{58+(t&1)}")
        A(f"v_lshl_or_b32 v{HF2+16+r}, v{ST+17+2*r}, 16, v{ST+16+2*r}")
    A("s_call_b64 s[62:63], L_sub_load")
    stamp(7)
    lds_spin("L_h_hwait", HLB, O_CNT + C_H, HT, 1)
    A(f"v_lshl_add_u32 v{HT}, v{HG}, 3, v{HLB}")
    A(f"ds_read_b64 {vr(HT+2,2)}, v{HT} offset:{O_HR}")
    A(f"s_mul_i32 s3, s2, 2304")
    A(f"s_add_u32 s3, s3, {WS_G}")
    srd(24, SWS, "s3", 2304)
    A("s_waitcnt lgkmcnt(0)")
    for t in range(9):
        A(f"v_mfma_f32_16x16x16_bf16 {vr(HD+4*t,4)}, {vr(HT+2,2)}, {vr(HF2+2*t,2)}, 0")
    A("s_call_b64 s[62:63], L_sub_gemv")
    A(f"s_add_u32 s24, s24, {WS_Y-WS_G}")
    A("s_addc_u32 s25, s25, 0")
    for r in range(4):
        A(f"v_mov_b32 v{HT+2+r}, -1")
    A(f"buffer_store_dwordx4 {vr(HT+2,4)}, v{HPM}, s[24:27], 0 offen {stpol}")
    A(f"buffer_store_dword v{HT+2}, v{HPR}, s[24:27], 0 offen {stpol}")
    A("s_lshl_b32 s3, s30, 2")
    A("s_add_u32 s3, s3, 64")
    A(f"v_mov_b32 v15, s3")
    A(f"v_mov_b32 v{HT}, 1")
    A("s_mov_b64 exec, 1")
    A("s_waitcnt vmcnt(0)")
    A(f"ds_add_rtn_u32 v{HT+1}, v{HLB}, v{HT} offset:{O_CNT+C_S2}")
    A("s_waitcnt lgkmcnt(0)")
    A(f"v_readfirstlane_b32 s3, v{HT+1}")
    A("s_cmp_lg_u32 s3, 3")
    A("s_cbranch_scc1 L_h_s2_nosig")
    A(f"global_atomic_add v15, v{HT}, s[{SDBG}:{SDBG+1}]")
    Lb("L_h_s2_nosig")
    A("s_mov_b64 exec, -1")
    stamp(8)
    A(f"s_mul_i32 s3, s29, {128*1152}")
    srd(20, SWO, "s3", 128 * 1152)
    A("s_call_b64 s[62:63], L_sub_load")
    stamp(9)
    PM, PAO, PACC, PE, PV_ = 208, 212, 220, 224, 16
    pv_masks(PM, HC, HT)
    for r in range(4):
        A(f"v_mov_b32 v{PACC+r}, 0")
    A("s_barrier")
    A("s_lshl_b32 s3, s28, 3")
    A(f"v_add_u32 v{HT}, s3, v{HLB}")
    A(f"ds_read_b32 v{HT+1}, v{HT} offset:{O_ST}")
    A("s_lshl_b32 s3, s28, 9")
    A(f"v_lshl_add_u32 v{HT}, v2, 2, v{HLB}")
    A(f"v_add_u32 v{HT}, s3, v{HT}")
    A(f"ds_read_b32 v{PE}, v{HT} offset:{O_E}")
    A(f"ds_read_b32 v{PE+1}, v{HT} offset:{O_E+256}")
    softmax_factor(HLB, HA, HT, HT + 1)
    for u in range(2):
        A(f"v_mul_f32 v{PE+u}, v{PE+u}, v{HT}")
        A(f"v_cvt_pk_bf16_f32 v{PE+u}, v{PE+u}, v{PE+u}")
    A("s_lshl_b32 s3, s28, 15")
    A(f"v_lshl_add_u32 v{HT}, v2, 4, s3")
    A("s_mov_b32 s34, 2")
    Lb("L_h_pv")
    for half in range(2):
        for i in range(8):
            A(f"ds_read_b128 {vr(PV_+4*i,4)}, v{HT} offset:{(8*half+i)*1024}")
        for i in range(8):
            build_a(8 * half + i, PE, PM, PAO)
            A(f"s_waitcnt lgkmcnt({7-i})")
            A("s_nop 0")
            A(f"v_mfma_f32_16x16x32_bf16 {vr(PACC,4)}, {vr(PAO+4*(i&1),4)}, {vr(PV_+4*i,4)}, {vr(PACC,4)}")
    A(f"v_mov_b32 v{PE}, v{PE+1}")
    A(f"v_add_u32 v{HT}, 16384, v{HT}")
    A("s_sub_u32 s34, s34, 1")
    A("s_cmp_lg_u32 s34, 0")
    A("s_cbranch_scc1 L_h_pv")
    A(f"v_lshlrev_b32 v{HT}, 5, v{HC}")
    A(f"v_lshl_add_u32 v{HT}, v{HG}, 4, v{HT}")
    A("s_lshl_b32 s3, s28, 9")
    A(f"v_add3_u32 v{HT}, v{HT}, s3, v{HLB}")
    A("s_mov_b32 exec_hi, 0")
    A(f"ds_write_b128 v{HT}, {vr(PACC,4)} offset:{O_OP+2048}")
    A("s_mov_b32 exec_hi, -1")
    stamp(10)
    A("s_cmp_eq_u32 s28, 3")
    A("s_cselect_b32 s64, 1, 0")
    A("s_cmp_lt_u32 s29, 18")
    A("s_cselect_b32 s64, s64, 0")
    GA, GS = 208, 224
    A(f"s_mul_i32 s3, s30, {32*2304}")
    A(f"s_add_u32 s3, s3, {WS_G}")
    srd(12, SWS, "s3", 32 * 2304)
    A(f"v_lshrrev_b32 v{HT}, 3, v2")
    A(f"v_mul_u32_u24 v{HT}, 2304, v{HT}")
    A(f"v_and_b32 v{HT+1}, 7, v2")
    A(f"v_lshl_add_u32 v{HT}, v{HT+1}, 4, v{HT}")
    A("s_lshl_b32 s3, s29, 7")
    A(f"v_add_u32 v{GS}, s3, v{HT}")
    A(f"s_mov_b32 s65, {8*2304}")
    A(f"s_mov_b32 s66, {16*2304}")
    A(f"s_mov_b32 s67, {24*2304}")
    A(f"v_bfe_u32 v{HT+2}, v2, 4, 1")
    A(f"v_lshrrev_b32 v{HT+3}, 5, v2")
    A(f"v_lshl_add_u32 v{HT+2}, v{HT+2}, 1, v{HT+3}")
    A(f"v_lshl_add_u32 v{HT+2}, v{HT+1}, 2, v{HT+2}")
    A("s_lshl_b32 s3, s29, 5")
    A(f"v_add_lshl_u32 v{HOA}, v{HT+2}, s3, 1")
    A("s_mul_i32 s68, s30, 1152")
    srd(16, SOUT, None, 9216)
    A("s_cmp_eq_u32 s64, 0")
    A("s_cbranch_scc1 L_h_tail")
    srd(20, SB2, None, 1152)
    A(f"buffer_load_ushort v{HXV}, v{HOA}, s[8:11], s68 offen")
    A(f"buffer_load_ushort v{HGV}, v{HOA}, s[20:23], 0 offen")
    Lb("L_h_bpoll")
    A(f"global_load_dword v{HT}, v15, s[{SDBG}:{SDBG+1}] sc1")
    A("s_waitcnt vmcnt(0)")
    A(f"v_readfirstlane_b32 s3, v{HT}")
    A("s_cmp_ge_u32 s3, 32")
    A("s_cbranch_scc1 L_h_bpoll_ok")
    A("s_sub_u32 s69, s69, 16")
    A("s_cbranch_scc0 L_h_bpoll")
    A("s_mov_b32 s69, 0")
    Lb("L_h_bpoll_ok")
    A("s_call_b64 s[62:63], L_sub_gather")
    A(f"v_lshlrev_b32 v{HXV}, 16, v{HXV}")
    A(f"v_lshlrev_b32 v{HGV}, 16, v{HGV}")
    A(f"v_add_f32 v{HGV}, v{HGV}, v{HT}")
    bfround(HGV, HGV)
    A(f"v_mul_f32 v{HT}, {f32(-LOG2E)}, v{HGV}")
    A(f"v_exp_f32 v{HT}, v{HT}")
    A("s_nop 0")
    A(f"v_add_f32 v{HT}, 1.0, v{HT}")
    A(f"v_rcp_f32 v{HT}, v{HT}")
    A("s_nop 0")
    A(f"v_mul_f32 v{HGV}, v{HGV}, v{HT}")
    bfround(HGV, HGV)
    A(f"s_add_u32 s12, s12, {WS_Y-WS_G}")
    A("s_addc_u32 s13, s13, 0")
    A(f"v_mov_b32 v{HT}, 0x10000000")
    A(f"v_and_b32 v{HT+1}, 8, v2")
    A(f"v_cmp_eq_u32 vcc, 0, v{HT+1}")
    A("s_nop 1")
    A(f"v_cndmask_b32 v{HOA}, v{HT}, v{HOA}, vcc")
    Lb("L_h_tail")
    for r in range(36):
        A(f"v_mov_b32 v{HD+r}, 0")
    stamp(11)
    A("s_waitcnt lgkmcnt(0)")
    A("s_barrier")
    stamp(12)
    A("s_call_b64 s[62:63], L_sub_gemv")
    stamp(13)
    A("s_cmp_eq_u32 s64, 0")
    A("s_cbranch_scc1 L_fin")
    A("s_call_b64 s[62:63], L_sub_gather")
    A(f"v_mul_f32 v{HT}, v{HT}, v{HGV}")
    bfround(HT, HT)
    A(f"v_add_f32 v{HT}, v{HT}, v{HXV}")
    A(f"v_cvt_pk_bf16_f32 v{HT}, v{HT}, v{HT}")
    A(f"buffer_store_short v{HT}, v{HOA}, s[16:19], s68 offen")
    stamp(14)

    Lb("L_fin")
    if fixdur:
        Lb("L_fix")
        A("s_memrealtime s[76:77]")
        A("s_waitcnt lgkmcnt(0)")
        A("s_sub_u32 s76, s76, s74")
        A(f"s_cmp_lt_u32 s76, {fixdur*100}")
        A("s_cbranch_scc1 L_fix")
    if stamps:
        A("s_waitcnt vmcnt(0)")
        stamp(15)
        A("s_getreg_b32 s70, hwreg(HW_REG_XCC_ID)")
        A(f"v_writelane_b32 v{VST}, s70, 16")
        A(f"s_add_u32 s72, s72, {WS_STAMP}")
        A("s_addc_u32 s73, s73, 0")
        A("s_lshl_b32 s3, s2, 11")
        A("v_lshlrev_b32 v0, 2, v0")
        A("v_add_u32 v0, s3, v0")
        A(f"global_store_dword v0, v{VST}, s[72:73]")
    Lb("L_end")
    A("s_endpgm")

    Lb("L_sub_load")
    ST = HD

    def issue_pair(n):
        sl = ST + 10 * (n & 1)
        A(f"s_mov_b32 s33, {2*n*1152}")
        A(f"buffer_load_dwordx4 {vr(sl,4)}, v{HVB}, s[20:23], s33 offen {wpol}")
        A(f"buffer_load_dwordx4 {vr(sl+4,4)}, v{HVB}, s[20:23], s33 offen offset:1152 {wpol}")
        if not nonarrow:
            A(f"buffer_load_ushort v{sl+8}, v{HVS}, s[20:23], s33 offen {wpol}")
            A(f"buffer_load_ushort v{sl+9}, v{HVS}, s[20:23], s33 offen offset:1152 {wpol}")

    issue_pair(0)
    issue_pair(1)
    for n in range(16):
        s, r = n >> 2, n & 3
        sl = ST + 10 * (n & 1)
        A(f"s_waitcnt vmcnt({(2 if nonarrow else 4) if n < 15 else 0})")
        for t in range(8):
            A(f"v_perm_b32 v{HF+36*s+4*t+r}, v{sl+4+(t>>1)}, v{sl+(t>>1)}, s{58+(t&1)}")
        A(f"v_lshl_or_b32 v{HF+36*s+32+r}, v{sl+9}, 16, v{sl+8}")
        if n + 2 < 16:
            issue_pair(n + 2)
    A("s_setpc_b64 s[62:63]")

    Lb("L_sub_gemv")
    OR = 208
    for k in range(8):
        A(f"ds_read_b64 {vr(OR+2*k,2)}, v{HOP} offset:{O_OP+512*k}")
    for k in range(1, 8):
        A(f"s_waitcnt lgkmcnt({7-k})")
        A(f"v_add_f32 v{OR}, v{OR}, v{OR+2*k}")
        A(f"v_add_f32 v{OR+1}, v{OR+1}, v{OR+2*k+1}")
    A(f"v_cvt_pk_bf16_f32 v{OR}, v{OR}, v{OR+1}")
    A("s_nop 1")
    bc = [f"v_mov_b32_dpp v{HA+n}, v{OR} row_newbcast:{n} {DPP_ALL}" for n in range(16)]
    for n in range(6):
        A(bc.pop(0))
    for s in range(4):
        order = range(9) if s < 3 else (8, 0, 4, 1, 5, 2, 6, 3, 7)
        for t in order:
            A(f"v_mfma_f32_16x16x32_bf16 {vr(HD+4*t,4)}, {vr(HA+4*s,4)}, {vr(HF+36*s+4*t,4)}, {vr(HD+4*t,4)}")
            if bc:
                A(bc.pop(0))
    A(f"buffer_store_dword v{HD+32}, v{HPR}, s[24:27], 0 offen {stpol}")
    A("s_nop 4")
    for r in range(4):
        A(f"v_cndmask_b32 v{OR+4+r}, v{HD+4*r}, v{HD+16+4*r}, s[60:61]")
    A(f"buffer_store_dwordx4 {vr(OR+4,4)}, v{HPM}, s[24:27], 0 offen {stpol}")
    A("s_setpc_b64 s[62:63]")

    Lb("L_sub_gather")
    A(f"buffer_load_dwordx4 {vr(GA,4)}, v{GS}, s[12:15], 0 offen {ldpol}")
    for k in range(1, 4):
        A(f"buffer_load_dwordx4 {vr(GA+4*k,4)}, v{GS}, s[12:15], s{64+k} offen {ldpol}")
    A("s_waitcnt vmcnt(0)")
    A(f"v_max3_u32 v{HT}, v{GA}, v{GA+1}, v{GA+2}")
    for n in range(3, 15, 2):
        A(f"v_max3_u32 v{HT}, v{HT}, v{GA+n}, v{GA+n+1}")
    A(f"v_max_u32 v{HT}, v{HT}, v{GA+15}")
    A(f"v_cmp_eq_u32 vcc, -1, v{HT}")
    for r in range(4):
        A(f"v_add_f32 v{GA+r}, v{GA+r}, v{GA+4+r}")
    for r in range(4):
        A(f"v_add_f32 v{GA+8+r}, v{GA+8+r}, v{GA+12+r}")
    A("s_cbranch_vccnz L_sub_gather_again")
    Lb("L_sub_gather_ok")
    for r in range(4):
        A(f"v_add_f32 v{GA+r}, v{GA+r}, v{GA+8+r}")
    A("s_nop 0")
    A(f"v_permlane32_swap_b32 v{GA}, v{GA+1}")
    A(f"v_permlane32_swap_b32 v{GA+2}, v{GA+3}")
    A("s_nop 0")
    A(f"v_add_f32 v{GA}, v{GA}, v{GA+1}")
    A(f"v_add_f32 v{GA+2}, v{GA+2}, v{GA+3}")
    A("s_nop 1")
    A(f"v_permlane16_swap_b32 v{GA}, v{GA+2}")
    A("s_nop 1")
    A(f"v_add_f32 v{GA}, v{GA}, v{GA+2}")
    A("s_nop 1")
    A(f"v_add_f32_dpp v{HT}, v{GA}, v{GA} row_ror:8 {DPP_ALL}")
    bfround(HT, HT)
    A("s_setpc_b64 s[62:63]")
    Lb("L_sub_gather_again")
    A("s_sub_u32 s69, s69, 16")
    A("s_cbranch_scc0 L_sub_gather")
    A("s_mov_b32 s69, 0")
    A("s_branch L_sub_gather_ok")

    o.append('.section .rodata,"a"')
    o.append(".p2align 6")
    o.append(f".amdhsa_kernel {NAME}_kernel")
    o.append("  .amdhsa_next_free_vgpr 256")
    o.append("  .amdhsa_next_free_sgpr 80")
    o.append("  .amdhsa_accum_offset 256")
    o.append("  .amdhsa_group_segment_fixed_size 0")
    o.append("  .amdhsa_kernarg_size 104")
    o.append("  .amdhsa_user_sgpr_count 2")
    o.append("  .amdhsa_user_sgpr_kernarg_segment_ptr 1")
    o.append("  .amdhsa_system_sgpr_workgroup_id_x 1")
    o.append("  .amdhsa_float_denorm_mode_32 3")
    o.append(".end_amdhsa_kernel")
    return "\n".join(o) + "\n"


if __name__ == "__main__":
    cfg = json.loads(sys.argv[2]) if len(sys.argv) > 2 else {}
    open(sys.argv[1], "w").write(gen(**cfg))
```

```python
import struct, sys, json

NAME = "recurrent_scan__mha_block_cached__dense_activation_gelu__decode"
HEADER = open("header.txt").read()

WS_P1 = 0x000000
WS_G = 0x300000
WS_Y = 0x400000
WS_STAMP = 0x20000000

L_V = 0x00000
L_B = 0x20000
O_OP = 0x0000
O_E = 0x1000
O_ST = 0x1800
O_CNT = 0x1840
O_Q = 0x1880
O_HR = 0x1980
O_XN = 0x19C0
LDS_BYTES = L_B + 0x2000
C_LN, C_S1, C_Q, C_H, C_S2 = 0, 4, 8, 12, 16

SENT = 0xFFFFFFFF
LOG2E = 1.4426950408889634


def f32(x):
    return "0x%08x" % struct.unpack("<I", struct.pack("<f", x))[0]


def vr(a, n=1):
    return f"v{a}" if n == 1 else f"v[{a}:{a+n-1}]"


DPP_ALL = "row_mask:0xf bank_mask:0xf"


def cl(i):
    return ((i & 1) << 3) | (((i >> 1) & 1) << 2) | (i >> 2)


def gen(D=6, stag_shift=15, stamps=False, hprio=0, nonarrow=False, sleep0=0, sleep1=0, fakepoll=False, kvpol="nt", wpol="nt", stpol="sc1", ldpol="sc1", fixdur=0, fixglobal=0):
    o = []
    A = lambda s: o.append("  " + s)
    Lb = lambda s: o.append(s + ":")

    VST = 255

    def stamp(i):
        if stamps:
            A("s_memrealtime s[70:71]")
            A("s_waitcnt lgkmcnt(0)")
            A(f"v_writelane_b32 v{VST}, s70, {i}")

    def bfround(dst, src):
        A(f"v_cvt_pk_bf16_f32 v{dst}, v{src}, v{src}")
        A(f"v_and_b32 v{dst}, 0xffff0000, v{dst}")

    def allreduce_row(op, v):
        for sh in (8, 4, 2, 1):
            A("s_nop 1")
            A(f"{op}_dpp v{v}, v{v}, v{v} row_ror:{sh} {DPP_ALL}")

    def swap_reduce(op, v, t, which):
        A(f"v_mov_b32 v{t}, v{v}")
        A("s_nop 1")
        A(f"v_permlane{which}_swap_b32 v{t}, v{v}")
        A("s_nop 1")
        A(f"{op} v{v}, v{v}, v{t}")

    def lds_spin(label, vaddr, off, vtmp, target, sleep=1):
        Lb(label)
        A(f"ds_read_b32 v{vtmp}, v{vaddr} offset:{off}")
        A("s_waitcnt lgkmcnt(0)")
        A(f"v_readfirstlane_b32 s3, v{vtmp}")
        A(f"s_cmp_ge_u32 s3, {target}")
        A(f"s_cbranch_scc1 {label}_ok")
        if sleep:
            A(f"s_sleep {sleep}")
        A("s_sub_u32 s69, s69, 1")
        A(f"s_cbranch_scc0 {label}")
        A("s_mov_b32 s69, 0")
        Lb(label + "_ok")

    def pv_masks(vm, vc, t0):
        A(f"v_and_b32 v{t0}, 1, v{vc}")
        A(f"v_lshlrev_b32 v{t0}, 4, v{t0}")
        A(f"v_mov_b32 v{t0+1}, 0xffff")
        A(f"v_lshlrev_b32 v{t0}, v{t0}, v{t0+1}")
        A(f"v_lshrrev_b32 v{t0+1}, 1, v{vc}")
        for r in range(4):
            A(f"v_cmp_eq_u32 vcc, {r}, v{t0+1}")
            A("s_nop 1")
            A(f"v_cndmask_b32 v{vm+r}, 0, v{t0}, vcc")

    def softmax_factor(vbase, vst, vf, vown):
        A(f"ds_read_b128 {vr(vst,4)}, v{vbase} offset:{O_ST}")
        A(f"ds_read_b128 {vr(vst+4,4)}, v{vbase} offset:{O_ST+16}")
        A("s_waitcnt lgkmcnt(0)")
        m, t = vst + 8, vst + 9
        A(f"v_max3_f32 v{m}, v{vst}, v{vst+2}, v{vst+4}")
        A(f"v_max_f32 v{m}, v{m}, v{vst+6}")
        for k in range(4):
            A(f"v_sub_f32 v{vst+2*k}, v{vst+2*k}, v{m}")
        A(f"v_sub_f32 v{t}, v{vown}, v{m}")
        for k in range(4):
            A(f"v_mul_f32 v{vst+2*k}, {f32(LOG2E)}, v{vst+2*k}")
        A(f"v_mul_f32 v{t}, {f32(LOG2E)}, v{t}")
        for k in range(4):
            A(f"v_exp_f32 v{vst+2*k}, v{vst+2*k}")
        A(f"v_exp_f32 v{t}, v{t}")
        A(f"v_mul_f32 v{m}, v{vst}, v{vst+1}")
        for k in range(1, 4):
            A(f"v_fmac_f32 v{m}, v{vst+2*k}, v{vst+2*k+1}")
        A(f"v_rcp_f32 v{m}, v{m}")
        A("s_nop 0")
        A(f"v_mul_f32 v{vf}, v{t}, v{m}")

    o.append(HEADER.rstrip())
    o.append(f"; @launch grid=(256,1,1) block=(512,1,1) lds={LDS_BYTES}")
    o.append('.amdgcn_target "amdgcn-amd-amdhsa--gfx950"')
    o.append(".text")
    o.append(f".globl {NAME}_kernel")
    o.append(".p2align 8")
    o.append(f".type {NAME}_kernel,@function")
    Lb(f"{NAME}_kernel")
    A("s_cmp_ge_u32 s2, 256")
    A("s_cbranch_scc1 L_end")
    if fixdur:
        A("s_memrealtime s[74:75]")
    A("s_load_dwordx4 s[4:7], s[0:1], 8")
    if stamps:
        A("s_load_dwordx2 s[72:73], s[0:1], 96")
        A(f"v_mov_b32 v{VST}, 0")
    A("v_lshrrev_b32 v1, 6, v0")
    A("v_and_b32 v2, 63, v0")
    A("v_readfirstlane_b32 s28, v1")
    A("s_mov_b32 s69, 0x200000")
    stamp(0)
    A("s_cmp_ge_u32 s28, 4")
    A("s_cbranch_scc1 L_helper")

    RING = 64
    VQ, VP, VA0, VA1, VB, VC, VS, VMAX = 4, 8, 10, 11, 12, 13, 14, 15
    VE, VM, VAO, VACC, VT, VLB = 16, 32, 36, 44, 48, 60
    A("v_lshlrev_b32 v3, 4, v2")
    A("s_lshl_b32 s3, s28, 12")
    A("v_add_u32 v3, s3, v3")
    A(f"s_lshl_b32 s29, s2, {stag_shift}")
    A("s_lshl_b32 s3, s2, 20")
    A("s_mov_b32 s18, 0x100000")
    A("s_mov_b32 s19, 0x20000")

    def tile_offsets():
        for k in range(4):
            A(f"s_add_u32 s{36+k}, s29, {k*16384}")
            A(f"s_and_b32 s{36+k}, s{36+k}, 0xfffff")

    def ring_load(i):
        A(f"buffer_load_dwordx4 {vr(RING+4*i,4)}, v3, s[16:19], s{36+i//4} offen offset:{(i%4)*1024} {kvpol}")

    tile_offsets()
    A("s_waitcnt lgkmcnt(0)")
    A("s_add_u32 s16, s4, s3")
    A("s_addc_u32 s17, s5, 0")
    for i in range(D):
        ring_load(i)
    A("s_add_u32 s12, s6, s3")
    A("s_addc_u32 s13, s7, 0")
    A("s_mov_b32 s14, 0x100000")
    A("s_mov_b32 s15, 0x20000")
    A("s_barrier")
    for i in range(D, 16):
        A(f"s_waitcnt vmcnt({D-1})")
        ring_load(i)
    A(f"s_add_u32 s35, s29, {56*16384}")
    A("s_lshl_b32 s33, s28, 15")
    A("s_mov_b32 s34, 8")
    Lb("L_vdma")
    A("s_and_b32 s36, s35, 0xfffff")
    A("s_mov_b32 m0, s33")
    for j in range(4):
        A(f"s_waitcnt vmcnt({D-1})")
        A(f"buffer_load_dwordx4 v3, s[12:15], s36 offen offset:{j*1024} {kvpol} lds")
    A("s_add_u32 s35, s35, 16384")
    A("s_add_u32 s33, s33, 4096")
    A("s_sub_u32 s34, s34, 1")
    A("s_cmp_lg_u32 s34, 0")
    A("s_cbranch_scc1 L_vdma")
    stamp(1)
    A(f"v_mov_b32 v{VLB}, {L_B}")
    A(f"v_and_b32 v{VT+2}, 15, v2")
    pv_masks(VM, VT + 2, VT)
    for k in (1, 2, 3):
        A(f"s_mov_b32 s{38+2*k}, 0x{(0x11111111 << k) & 0xffffffff:08x}")
        A(f"s_mov_b32 s{39+2*k}, 0x{(0x11111111 << k) & 0xffffffff:08x}")
    A(f"v_mov_b32 v{VMAX}, 0xff800000")
    for r in range(4):
        A(f"v_mov_b32 v{VACC+r}, 0")
    A(f"v_lshl_add_u32 v{VT+3}, v{VT+2}, 4, v{VLB}")
    lds_spin("L_qwait", VLB, O_CNT + C_Q, VT, 1)
    A(f"ds_read_b128 {vr(VQ,4)}, v{VT+3} offset:{O_Q}")
    A("s_mov_b32 s34, 16")
    stamp(2)
    A("s_waitcnt lgkmcnt(0)")

    Lb("L_kloop")
    A("s_add_u32 s29, s29, 65536")
    tile_offsets()
    A("s_cmp_eq_u32 s34, 1")
    A("s_cselect_b32 s16, s12, s16")
    A("s_cselect_b32 s17, s13, s17")

    def red_a(i):
        j = i & 3
        dst = VA0 if j < 2 else VA1
        bm = "0x3" if (j & 1) == 0 else "0xc"
        p = VP + (i & 1)
        A(f"v_add_f32_dpp v{dst}, v{p}, v{p} row_ror:8 row_mask:0xf bank_mask:{bm}")

    def red_b(which):
        src = VA0 if which == 0 else VA1
        bm = "0x5" if which == 0 else "0xa"
        A(f"v_add_f32_dpp v{VB}, v{src}, v{src} row_half_mirror row_mask:0xf bank_mask:{bm}")

    def red_c():
        A(f"v_add_f32_dpp v{VC}, v{VB}, v{VB} quad_perm:[1,0,3,2] {DPP_ALL}")

    def red_d(k):
        dst = VS if k == 0 else VB
        A(f"v_add_f32_dpp v{dst}, v{VC}, v{VC} quad_perm:[2,3,0,1] {DPP_ALL}")

    def red_e(k):
        if k:
            A(f"v_cndmask_b32 v{VS}, v{VS}, v{VB}, s[{38+2*k}:{39+2*k}]")

    for i in range(16):
        k, j = i >> 2, i & 3
        p = VP + (i & 1)
        R = RING + 4 * i
        A(f"v_dot2_f32_bf16 v{p}, v{R}, v{VQ}, 0")
        A(f"v_dot2_f32_bf16 v{p}, v{R+1}, v{VQ+1}, v{p}")
        if i > 0:
            red_a(i - 1)
        A(f"v_dot2_f32_bf16 v{p}, v{R+2}, v{VQ+2}, v{p}")
        if k > 0:
            if j == 0:
                red_b(0)
            elif j == 1:
                red_b(1)
            elif j == 2:
                red_c()
            else:
                red_d(k - 1)
        A(f"v_dot2_f32_bf16 v{p}, v{R+3}, v{VQ+3}, v{p}")
        if k > 0 and j == 3:
            red_e(k - 1)
        A(f"s_waitcnt vmcnt({D-1})")
        ring_load(i)
    rot = [f"v_mov_b32 v{VE+u}, v{VE+u+1}" for u in range(15)]
    A(rot.pop(0))
    red_a(15)
    red_b(0)
    A(rot.pop(0))
    red_b(1)
    A(rot.pop(0)); A(rot.pop(0))
    red_c()
    A(rot.pop(0)); A(rot.pop(0))
    red_d(3)
    red_e(3)
    bfround(VS, VS)
    A(f"v_mul_f32 v{VS}, {f32(128 ** -0.5)}, v{VS}")
    for s in rot:
        A(s)
    bfround(VE + 15, VS)
    A(f"v_max_f32 v{VMAX}, v{VMAX}, v{VE+15}")
    A("s_sub_u32 s34, s34, 1")
    A("s_cmp_lg_u32 s34, 0")
    A("s_cbranch_scc1 L_kloop")
    stamp(3)

    allreduce_row("v_max_f32", VMAX)
    swap_reduce("v_max_f32", VMAX, VT, 16)
    swap_reduce("v_max_f32", VMAX, VT, 32)
    for u in range(16):
        A(f"v_sub_f32 v{VE+u}, v{VE+u}, v{VMAX}")
    for u in range(16):
        A(f"v_mul_f32 v{VE+u}, {f32(LOG2E)}, v{VE+u}")
    for u in range(16):
        A(f"v_exp_f32 v{VE+u}, v{VE+u}")
    A(f"v_add_f32 v{VS}, v{VE}, v{VE+1}")
    for u in range(2, 16):
        A(f"v_add_f32 v{VS}, v{VS}, v{VE+u}")
    A(f"s_lshl_b32 s3, s28, 9")
    A(f"v_lshl_add_u32 v{VT+2}, v2, 2, v{VLB}")
    A(f"v_add_u32 v{VT+2}, s3, v{VT+2}")
    A(f"ds_write_b32 v{VT+2}, v{VE+14} offset:{O_E}")
    A(f"ds_write_b32 v{VT+2}, v{VE+15} offset:{O_E+256}")
    allreduce_row("v_add_f32", VS)
    swap_reduce("v_add_f32", VS, VT, 16)
    swap_reduce("v_add_f32", VS, VT, 32)
    A(f"s_lshl_b32 s3, s28, 3")
    A(f"v_add_u32 v{VT+2}, s3, v{VLB}")
    A(f"ds_write_b32 v{VT+2}, v{VMAX} offset:{O_ST}")
    A(f"ds_write_b32 v{VT+2}, v{VS} offset:{O_ST+4}")
    A("s_waitcnt lgkmcnt(0)")
    A("s_barrier")
    softmax_factor(VLB, VT, VS, VMAX)
    for u in range(14):
        A(f"v_mul_f32 v{VE+u}, v{VE+u}, v{VS}")
    for u in range(14):
        A(f"v_cvt_pk_bf16_f32 v{VE+u}, v{VE+u}, v{VE+u}")
    A("s_mov_b32 s34, 14")
    stamp(4)

    def build_a(i, vp, vm, vao):
        for r in range(4):
            A(f"v_and_b32_dpp v{vao+4*(i&1)+r}, v{vp}, v{vm+r} row_newbcast:{cl(i)} {DPP_ALL}")

    Lb("L_vloop")
    A("s_add_u32 s29, s29, 65536")
    tile_offsets()
    A("s_cmp_eq_u32 s34, 1")
    A("s_cselect_b32 s18, 0, s18")
    build_a(0, VE, VM, VAO)
    for i in range(16):
        if i < 15:
            build_a(i + 1, VE, VM, VAO)
        else:
            for u in range(13):
                A(f"v_mov_b32 v{VE+u}, v{VE+u+1}")
        A(f"v_mfma_f32_16x16x32_bf16 {vr(VACC,4)}, {vr(VAO+4*(i&1),4)}, {vr(RING+4*i,4)}, {vr(VACC,4)}")
        A(f"s_waitcnt vmcnt({D-1})")
        ring_load(i)
    A("s_sub_u32 s34, s34, 1")
    A("s_cmp_lg_u32 s34, 0")
    A("s_cbranch_scc1 L_vloop")
    A(f"v_and_b32 v{VT}, 15, v2")
    A(f"v_lshrrev_b32 v{VT+1}, 4, v2")
    A(f"v_lshlrev_b32 v{VT}, 5, v{VT}")
    A(f"v_lshl_add_u32 v{VT}, v{VT+1}, 4, v{VT}")
    A("s_lshl_b32 s3, s28, 9")
    A(f"v_add3_u32 v{VT}, v{VT}, s3, v{VLB}")
    A("s_mov_b32 exec_hi, 0")
    A(f"ds_write_b128 v{VT}, {vr(VACC,4)} offset:{O_OP}")
    A("s_mov_b32 exec_hi, -1")
    A("s_waitcnt lgkmcnt(0)")
    stamp(5)
    A("s_barrier")
    A("s_branch L_fin")

    HC, HG, HLB = 4, 5, 6
    HVB, HVS = 7, 8
    HPM, HPR = 9, 10
    HOP = 11
    HGV, HXV, HOA = 12, 13, 14
    HT = 226
    HD = 16
    HA = 232
    HF = 64
    HF2 = 208
    SX, SWQ, SWO, SW1, SB1, SW2, SB2, SOUT, SDBG, SWS = 36, 40, 42, 44, 46, 48, 50, 52, 54, 56

    def srd(n, base, off_s, size):
        if off_s is None:
            A(f"s_mov_b32 s{n}, s{base}")
            A(f"s_mov_b32 s{n+1}, s{base+1}")
        else:
            A(f"s_add_u32 s{n}, s{base}, {off_s}")
            A(f"s_addc_u32 s{n+1}, s{base+1}, 0")
        A(f"s_mov_b32 s{n+2}, {size}")
        A(f"s_mov_b32 s{n+3}, 0x20000")

    Lb("L_helper")
    A(f"s_load_dwordx2 s[{SX}:{SX+1}], s[0:1], 0")
    A(f"s_load_dwordx4 s[{SWQ}:{SWQ+3}], s[0:1], 24")
    A(f"s_load_dwordx8 s[{SW1}:{SW1+7}], s[0:1], 48")
    A(f"s_load_dwordx4 s[{SOUT}:{SOUT+3}], s[0:1], 80")
    A(f"s_load_dwordx2 s[{SWS}:{SWS+1}], s[0:1], 96")
    if hprio:
        A(f"s_setprio {hprio}")
    A("s_sub_u32 s28, s28, 4")
    A("s_and_b32 s29, s2, 31")
    A("s_lshr_b32 s30, s2, 5")
    A("s_and_b32 s31, s2, 7")
    A("s_lshl_b32 s31, s31, 2")
    A("s_lshr_b32 s3, s29, 3")
    A("s_add_u32 s31, s31, s3")
    A(f"v_and_b32 v{HC}, 15, v2")
    A(f"v_lshrrev_b32 v{HG}, 4, v2")
    A(f"v_mov_b32 v{HLB}, {L_B}")
    for r in range(4):
        A(f"v_mov_b32 v{HD+r}, 0")
    A(f"v_subrev_u32 v{HT}, 256, v0")
    A(f"v_lshl_add_u32 v{HT+1}, v{HT}, 4, v{HLB}")
    A(f"ds_write_b128 v{HT+1}, {vr(HD,4)} offset:{O_OP}")
    A(f"v_lshl_add_u32 v{HT+1}, v{HC}, 2, v{HLB}")
    A(f"ds_write_b32 v{HT+1}, v{HD} offset:{O_CNT}")
    A(f"v_mul_u32_u24 v{HT}, 36, v{HT}")
    A("s_mov_b32 s58, 0x05040100")
    A("s_mov_b32 s59, 0x07060302")
    A("s_waitcnt lgkmcnt(0)")
    XR = 52
    srd(8, SX, None, 9216)
    A(f"buffer_load_dwordx4 {vr(XR,4)}, v{HT}, s[8:11], 0 offen")
    A(f"buffer_load_dwordx4 {vr(XR+4,4)}, v{HT}, s[8:11], 0 offen offset:16")
    A(f"buffer_load_dword v{XR+8}, v{HT}, s[8:11], 0 offen offset:32")
    A("s_cmp_eq_u32 s28, 0")
    A(f"s_cselect_b32 s12, s{SWQ}, s{SW1}")
    A(f"s_cselect_b32 s13, s{SWQ+1}, s{SW1+1}")
    A(f"s_mov_b32 s14, {576*9216}")
    A(f"s_cselect_b32 s14, {576*8192}, s14")
    A("s_mov_b32 s15, 0x20000")
    A("s_movk_i32 s32, 9216")
    A("s_cselect_b32 s32, 8192, s32")
    A("s_mul_i32 s33, s31, 288")
    A("s_lshl_b32 s3, s29, 8")
    A("s_cmp_eq_u32 s28, 0")
    A("s_cselect_b32 s33, s3, s33")
    A("s_mul_i32 s3, s32, 72")
    A("s_mul_i32 s3, s3, s30")
    A("s_add_u32 s33, s33, s3")
    A("s_mul_i32 s3, s32, 18")
    A(f"v_mul_lo_u32 v{HT+1}, s3, v{HG}")
    L1 = HF
    A("s_cmp_ge_u32 s28, 2")
    A("s_cbranch_scc1 L_h_ld_narrow")
    A(f"v_lshl_add_u32 v{HT+1}, v{HC}, 4, v{HT+1}")
    for e in range(18):
        A(f"buffer_load_dwordx4 {vr(L1+4*e,4)}, v{HT+1}, s[12:15], s33 offen {wpol}")
        A("s_add_u32 s33, s33, s32")
    A("s_barrier")
    A("s_waitcnt vmcnt(18)")
    A("s_branch L_h_ln")
    Lb("L_h_ld_narrow")
    A("s_cmp_eq_u32 s28, 3")
    A("s_cbranch_scc1 L_h_ld_none")
    A(f"v_lshl_add_u32 v{HT+1}, v{HC}, 1, v{HT+1}")
    for e in range(18):
        A(f"buffer_load_ushort v{L1+e}, v{HT+1}, s[12:15], s33 offen offset:256 {wpol}")
        A("s_add_u32 s33, s33, s32")
    A("s_barrier")
    A("s_waitcnt vmcnt(18)")
    A("s_branch L_h_ln")
    Lb("L_h_ld_none")
    if fixglobal:
        A("s_not_b32 s76, s74" if fixglobal == 1 else "s_mov_b32 s76, s74")
        A("v_mov_b32 v15, s76")
        A("v_mov_b32 v14, 252")
        A("s_mov_b64 exec, 1")
        A(f"global_atomic_umax v14, v15, s[{SDBG}:{SDBG+1}]")
        A("s_mov_b64 exec, -1")
    A("s_barrier")
    A("s_waitcnt vmcnt(0)")

    Lb("L_h_ln")
    stamp(1)
    XF = HD
    SUM, T1, MEAN = 34, 35, 36
    for d in range(9):
        A(f"v_lshlrev_b32 v{XF+2*d}, 16, v{XR+d}")
        A(f"v_and_b32 v{XF+2*d+1}, 0xffff0000, v{XR+d}")
    A(f"v_add_f32 v{SUM}, v{XF}, v{XF+1}")
    for e in range(2, 18):
        A(f"v_add_f32 v{SUM}, v{SUM}, v{XF+e}")
    allreduce_row("v_add_f32", SUM)
    swap_reduce("v_add_f32", SUM, T1, 16)
    A(f"v_mul_f32 v{MEAN}, {f32(1/576)}, v{SUM}")
    A(f"v_mov_b32 v{SUM}, 0")
    for e in range(18):
        t = 38 + (e & 1)
        A(f"v_sub_f32 v{t}, v{XF+e}, v{MEAN}")
        A(f"v_fmac_f32 v{SUM}, v{t}, v{t}")
    allreduce_row("v_add_f32", SUM)
    swap_reduce("v_add_f32", SUM, T1, 16)
    A(f"v_mul_f32 v{SUM}, {f32(1/576)}, v{SUM}")
    bfround(MEAN, MEAN)
    bfround(SUM, SUM)
    A(f"v_add_f32 v{SUM}, {f32(1e-5)}, v{SUM}")
    bfround(SUM, SUM)
    A(f"v_sqrt_f32 v{SUM}, v{SUM}")
    A("s_nop 0")
    bfround(SUM, SUM)
    A(f"v_rcp_f32 v{SUM}, v{SUM}")
    for e in range(18):
        A(f"v_sub_f32 v{XF+e}, v{XF+e}, v{MEAN}")
    for d in range(9):
        A(f"v_cvt_pk_bf16_f32 v{XR+d}, v{XF+2*d}, v{XF+2*d+1}")
    for d in range(9):
        A(f"v_lshlrev_b32 v{XF+2*d}, 16, v{XR+d}")
        A(f"v_and_b32 v{XF+2*d+1}, 0xffff0000, v{XR+d}")
    for e in range(18):
        A(f"v_mul_f32 v{XF+e}, v{XF+e}, v{SUM}")
    for d in range(9):
        A(f"v_cvt_pk_bf16_f32 v{XR+d}, v{XF+2*d}, v{XF+2*d+1}")
    A(f"v_lshrrev_b32 v{HT}, 5, v2")
    A("s_lshl_b32 s3, s28, 1")
    A(f"v_add_u32 v{HT}, s3, v{HT}")
    A(f"v_and_b32 v{HT+1}, 3, v2")
    A(f"v_lshl_add_u32 v{HT}, v{HT}, 2, v{HT+1}")
    A(f"v_mul_u32_u24 v{HT}, 48, v{HT}")
    A(f"v_add_u32 v{HT}, v{HT}, v{HLB}")
    A(f"v_bfe_u32 v{HT+1}, v2, 2, 3")
    A(f"v_mov_b32 v{HT+2}, 1")
    A(f"v_cmp_eq_u32 vcc, s30, v{HT+1}")
    A("s_and_saveexec_b64 s[34:35], vcc")
    A(f"ds_write_b128 v{HT}, {vr(XR,4)} offset:{O_XN}")
    A(f"ds_write_b128 v{HT}, {vr(XR+4,4)} offset:{O_XN+16}")
    A(f"ds_write_b32 v{HT}, v{XR+8} offset:{O_XN+32}")
    A("s_mov_b64 exec, 1")
    A("s_waitcnt lgkmcnt(0)")
    A(f"ds_add_u32 v{HLB}, v{HT+2} offset:{O_CNT+C_LN}")
    A("s_mov_b64 exec, -1")
    A(f"v_mul_u32_u24 v{HVB}, {32*1152}, v{HG}")
    A("s_lshl_b32 s3, s28, 5")
    A(f"v_lshl_add_u32 v{HVS}, v{HC}, 1, v{HVB}")
    A(f"v_add_u32 v{HVS}, s3, v{HVS}")
    A(f"v_add_u32 v{HVS}, 1024, v{HVS}")
    A("s_lshl_b32 s3, s28, 8")
    A(f"v_lshl_add_u32 v{HVB}, v{HC}, 4, v{HVB}")
    A(f"v_add_u32 v{HVB}, s3, v{HVB}")
    A(f"v_lshlrev_b32 v{HPM}, 5, v{HC}")
    A(f"v_lshl_add_u32 v{HPM}, v{HG}, 4, v{HPM}")
    A("s_lshl_b32 s3, s28, 9")
    A(f"v_add_u32 v{HPM}, s3, v{HPM}")
    A(f"v_mov_b32 v{HT}, 0x10000000")
    A(f"v_cmp_gt_u32 vcc, 2, v{HG}")
    A("s_lshl_b32 s3, s28, 6")
    A("s_add_u32 s3, s3, 2048")
    A(f"v_cndmask_b32 v{HPM}, v{HT}, v{HPM}, vcc")
    A(f"v_lshl_add_u32 v{HPR}, v{HC}, 2, s3")
    A(f"v_cmp_eq_u32 vcc, 0, v{HG}")
    A(f"v_lshl_add_u32 v{HOP}, v2, 3, v{HLB}")
    A("s_mov_b32 s60, 0xffff0000")
    A(f"v_cndmask_b32 v{HPR}, v{HT}, v{HPR}, vcc")
    A("s_mov_b32 s61, 0xffff0000")
    A("s_cmp_eq_u32 s28, 3")
    A("s_cbranch_scc1 L_h_w2")

    A(f"s_mul_i32 s3, s29, {8*8*1152}")
    A(f"s_add_u32 s3, s3, {WS_P1}") if WS_P1 else None
    srd(16, SWS, "s3", 8 * 8 * 1152)
    A(f"v_and_b32 v{HT}, 7, v{HC}")
    A(f"v_lshl_add_u32 v{HT+1}, v{HT}, 2, v{HG}")
    A(f"v_mul_u32_u24 v{HT+1}, 48, v{HT+1}")
    A(f"v_add_u32 v{HT+1}, v{HT+1}, v{HLB}")
    A(f"v_mul_u32_u24 v{HT+3}, 9216, v{HT}")
    A(f"v_lshl_add_u32 v{HT+3}, v{HG}, 4, v{HT+3}")
    A("s_mul_i32 s33, s30, 1152")
    A("s_lshl_b32 s3, s28, 9")
    A("s_add_u32 s33, s33, s3")
    A(f"v_cmp_le_u32 s[34:35], 8, v{HC}")
    lds_spin("L_h_lnwait", HLB, O_CNT + C_LN, HT + 4, 4, sleep=0)
    A(f"ds_read_b128 {vr(XR,4)}, v{HT+1} offset:{O_XN}")
    A(f"ds_read_b128 {vr(XR+4,4)}, v{HT+1} offset:{O_XN+16}")
    A(f"ds_read_b32 v{XR+8}, v{HT+1} offset:{O_XN+32}")
    A(f"v_mov_b32 v{XR+9}, 0")
    stamp(2)
    A("s_cmp_eq_u32 s28, 2")
    A("s_cbranch_scc1 L_h_s1_narrow")
    W0 = HA
    for s in range(2):
        A(f"s_waitcnt vmcnt({10 - 8*s}) lgkmcnt(0)")
        for t in range(9):
            if t < 8:
                for r in range(4):
                    lo = L1 + 4 * (8 * s + 2 * r) + (t >> 1)
                    A(f"v_perm_b32 v{W0+4*(t&1)+r}, v{lo+4}, v{lo}, s{58+(t&1)}")
            else:
                A("s_nop 1")
            if t > 0:
                tt = t - 1
                c_in = "0" if s == 0 else vr(HD + 4 * tt, 4)
                A(f"v_mfma_f32_16x16x32_bf16 {vr(HD+4*tt,4)}, {vr(W0+4*(tt&1),4)}, {vr(XR+4*s,4)}, {c_in}")
    A("s_waitcnt vmcnt(0)")
    W2 = HA
    A("s_nop 1")
    for t in range(8):
        lo = L1 + 4 * 16 + (t >> 1)
        A(f"v_perm_b32 v{W2+2*t}, v{lo+4}, v{lo}, s{58+(t&1)}")
        A(f"v_mov_b32 v{W2+2*t+1}, 0")
    A("s_nop 1")
    for t in range(8):
        A(f"v_mfma_f32_16x16x16_bf16 {vr(HD+4*t,4)}, {vr(W2+2*t,2)}, {vr(XR+8,2)}, {vr(HD+4*t,4)}")
    A(f"v_lshrrev_b32 v{HT+4}, 3, v{HC}")
    A(f"v_lshl_add_u32 v{HT+3}, v{HT+4}, 6, v{HT+3}")
    A("s_nop 7")
    for tt in range(0, 8, 2):
        for r in range(4):
            A(f"v_cndmask_b32 v{HD+4*tt+r}, v{HD+4*tt+r}, v{HD+4*tt+4+r}, s[34:35]")
        A(f"buffer_store_dwordx4 {vr(HD+4*tt,4)}, v{HT+3}, s[16:19], s33 offen offset:{tt*64} {stpol}")
    A("s_branch L_h_s1_done")
    Lb("L_h_s1_narrow")
    A("s_waitcnt vmcnt(0) lgkmcnt(0)")
    for d in range(9):
        A(f"v_lshl_or_b32 v{HA+d}, v{L1+2*d+1}, 16, v{L1+2*d}")
    A(f"v_mov_b32 v{HA+9}, 0")
    A(f"v_mov_b32 v{HT+4}, 0x10000000")
    A(f"v_cndmask_b32 v{HT+3}, v{HT+3}, v{HT+4}, s[34:35]")
    A(f"v_mfma_f32_16x16x32_bf16 {vr(HD,4)}, {vr(HA,4)}, {vr(XR,4)}, 0")
    A(f"v_mfma_f32_16x16x32_bf16 {vr(HD,4)}, {vr(HA+4,4)}, {vr(XR+4,4)}, {vr(HD,4)}")
    A("s_nop 7")
    A(f"v_mfma_f32_16x16x16_bf16 {vr(HD,4)}, {vr(HA+8,2)}, {vr(XR+8,2)}, {vr(HD,4)}")
    A("s_nop 7")
    A(f"buffer_store_dwordx4 {vr(HD,4)}, v{HT+3}, s[16:19], s33 offen {stpol}")
    Lb("L_h_s1_done")
    stamp(3)
    A("s_and_b32 s3, s29, 1")
    A("s_lshl_b32 s3, s3, 7")
    A("s_lshr_b32 s33, s29, 1")
    A("s_lshl_b32 s33, s33, 2")
    A("s_add_u32 s3, s3, s33")
    A(f"v_mov_b32 v{HT}, s3")
    A("s_mov_b64 exec, 1")
    A("s_waitcnt vmcnt(0)")
    A(f"ds_add_rtn_u32 v{HT+4}, v{HLB}, v{HT+2} offset:{O_CNT+C_S1}")
    A("s_waitcnt lgkmcnt(0)")
    A(f"v_readfirstlane_b32 s3, v{HT+4}")
    A("s_cmp_lg_u32 s3, 2")
    A("s_cbranch_scc1 L_h_s1_nosig")
    A(f"global_atomic_add v{HT}, v{HT+2}, s[{SDBG}:{SDBG+1}]")
    Lb("L_h_s1_nosig")
    A("s_mov_b64 exec, -1")
    stamp(4)
    A("s_cmp_lg_u32 s28, 0")
    A("s_cbranch_scc1 L_h_w2")

    GB = 52
    A(f"v_and_b32 v{HT+4}, 3, v2")
    A(f"v_bfe_u32 v{HT+5}, v2, 2, 3")
    A(f"v_lshl_add_u32 v{HT+4}, v{HT+4}, 5, v{HT+5}")
    A("s_mul_i32 s33, s31, 288")
    srd(12, SB1, "s33", 288)
    A(f"v_lshlrev_b32 v{HT+5}, 1, v{HT+4}")
    for r in range(4):
        A(f"buffer_load_ushort v{GB+r}, v{HT+5}, s[12:15], 0 offen offset:{16*r}")
    A(f"v_lshlrev_b32 v{HT+6}, 1, v{HC}")
    A(f"buffer_load_ushort v{GB+4}, v{HT+6}, s[12:15], 0 offen offset:256")
    A(f"v_lshlrev_b32 v{HT+7}, 4, v2")
    A(f"v_lshlrev_b32 v{HT+8}, 2, v{HC}")
    A("s_mul_i32 s33, s30, 9216")
    for _ in range(sleep0):
        A("s_sleep 32")
    Lb("L_h_gpoll")
    A(f"global_load_dword v{HT+9}, v{HT}, s[{SDBG}:{SDBG+1}] sc1")
    A("s_waitcnt vmcnt(0)")
    A(f"v_readfirstlane_b32 s3, v{HT+9}")
    A("s_cmp_ge_u32 s3, 8")
    A("s_cbranch_scc1 L_h_gpoll_ok")
    if fakepoll:
        A("s_branch L_h_gpoll_ok")
    if sleep1:
        A(f"s_sleep {sleep1}")
    A("s_sub_u32 s69, s69, 16")
    A("s_cbranch_scc0 L_h_gpoll")
    A("s_mov_b32 s69, 0")
    Lb("L_h_gpoll_ok")
    stamp(5)
    GL = HF
    for p in range(8):
        A(f"buffer_load_dwordx4 {vr(GL+4*p,4)}, v{HT+7}, s[16:19], s33 offen {ldpol}")
        A(f"buffer_load_dword v{GL+32+p}, v{HT+8}, s[16:19], s33 offen offset:1024 {ldpol}")
        A("s_add_u32 s33, s33, 1152")
    A(f"v_add_u32 v{HT+5}, v{HT+5}, v{HLB}")
    A(f"v_lshl_add_u32 v{HT+4}, v{HT+4}, 2, v{HLB}")
    A(f"v_add_u32 v{HT+6}, v{HT+6}, v{HLB}")
    for p in range(1, 8):
        A(f"s_waitcnt vmcnt({14-2*p})")
        for r in range(4):
            A(f"v_add_f32 v{GL+r}, v{GL+r}, v{GL+4*p+r}")
        A(f"v_add_f32 v{GL+32}, v{GL+32}, v{GL+32+p}")
    A(f"v_mov_b32 v{GL+4}, v{GL+32}")
    for r in range(5):
        A(f"v_cvt_pk_bf16_f32 v{GL+r}, v{GL+r}, v{GL+r}")
    A("s_mov_b32 exec_hi, 0")
    for r in range(4):
        A(f"ds_write_b16 v{HT+5}, v{GL+r} offset:{O_Q+16*r}")
    A("s_waitcnt lgkmcnt(0)")
    A(f"ds_write_b32 v{HLB}, v{HT+2} offset:{O_CNT+C_Q}")
    A("s_mov_b32 exec_hi, -1")
    stamp(6)
    c1 = -2.0 * LOG2E * 0.7978845608028654
    for r in range(5):
        A(f"v_and_b32 v{GL+r}, 0xffff0000, v{GL+r}")
        A(f"v_lshlrev_b32 v{GB+r}, 16, v{GB+r}")
        A(f"v_add_f32 v{GL+r}, v{GL+r}, v{GB+r}")
        bfround(GL + r, GL + r)
        A(f"v_mul_f32 v{GB+r}, v{GL+r}, v{GL+r}")
        A(f"v_mov_b32 v{GL+8}, {f32(c1)}")
        A(f"v_fmac_f32 v{GL+8}, {f32(c1*0.044715)}, v{GB+r}")
        A(f"v_mul_f32 v{GB+r}, v{GL+8}, v{GL+r}")
        A(f"v_exp_f32 v{GB+r}, v{GB+r}")
        A("s_nop 0")
        A(f"v_add_f32 v{GB+r}, 1.0, v{GB+r}")
        A(f"v_rcp_f32 v{GB+r}, v{GB+r}")
        A("s_nop 0")
        A(f"v_mul_f32 v{GL+r}, v{GL+r}, v{GB+r}")
        bfround(GL + r, GL + r)
    A("s_mov_b32 exec_lo, 0")
    for r in range(4):
        A(f"ds_write_b32 v{HT+4}, v{GL+r} offset:{O_OP+32*r}")
    A(f"ds_write_b16_d16_hi v{HT+6}, v{GL+4} offset:{O_HR}")
    A("s_waitcnt lgkmcnt(0)")
    A(f"ds_write_b32 v{HLB}, v{HT+2} offset:{O_CNT+C_H}")
    A("s_mov_b32 exec_lo, -1")

    Lb("L_h_w2")
    if hprio:
        A("s_setprio 0")
    A(f"s_mul_i32 s3, s31, {144*1152}")
    srd(20, SW2, "s3", 144 * 1152)
    ST = HD
    A(f"v_mul_u32_u24 v{HT}, {28*1152}, v{HG}")
    A(f"v_sub_u32 v{HT+1}, v{HVS}, v{HT}")
    A(f"v_sub_u32 v{HT}, v{HVB}, v{HT}")
    A(f"s_mov_b32 s33, {128*1152}")
    for e in range(4):
        A(f"buffer_load_dwordx4 {vr(ST+4*e,4)}, v{HT}, s[20:23], s33 offen offset:{e*1152} {wpol}")
        A(f"buffer_load_ushort v{ST+16+e}, v{HT+1}, s[20:23], s33 offen offset:{e*1152} {wpol}")
    A("s_waitcnt vmcnt(0)")
    for r in range(2):
        for t in range(8):
            lo = ST + 8 * r + (t >> 1)
            A(f"v_perm_b32 v{HF2+2*t+r}, v{lo+4}, v{lo}, s{58+(t&1)}")
        A(f"v_lshl_or_b32 v{HF2+16+r}, v{ST+17+2*r}, 16, v{ST+16+2*r}")
    A("s_call_b64 s[62:63], L_sub_load")
    stamp(7)
    lds_spin("L_h_hwait", HLB, O_CNT + C_H, HT, 1)
    A(f"v_lshl_add_u32 v{HT}, v{HG}, 3, v{HLB}")
    A(f"ds_read_b64 {vr(HT+2,2)}, v{HT} offset:{O_HR}")
    A(f"s_mul_i32 s3, s2, 2304")
    A(f"s_add_u32 s3, s3, {WS_G}")
    srd(24, SWS, "s3", 2304)
    A("s_waitcnt lgkmcnt(0)")
    for t in range(9):
        A(f"v_mfma_f32_16x16x16_bf16 {vr(HD+4*t,4)}, {vr(HT+2,2)}, {vr(HF2+2*t,2)}, 0")
    A("s_call_b64 s[62:63], L_sub_gemv")
    A(f"s_add_u32 s24, s24, {WS_Y-WS_G}")
    A("s_addc_u32 s25, s25, 0")
    for r in range(4):
        A(f"v_mov_b32 v{HT+2+r}, -1")
    A(f"buffer_store_dwordx4 {vr(HT+2,4)}, v{HPM}, s[24:27], 0 offen {stpol}")
    A(f"buffer_store_dword v{HT+2}, v{HPR}, s[24:27], 0 offen {stpol}")
    A("s_lshl_b32 s3, s30, 2")
    A("s_add_u32 s3, s3, 64")
    A(f"v_mov_b32 v15, s3")
    A(f"v_mov_b32 v{HT}, 1")
    A("s_mov_b64 exec, 1")
    A("s_waitcnt vmcnt(0)")
    A(f"ds_add_rtn_u32 v{HT+1}, v{HLB}, v{HT} offset:{O_CNT+C_S2}")
    A("s_waitcnt lgkmcnt(0)")
    A(f"v_readfirstlane_b32 s3, v{HT+1}")
    A("s_cmp_lg_u32 s3, 3")
    A("s_cbranch_scc1 L_h_s2_nosig")
    A(f"global_atomic_add v15, v{HT}, s[{SDBG}:{SDBG+1}]")
    Lb("L_h_s2_nosig")
    A("s_mov_b64 exec, -1")
    stamp(8)
    A(f"s_mul_i32 s3, s29, {128*1152}")
    srd(20, SWO, "s3", 128 * 1152)
    A("s_call_b64 s[62:63], L_sub_load")
    stamp(9)
    PM, PAO, PACC, PE, PV_ = 208, 212, 220, 224, 16
    pv_masks(PM, HC, HT)
    for r in range(4):
        A(f"v_mov_b32 v{PACC+r}, 0")
    A("s_barrier")
    A("s_lshl_b32 s3, s28, 3")
    A(f"v_add_u32 v{HT}, s3, v{HLB}")
    A(f"ds_read_b32 v{HT+1}, v{HT} offset:{O_ST}")
    A("s_lshl_b32 s3, s28, 9")
    A(f"v_lshl_add_u32 v{HT}, v2, 2, v{HLB}")
    A(f"v_add_u32 v{HT}, s3, v{HT}")
    A(f"ds_read_b32 v{PE}, v{HT} offset:{O_E}")
    A(f"ds_read_b32 v{PE+1}, v{HT} offset:{O_E+256}")
    softmax_factor(HLB, HA, HT, HT + 1)
    for u in range(2):
        A(f"v_mul_f32 v{PE+u}, v{PE+u}, v{HT}")
        A(f"v_cvt_pk_bf16_f32 v{PE+u}, v{PE+u}, v{PE+u}")
    A("s_lshl_b32 s3, s28, 15")
    A(f"v_lshl_add_u32 v{HT}, v2, 4, s3")
    A("s_mov_b32 s34, 2")
    Lb("L_h_pv")
    for half in range(2):
        for i in range(8):
            A(f"ds_read_b128 {vr(PV_+4*i,4)}, v{HT} offset:{(8*half+i)*1024}")
        for i in range(8):
            build_a(8 * half + i, PE, PM, PAO)
            A(f"s_waitcnt lgkmcnt({7-i})")
            A("s_nop 0")
            A(f"v_mfma_f32_16x16x32_bf16 {vr(PACC,4)}, {vr(PAO+4*(i&1),4)}, {vr(PV_+4*i,4)}, {vr(PACC,4)}")
    A(f"v_mov_b32 v{PE}, v{PE+1}")
    A(f"v_add_u32 v{HT}, 16384, v{HT}")
    A("s_sub_u32 s34, s34, 1")
    A("s_cmp_lg_u32 s34, 0")
    A("s_cbranch_scc1 L_h_pv")
    A(f"v_lshlrev_b32 v{HT}, 5, v{HC}")
    A(f"v_lshl_add_u32 v{HT}, v{HG}, 4, v{HT}")
    A("s_lshl_b32 s3, s28, 9")
    A(f"v_add3_u32 v{HT}, v{HT}, s3, v{HLB}")
    A("s_mov_b32 exec_hi, 0")
    A(f"ds_write_b128 v{HT}, {vr(PACC,4)} offset:{O_OP+2048}")
    A("s_mov_b32 exec_hi, -1")
    stamp(10)
    A("s_cmp_eq_u32 s28, 3")
    A("s_cselect_b32 s64, 1, 0")
    A("s_cmp_lt_u32 s29, 18")
    A("s_cselect_b32 s64, s64, 0")
    GA, GS = 208, 224
    A(f"s_mul_i32 s3, s30, {32*2304}")
    A(f"s_add_u32 s3, s3, {WS_G}")
    srd(12, SWS, "s3", 32 * 2304)
    A(f"v_lshrrev_b32 v{HT}, 3, v2")
    A(f"v_mul_u32_u24 v{HT}, 2304, v{HT}")
    A(f"v_and_b32 v{HT+1}, 7, v2")
    A(f"v_lshl_add_u32 v{HT}, v{HT+1}, 4, v{HT}")
    A("s_lshl_b32 s3, s29, 7")
    A(f"v_add_u32 v{GS}, s3, v{HT}")
    A(f"s_mov_b32 s65, {8*2304}")
    A(f"s_mov_b32 s66, {16*2304}")
    A(f"s_mov_b32 s67, {24*2304}")
    A(f"v_bfe_u32 v{HT+2}, v2, 4, 1")
    A(f"v_lshrrev_b32 v{HT+3}, 5, v2")
    A(f"v_lshl_add_u32 v{HT+2}, v{HT+2}, 1, v{HT+3}")
    A(f"v_lshl_add_u32 v{HT+2}, v{HT+1}, 2, v{HT+2}")
    A("s_lshl_b32 s3, s29, 5")
    A(f"v_add_lshl_u32 v{HOA}, v{HT+2}, s3, 1")
    A("s_mul_i32 s68, s30, 1152")
    srd(16, SOUT, None, 9216)
    A("s_cmp_eq_u32 s64, 0")
    A("s_cbranch_scc1 L_h_tail")
    srd(20, SB2, None, 1152)
    A(f"buffer_load_ushort v{HXV}, v{HOA}, s[8:11], s68 offen")
    A(f"buffer_load_ushort v{HGV}, v{HOA}, s[20:23], 0 offen")
    Lb("L_h_bpoll")
    A(f"global_load_dword v{HT}, v15, s[{SDBG}:{SDBG+1}] sc1")
    A("s_waitcnt vmcnt(0)")
    A(f"v_readfirstlane_b32 s3, v{HT}")
    A("s_cmp_ge_u32 s3, 32")
    A("s_cbranch_scc1 L_h_bpoll_ok")
    A("s_sub_u32 s69, s69, 16")
    A("s_cbranch_scc0 L_h_bpoll")
    A("s_mov_b32 s69, 0")
    Lb("L_h_bpoll_ok")
    A("s_call_b64 s[62:63], L_sub_gather")
    A(f"v_lshlrev_b32 v{HXV}, 16, v{HXV}")
    A(f"v_lshlrev_b32 v{HGV}, 16, v{HGV}")
    A(f"v_add_f32 v{HGV}, v{HGV}, v{HT}")
    bfround(HGV, HGV)
    A(f"v_mul_f32 v{HT}, {f32(-LOG2E)}, v{HGV}")
    A(f"v_exp_f32 v{HT}, v{HT}")
    A("s_nop 0")
    A(f"v_add_f32 v{HT}, 1.0, v{HT}")
    A(f"v_rcp_f32 v{HT}, v{HT}")
    A("s_nop 0")
    A(f"v_mul_f32 v{HGV}, v{HGV}, v{HT}")
    bfround(HGV, HGV)
    A(f"s_add_u32 s12, s12, {WS_Y-WS_G}")
    A("s_addc_u32 s13, s13, 0")
    A(f"v_mov_b32 v{HT}, 0x10000000")
    A(f"v_and_b32 v{HT+1}, 8, v2")
    A(f"v_cmp_eq_u32 vcc, 0, v{HT+1}")
    A("s_nop 1")
    A(f"v_cndmask_b32 v{HOA}, v{HT}, v{HOA}, vcc")
    Lb("L_h_tail")
    for r in range(36):
        A(f"v_mov_b32 v{HD+r}, 0")
    stamp(11)
    A("s_waitcnt lgkmcnt(0)")
    A("s_barrier")
    stamp(12)
    A("s_call_b64 s[62:63], L_sub_gemv")
    stamp(13)
    A("s_cmp_eq_u32 s64, 0")
    A("s_cbranch_scc1 L_fin")
    A("s_call_b64 s[62:63], L_sub_gather")
    A(f"v_mul_f32 v{HT}, v{HT}, v{HGV}")
    bfround(HT, HT)
    A(f"v_add_f32 v{HT}, v{HT}, v{HXV}")
    A(f"v_cvt_pk_bf16_f32 v{HT}, v{HT}, v{HT}")
    A(f"buffer_store_short v{HT}, v{HOA}, s[16:19], s68 offen")
    stamp(14)

    Lb("L_fin")
    if fixglobal:
        A("s_load_dwordx2 s[76:77], s[0:1], 88")
        A("v_mov_b32 v14, 252")
        A("s_waitcnt lgkmcnt(0)")
        A("global_load_dword v15, v14, s[76:77] sc1")
        A("s_waitcnt vmcnt(0)")
        A("v_readfirstlane_b32 s74, v15")
        if fixglobal == 1:
            A("s_not_b32 s74, s74")
    if fixdur:
        Lb("L_fix")
        A("s_memrealtime s[76:77]")
        A("s_waitcnt lgkmcnt(0)")
        A("s_sub_u32 s76, s76, s74")
        A(f"s_cmp_lt_u32 s76, {fixdur*100}")
        A("s_cbranch_scc1 L_fix")
    if stamps:
        A("s_waitcnt vmcnt(0)")
        stamp(15)
        A("s_getreg_b32 s70, hwreg(HW_REG_XCC_ID)")
        A(f"v_writelane_b32 v{VST}, s70, 16")
        A(f"s_add_u32 s72, s72, {WS_STAMP}")
        A("s_addc_u32 s73, s73, 0")
        A("s_lshl_b32 s3, s2, 11")
        A("v_lshlrev_b32 v0, 2, v0")
        A("v_add_u32 v0, s3, v0")
        A(f"global_store_dword v0, v{VST}, s[72:73]")
    Lb("L_end")
    A("s_endpgm")

    Lb("L_sub_load")
    ST = HD

    def issue_pair(n):
        sl = ST + 10 * (n & 1)
        A(f"s_mov_b32 s33, {2*n*1152}")
        A(f"buffer_load_dwordx4 {vr(sl,4)}, v{HVB}, s[20:23], s33 offen {wpol}")
        A(f"buffer_load_dwordx4 {vr(sl+4,4)}, v{HVB}, s[20:23], s33 offen offset:1152 {wpol}")
        if not nonarrow:
            A(f"buffer_load_ushort v{sl+8}, v{HVS}, s[20:23], s33 offen {wpol}")
            A(f"buffer_load_ushort v{sl+9}, v{HVS}, s[20:23], s33 offen offset:1152 {wpol}")

    issue_pair(0)
    issue_pair(1)
    for n in range(16):
        s, r = n >> 2, n & 3
        sl = ST + 10 * (n & 1)
        A(f"s_waitcnt vmcnt({(2 if nonarrow else 4) if n < 15 else 0})")
        for t in range(8):
            A(f"v_perm_b32 v{HF+36*s+4*t+r}, v{sl+4+(t>>1)}, v{sl+(t>>1)}, s{58+(t&1)}")
        A(f"v_lshl_or_b32 v{HF+36*s+32+r}, v{sl+9}, 16, v{sl+8}")
        if n + 2 < 16:
            issue_pair(n + 2)
    A("s_setpc_b64 s[62:63]")

    Lb("L_sub_gemv")
    OR = 208
    for k in range(8):
        A(f"ds_read_b64 {vr(OR+2*k,2)}, v{HOP} offset:{O_OP+512*k}")
    for k in range(1, 8):
        A(f"s_waitcnt lgkmcnt({7-k})")
        A(f"v_add_f32 v{OR}, v{OR}, v{OR+2*k}")
        A(f"v_add_f32 v{OR+1}, v{OR+1}, v{OR+2*k+1}")
    A(f"v_cvt_pk_bf16_f32 v{OR}, v{OR}, v{OR+1}")
    A("s_nop 1")
    bc = [f"v_mov_b32_dpp v{HA+n}, v{OR} row_newbcast:{n} {DPP_ALL}" for n in range(16)]
    for n in range(6):
        A(bc.pop(0))
    for s in range(4):
        order = range(9) if s < 3 else (8, 0, 4, 1, 5, 2, 6, 3, 7)
        for t in order:
            A(f"v_mfma_f32_16x16x32_bf16 {vr(HD+4*t,4)}, {vr(HA+4*s,4)}, {vr(HF+36*s+4*t,4)}, {vr(HD+4*t,4)}")
            if bc:
                A(bc.pop(0))
    A(f"buffer_store_dword v{HD+32}, v{HPR}, s[24:27], 0 offen {stpol}")
    A("s_nop 4")
    for r in range(4):
        A(f"v_cndmask_b32 v{OR+4+r}, v{HD+4*r}, v{HD+16+4*r}, s[60:61]")
    A(f"buffer_store_dwordx4 {vr(OR+4,4)}, v{HPM}, s[24:27], 0 offen {stpol}")
    A("s_setpc_b64 s[62:63]")

    Lb("L_sub_gather")
    A(f"buffer_load_dwordx4 {vr(GA,4)}, v{GS}, s[12:15], 0 offen {ldpol}")
    for k in range(1, 4):
        A(f"buffer_load_dwordx4 {vr(GA+4*k,4)}, v{GS}, s[12:15], s{64+k} offen {ldpol}")
    A("s_waitcnt vmcnt(0)")
    A(f"v_max3_u32 v{HT}, v{GA}, v{GA+1}, v{GA+2}")
    for n in range(3, 15, 2):
        A(f"v_max3_u32 v{HT}, v{HT}, v{GA+n}, v{GA+n+1}")
    A(f"v_max_u32 v{HT}, v{HT}, v{GA+15}")
    A(f"v_cmp_eq_u32 vcc, -1, v{HT}")
    for r in range(4):
        A(f"v_add_f32 v{GA+r}, v{GA+r}, v{GA+4+r}")
    for r in range(4):
        A(f"v_add_f32 v{GA+8+r}, v{GA+8+r}, v{GA+12+r}")
    A("s_cbranch_vccnz L_sub_gather_again")
    Lb("L_sub_gather_ok")
    for r in range(4):
        A(f"v_add_f32 v{GA+r}, v{GA+r}, v{GA+8+r}")
    A("s_nop 0")
    A(f"v_permlane32_swap_b32 v{GA}, v{GA+1}")
    A(f"v_permlane32_swap_b32 v{GA+2}, v{GA+3}")
    A("s_nop 0")
    A(f"v_add_f32 v{GA}, v{GA}, v{GA+1}")
    A(f"v_add_f32 v{GA+2}, v{GA+2}, v{GA+3}")
    A("s_nop 1")
    A(f"v_permlane16_swap_b32 v{GA}, v{GA+2}")
    A("s_nop 1")
    A(f"v_add_f32 v{GA}, v{GA}, v{GA+2}")
    A("s_nop 1")
    A(f"v_add_f32_dpp v{HT}, v{GA}, v{GA} row_ror:8 {DPP_ALL}")
    bfround(HT, HT)
    A("s_setpc_b64 s[62:63]")
    Lb("L_sub_gather_again")
    A("s_sub_u32 s69, s69, 16")
    A("s_cbranch_scc0 L_sub_gather")
    A("s_mov_b32 s69, 0")
    A("s_branch L_sub_gather_ok")

    o.append('.section .rodata,"a"')
    o.append(".p2align 6")
    o.append(f".amdhsa_kernel {NAME}_kernel")
    o.append("  .amdhsa_next_free_vgpr 256")
    o.append("  .amdhsa_next_free_sgpr 80")
    o.append("  .amdhsa_accum_offset 256")
    o.append("  .amdhsa_group_segment_fixed_size 0")
    o.append("  .amdhsa_kernarg_size 104")
    o.append("  .amdhsa_user_sgpr_count 2")
    o.append("  .amdhsa_user_sgpr_kernarg_segment_ptr 1")
    o.append("  .amdhsa_system_sgpr_workgroup_id_x 1")
    o.append("  .amdhsa_float_denorm_mode_32 3")
    o.append(".end_amdhsa_kernel")
    return "\n".join(o) + "\n"


if __name__ == "__main__":
    cfg = json.loads(sys.argv[2]) if len(sys.argv) > 2 else {}
    open(sys.argv[1], "w").write(gen(**cfg))
```

```python
import struct, sys, json

NAME = "recurrent_scan__mha_block_cached__dense_activation_gelu__decode"
HEADER = open("header.txt").read()

WS_P1 = 0x000000
WS_G = 0x300000
WS_X = 0x500000
SLOT = 3072
SLOT2 = 2 * SLOT
WS_S = 0x520000
WS_STAMP = 0x20000000

L_V = 0x00000
L_B = 0x20000
O_OP = 0x0000
O_E = 0x1000
O_ST = 0x1800
O_CNT = 0x1840
O_Q = 0x1880
O_HR = 0x1980
O_XN = 0x19C0
LDS_BYTES = L_B + 0x2000
C_LN, C_S1, C_Q, C_H, C_SM = 0, 4, 8, 12, 16

LOG2E = 1.4426950408889634
OOB = "0x10000000"


def f32(x):
    return "0x%08x" % struct.unpack("<I", struct.pack("<f", x))[0]


def vr(a, n=1):
    return f"v{a}" if n == 1 else f"v[{a}:{a+n-1}]"


DPP_ALL = "row_mask:0xf bank_mask:0xf"


def cl(i):
    return ((i & 1) << 3) | (((i >> 1) & 1) << 2) | (i >> 2)


def gen(D=5, D0=0, DK=0, DV=0, stag_shift=20, stamps=False, hprio=0, kvpol="nt", wpol="nt", spol="",
        NSL=1, xown=False, pf=2, xs0=0, xs1=0, fixdur=0, ctl=False, Dhi=6, theta=10, pmask=1, pacer=1, DT=0):
    o = []
    cur = [o]
    A = lambda s: cur[0].append("  " + s)
    Lb = lambda s: cur[0].append(s + ":")

    def capture(fn):
        tmp = []
        cur[0] = tmp
        fn()
        cur[0] = o
        return tmp

    VST = 1
    D0 = D0 or D; DK = DK or D; DV = DV or D; DT = DT or DV
    pace = lambda d, i: f"s_waitcnt vmcnt({int(d + (0.5 if i & 1 else 0)) - 1})"

    def stamp(i):
        if stamps:
            A("s_memrealtime s[70:71]")
            A("s_waitcnt lgkmcnt(0)")
            A(f"v_writelane_b32 v{VST}, s70, {i}")

    def bfround(dst, src):
        A(f"v_cvt_pk_bf16_f32 v{dst}, v{src}, v{src}")
        A(f"v_and_b32 v{dst}, 0xffff0000, v{dst}")

    def allreduce_row(op, v):
        for sh in (8, 4, 2, 1):
            A("s_nop 1")
            A(f"{op}_dpp v{v}, v{v}, v{v} row_ror:{sh} {DPP_ALL}")

    def swap_reduce(op, v, t, which):
        A(f"v_mov_b32 v{t}, v{v}")
        A("s_nop 1")
        A(f"v_permlane{which}_swap_b32 v{t}, v{v}")
        A("s_nop 1")
        A(f"{op} v{v}, v{v}, v{t}")

    def lds_spin(label, vaddr, off, vtmp, target, sleep=1):
        Lb(label)
        A(f"ds_read_b32 v{vtmp}, v{vaddr} offset:{off}")
        A("s_waitcnt lgkmcnt(0)")
        A(f"v_readfirstlane_b32 s3, v{vtmp}")
        A(f"s_cmp_ge_u32 s3, {target}")
        A(f"s_cbranch_scc1 {label}_ok")
        if sleep:
            A(f"s_sleep {sleep}")
        A("s_sub_u32 s69, s69, 1")
        A(f"s_cbranch_scc0 {label}")
        A("s_mov_b32 s69, 0")
        Lb(label + "_ok")

    def lds_arrive(vaddr, off, vone):
        A("s_mov_b64 exec, 1")
        A(f"ds_add_u32 v{vaddr}, v{vone} offset:{off}")
        A("s_mov_b64 exec, -1")

    def pv_masks(vm, vc, t0):
        A(f"v_and_b32 v{t0}, 4, v{vc}")
        A(f"v_lshlrev_b32 v{t0}, 2, v{t0}")
        A(f"v_mov_b32 v{t0+1}, 0xffff")
        A(f"v_lshlrev_b32 v{t0}, v{t0}, v{t0+1}")
        A(f"v_and_b32 v{t0+1}, 3, v{vc}")
        A(f"v_lshrrev_b32 v{vm}, 3, v{vc}")
        A(f"v_lshl_add_u32 v{t0+1}, v{t0+1}, 1, v{vm}")
        for r in range(4):
            A(f"v_cmp_eq_u32 vcc, {r}, v{t0+1}")
            A("s_nop 1")
            A(f"v_cndmask_b32 v{vm+r}, 0, v{t0}, vcc")

    def softmax_factor(vbase, vst, vf, vown):
        A(f"ds_read_b128 {vr(vst,4)}, v{vbase} offset:{O_ST}")
        A(f"ds_read_b128 {vr(vst+4,4)}, v{vbase} offset:{O_ST+16}")
        A("s_waitcnt lgkmcnt(0)")
        m, t = vst + 8, vst + 9
        A(f"v_max3_f32 v{m}, v{vst}, v{vst+2}, v{vst+4}")
        A(f"v_max_f32 v{m}, v{m}, v{vst+6}")
        for k in range(4):
            A(f"v_sub_f32 v{vst+2*k}, v{vst+2*k}, v{m}")
        A(f"v_sub_f32 v{t}, v{vown}, v{m}")
        for k in range(4):
            A(f"v_mul_f32 v{vst+2*k}, {f32(LOG2E)}, v{vst+2*k}")
        A(f"v_mul_f32 v{t}, {f32(LOG2E)}, v{t}")
        for k in range(4):
            A(f"v_exp_f32 v{vst+2*k}, v{vst+2*k}")
        A(f"v_exp_f32 v{t}, v{t}")
        A(f"v_mul_f32 v{m}, v{vst}, v{vst+1}")
        for k in range(1, 4):
            A(f"v_fmac_f32 v{m}, v{vst+2*k}, v{vst+2*k+1}")
        A(f"v_rcp_f32 v{m}, v{m}")
        A("s_nop 0")
        A(f"v_mul_f32 v{vf}, v{t}, v{m}")

    o.append(HEADER.rstrip())
    o.append(f"; @launch grid=(256,1,1) block=(512,1,1) lds={LDS_BYTES}")
    o.append('.amdgcn_target "amdgcn-amd-amdhsa--gfx950"')
    o.append(".text")
    o.append(f".globl {NAME}_kernel")
    o.append(".p2align 8")
    o.append(f".type {NAME}_kernel,@function")
    Lb(f"{NAME}_kernel")
    A("s_cmp_ge_u32 s2, 256")
    A("s_cbranch_scc1 L_end")
    if fixdur:
        A("s_memrealtime s[74:75]")
    A("s_load_dwordx4 s[4:7], s[0:1], 8")
    if stamps:
        A("s_load_dwordx2 s[72:73], s[0:1], 96")
    A("v_lshrrev_b32 v1, 6, v0")
    A("v_and_b32 v2, 63, v0")
    A("v_readfirstlane_b32 s28, v1")
    A("s_mov_b32 s69, 0x200000")
    if stamps:
        A(f"v_mov_b32 v{VST}, 0")
    stamp(0)
    A("s_cmp_ge_u32 s28, 4")
    A("s_cbranch_scc1 L_helper")

    VQ, VP, VA0, VA1, VB, VC, VS, VMAX = 4, 8, 10, 11, 12, 13, 14, 15
    VE, VM, VAO, VACC = 16, 32, 36, 44
    RING, RING2, VT, VLB = 48, 112, 176, 188
    VPC = VE + 2
    if ctl:
        A("s_load_dwordx2 s[46:47], s[0:1], 96")
    A("v_lshlrev_b32 v3, 4, v2")
    A("s_lshl_b32 s3, s28, 12")
    A("v_add_u32 v3, s3, v3")
    A(f"s_lshl_b32 s29, s2, {stag_shift}")
    A("s_lshl_b32 s3, s2, 20")
    A("s_mov_b32 s18, 0x100000")
    A("s_mov_b32 s19, 0x20000")

    def tile_offsets():
        for k in range(4):
            A(f"s_add_u32 s{36+k}, s29, {k*16384}")
            A(f"s_and_b32 s{36+k}, s{36+k}, 0xfffff")

    def next_group():
        A("s_add_u32 s29, s29, 65536")
        tile_offsets()

    def ring_load(i, ring=RING):
        A(f"buffer_load_dwordx4 {vr(ring+4*i,4)}, v3, s[16:19], s{36+i//4} offen offset:{(i%4)*1024} {kvpol}")

    tile_offsets()
    A("s_waitcnt lgkmcnt(0)")
    A("s_add_u32 s16, s4, s3")
    A("s_addc_u32 s17, s5, 0")
    for i in range(int(D0)):
        ring_load(i)
    A("s_add_u32 s12, s6, s3")
    A("s_addc_u32 s13, s7, 0")
    A("s_mov_b32 s14, 0x100000")
    A("s_mov_b32 s15, 0x20000")
    A("s_barrier")
    for i in range(int(D0), 16):
        A(pace(D0, i))
        ring_load(i)
    A(f"s_add_u32 s35, s29, {56*16384}")
    A("s_lshl_b32 s33, s28, 15")
    A("s_mov_b32 s34, 8")
    Lb("L_vdma")
    A("s_and_b32 s36, s35, 0xfffff")
    A("s_mov_b32 m0, s33")
    for j in range(4):
        A(pace(D0, j))
        A(f"buffer_load_dwordx4 v3, s[12:15], s36 offen offset:{j*1024} {kvpol} lds")
    A("s_add_u32 s35, s35, 16384")
    A("s_add_u32 s33, s33, 4096")
    A("s_sub_u32 s34, s34, 1")
    A("s_cmp_lg_u32 s34, 0")
    A("s_cbranch_scc1 L_vdma")
    stamp(1)
    A(f"v_mov_b32 v{VLB}, {L_B}")
    for k in (1, 2, 3):
        A(f"s_mov_b32 s{38+2*k}, 0x{(0x11111111 << k) & 0xffffffff:08x}")
        A(f"s_mov_b32 s{39+2*k}, 0x{(0x11111111 << k) & 0xffffffff:08x}")
    A(f"v_mov_b32 v{VMAX}, 0xff800000")
    if ctl:
        A(f"s_add_u32 s46, s46, {WS_S}")
        A("s_addc_u32 s47, s47, 0")
        A("s_mov_b32 s20, s46")
        A("s_mov_b32 s21, s47")
        A(f"s_movk_i32 s22, {40*128}")
        A("s_mov_b32 s23, 0x20000")
        A("s_lshl_b32 s54, s2, 2")
        A("s_add_u32 s54, s54, s28")
        A("s_mov_b32 s48, 0")
    A(f"v_and_b32 v{VT+2}, 15, v2")
    A(f"v_lshl_add_u32 v{VT+3}, v{VT+2}, 4, v{VLB}")
    lds_spin("L_qwait", VLB, O_CNT + C_Q, VT, 1)
    A(f"ds_read_b128 {vr(VQ,4)}, v{VT+3} offset:{O_Q}")
    A("s_mov_b32 s34, 16")
    if ctl:
        A("s_memrealtime s[50:51]")
        A("s_waitcnt lgkmcnt(0)")
        A("s_mov_b32 s49, s50")
        A("s_mov_b32 s52, s50")
        A("s_mov_b32 s53, s50")
    stamp(2)
    A("s_waitcnt lgkmcnt(0)")

    def loop_stamp(base):
        if stamps:
            A("s_memrealtime s[70:71]")
            A(f"s_sub_u32 m0, {base}, s34")
            A("s_waitcnt lgkmcnt(0)")
            A(f"v_writelane_b32 v{VST}, s70, m0")

    ckn = [0]

    def clock():
        if ctl:
            A("s_memrealtime s[50:51]")

    def checkpoint():
        if not ctl:
            return
        ckn[0] += 1
        n = ckn[0]
        A("s_waitcnt lgkmcnt(0)")
        A("s_sub_u32 s55, s50, s49")
        A("s_add_u32 s48, s48, 128")
        A(f"s_cmp_lg_u32 s54, {4*pacer}")
        A(f"s_cbranch_scc1 L_ck{n}_follow")
        A("s_sub_u32 s3, s50, s53")
        A("s_lshr_b32 s55, s3, 1")
        A("s_add_u32 s3, s3, s55")
        A("s_add_u32 s3, s3, s50")
        A("s_mov_b32 s53, s52")
        A("s_mov_b32 s52, s50")
        A(f"v_mov_b32 v{VT+11}, s3")
        A("s_cmp_lt_u32 s48, 384")
        A(f"s_cbranch_scc1 L_ck{n}_nopub")
        A("s_mov_b64 exec, 1")
        A(f"buffer_store_dword v{VT+11}, off, s[20:23], s48 offset:256 sc1")
        A("s_mov_b64 exec, -1")
        Lb(f"L_ck{n}_nopub")
        A(f"s_and_b32 s3, s48, {pmask*128}")
        A(f"s_cmp_eq_u32 s3, 0")
        A(f"s_branch L_ck{n}_done")
        Lb(f"L_ck{n}_follow")
        A("s_load_dword s49, s[46:47], s48")
        A(f"s_sub_u32 s55, s55, {theta}")
        A(f"s_cmp_lt_u32 s55, 1500")
        Lb(f"L_ck{n}_done")

    def cpace(d, i, tag):
        if not ctl:
            A(pace(d, i))
            return
        A(f"s_cbranch_scc1 L_{tag}{i}")
        A(pace(d, i))
        Lb(f"L_{tag}{i}")
        A(pace(Dhi, i))

    Lb("L_kloop")
    loop_stamp(33)
    next_group()
    A("s_cmp_eq_u32 s34, 1")
    A("s_cselect_b32 s16, s12, s16")
    A("s_cselect_b32 s17, s13, s17")
    checkpoint()

    def red_a(i):
        j = i & 3
        dst = VA0 if j < 2 else VA1
        bm = "0x3" if (j & 1) == 0 else "0xc"
        p = VP + (i & 1)
        A(f"v_add_f32_dpp v{dst}, v{p}, v{p} row_ror:8 row_mask:0xf bank_mask:{bm}")

    def red_b(which):
        src = VA0 if which == 0 else VA1
        bm = "0x5" if which == 0 else "0xa"
        A(f"v_add_f32_dpp v{VB}, v{src}, v{src} row_half_mirror row_mask:0xf bank_mask:{bm}")

    def red_c():
        A(f"v_add_f32_dpp v{VC}, v{VB}, v{VB} quad_perm:[1,0,3,2] {DPP_ALL}")

    def red_d(k):
        dst = VS if k == 0 else VB
        A(f"v_add_f32_dpp v{dst}, v{VC}, v{VC} quad_perm:[2,3,0,1] {DPP_ALL}")

    def red_e(k):
        if k:
            A(f"v_cndmask_b32 v{VS}, v{VS}, v{VB}, s[{38+2*k}:{39+2*k}]")

    for i in range(16):
        k, j = i >> 2, i & 3
        p = VP + (i & 1)
        R = RING + 4 * i
        A(f"v_dot2_f32_bf16 v{p}, v{R}, v{VQ}, 0")
        A(f"v_dot2_f32_bf16 v{p}, v{R+1}, v{VQ+1}, v{p}")
        if i > 0:
            red_a(i - 1)
        A(f"v_dot2_f32_bf16 v{p}, v{R+2}, v{VQ+2}, v{p}")
        if k > 0:
            if j == 0:
                red_b(0)
            elif j == 1:
                red_b(1)
            elif j == 2:
                red_c()
            else:
                red_d(k - 1)
        A(f"v_dot2_f32_bf16 v{p}, v{R+3}, v{VQ+3}, v{p}")
        if k > 0 and j == 3:
            red_e(k - 1)
        cpace(DK, i, "pk")
        ring_load(i)
        if i == 14:
            clock()
    rot = [f"v_mov_b32 v{VE+u}, v{VE+u+1}" for u in range(15)]
    A(rot.pop(0))
    red_a(15)
    red_b(0)
    A(rot.pop(0))
    red_b(1)
    A(rot.pop(0)); A(rot.pop(0))
    red_c()
    A(rot.pop(0)); A(rot.pop(0))
    red_d(3)
    red_e(3)
    bfround(VS, VS)
    A(f"v_mul_f32 v{VS}, {f32(128 ** -0.5)}, v{VS}")
    for s in rot:
        A(s)
    bfround(VE + 15, VS)
    A(f"v_max_f32 v{VMAX}, v{VMAX}, v{VE+15}")
    A("s_sub_u32 s34, s34, 1")
    A("s_cmp_lg_u32 s34, 0")
    A("s_cbranch_scc1 L_kloop")
    stamp(3)

    def sm_a():
        allreduce_row("v_max_f32", VMAX)
        swap_reduce("v_max_f32", VMAX, VT, 16)
        swap_reduce("v_max_f32", VMAX, VT, 32)
        for u in range(16):
            A(f"v_sub_f32 v{VE+u}, v{VE+u}, v{VMAX}")
        for u in range(16):
            A(f"v_mul_f32 v{VE+u}, {f32(LOG2E)}, v{VE+u}")
        for u in range(16):
            A(f"v_exp_f32 v{VE+u}, v{VE+u}")
        A(f"v_add_f32 v{VS}, v{VE}, v{VE+1}")
        for u in range(2, 16):
            A(f"v_add_f32 v{VS}, v{VS}, v{VE+u}")
        A(f"s_lshl_b32 s3, s28, 9")
        A(f"v_lshl_add_u32 v{VT+2}, v2, 2, v{VLB}")
        A(f"v_add_u32 v{VT+2}, s3, v{VT+2}")
        A(f"ds_write_b32 v{VT+2}, v{VE+14} offset:{O_E}")
        A(f"ds_write_b32 v{VT+2}, v{VE+15} offset:{O_E+256}")
        allreduce_row("v_add_f32", VS)
        swap_reduce("v_add_f32", VS, VT, 16)
        swap_reduce("v_add_f32", VS, VT, 32)
        A(f"s_lshl_b32 s3, s28, 3")
        A(f"v_add_u32 v{VT+2}, s3, v{VLB}")
        A(f"ds_write_b32 v{VT+2}, v{VMAX} offset:{O_ST}")
        A(f"ds_write_b32 v{VT+2}, v{VS} offset:{O_ST+4}")
        A(f"v_mov_b32 v{VT+3}, 1")

    def sm_m():
        A(f"v_and_b32 v{VT+2}, 15, v2")
        pv_masks(VM, VT + 2, VT)
        for r in range(4):
            A(f"v_mov_b32 v{VACC+r}, 0")

    def sm_b():
        softmax_factor(VLB, VT, VS, VMAX)
        for u in range(14):
            A(f"v_mul_f32 v{VE+u}, v{VE+u}, v{VS}")
        for u in range(14):
            A(f"v_cvt_pk_bf16_f32 v{VE+u}, v{VE+u}, v{VE+u}")

    nxt = [0]

    def issue2():
        A(pace(DT, nxt[0]))
        ring_load(nxt[0], RING2)
        if nxt[0] == 14:
            clock()
        nxt[0] += 1

    def weave(lines, n):
        step = (len(lines) + n - 1) // n
        for a in range(0, len(lines), step):
            issue2()
            o.extend(lines[a:a + step])

    if stamps:
        A("s_mov_b32 s34, 14")
        loop_stamp(47)
    next_group()
    checkpoint()
    weave(capture(sm_a), 4)
    A("s_waitcnt lgkmcnt(0)")
    lds_arrive(VLB, O_CNT + C_SM, VT + 3)
    weave(capture(sm_m), 1)
    while nxt[0] < 12:
        issue2()
    lds_spin("L_smwait", VLB, O_CNT + C_SM, VT, 8, sleep=0)
    weave(capture(sm_b), 3)
    while nxt[0] < 16:
        issue2()
    stamp(4)

    def build_a(n, i, vp):
        for r in range(4):
            A(f"v_and_b32_dpp v{VAO+4*(n&1)+r}, v{vp}, v{VM+r} row_newbcast:{cl(i)} {DPP_ALL}")

    def pv_mfma(n, reg):
        A(f"v_mfma_f32_16x16x32_bf16 {vr(VACC,4)}, {vr(VAO+4*(n&1),4)}, {vr(reg,4)}, {vr(VACC,4)}")

    if stamps:
        A("s_mov_b32 s34, 13")
        loop_stamp(47)
    next_group()
    checkpoint()
    build_a(0, 0, VE)
    for i in range(16):
        build_a(1, i, VE + 1)
        pv_mfma(0, RING + 4 * i)
        if i < 15:
            build_a(0, i + 1, VE)
        else:
            A("s_nop 0")
        pv_mfma(1, RING2 + 4 * i)
        cpace(DV, i, "px")
        ring_load(i)
        if i == 14:
            clock()
    A("s_mov_b32 s34, 11")

    Lb("L_vloop")
    loop_stamp(46)
    next_group()
    checkpoint()
    build_a(0, 0, VPC)
    for i in range(16):
        if i < 15:
            build_a(i + 1, i + 1, VPC)
        else:
            for u in range(11):
                A(f"v_mov_b32 v{VPC+u}, v{VPC+u+1}")
        pv_mfma(i, RING + 4 * i)
        cpace(DV, i, "pv")
        ring_load(i)
        if i == 14:
            clock()
    A("s_sub_u32 s34, s34, 1")
    A("s_cmp_lg_u32 s34, 0")
    A("s_cbranch_scc1 L_vloop")
    loop_stamp(46)
    A(f"v_lshl_add_u32 v{VT}, v0, 3, v{VLB}")
    A("s_call_b64 s[62:63], L_sub_pv")
    A("s_nop 6")
    A(f"ds_write_b64 v{VT}, {vr(VACC,2)} offset:{O_OP}")
    A("s_waitcnt lgkmcnt(0)")
    stamp(5)
    A("s_barrier")
    if stamps or fixdur:
        A("s_branch L_fin")
    else:
        A("s_endpgm")

    Lb("L_sub_pv")
    build_a(0, 0, VPC)
    for i in range(16):
        if i < 15:
            build_a(i + 1, i + 1, VPC)
        if 15 - i < int(max(DV, Dhi if ctl else 0) + 0.5):
            A(f"s_waitcnt vmcnt({15-i})")
        pv_mfma(i, RING + 4 * i)
    A("s_setpc_b64 s[62:63]")

    GS = 3
    HC, HG, HLB = 4, 5, 6
    HVB, HVS = 7, 8
    HPM, HPR = 9, 10
    HOP = 11
    HB2, HXV, HOA = 12, 13, 14
    HD = 16
    HF2 = 64
    HT = 64
    HA = 88
    XO, XP, XZ, XE = 104, 105, 106, 107
    HF = 112
    ST = 28
    GH, GT = 20, 80
    SX, SWQ, SWO, SW1, SB1, SW2, SB2, SOUT, SDBG, SWS = 36, 40, 42, 44, 46, 48, 50, 52, 54, 56

    def srd(n, base, off_s, size):
        if off_s is None:
            A(f"s_mov_b32 s{n}, s{base}")
            A(f"s_mov_b32 s{n+1}, s{base+1}")
        else:
            A(f"s_add_u32 s{n}, s{base}, {off_s}")
            A(f"s_addc_u32 s{n+1}, s{base+1}, 0")
        A(f"s_mov_b32 s{n+2}, {size}")
        A(f"s_mov_b32 s{n+3}, 0x20000")

    Lb("L_helper")
    A(f"s_load_dwordx2 s[{SX}:{SX+1}], s[0:1], 0")
    A(f"s_load_dwordx4 s[{SWQ}:{SWQ+3}], s[0:1], 24")
    A(f"s_load_dwordx8 s[{SW1}:{SW1+7}], s[0:1], 48")
    A(f"s_load_dwordx4 s[{SOUT}:{SOUT+3}], s[0:1], 80")
    A(f"s_load_dwordx2 s[{SWS}:{SWS+1}], s[0:1], 96")
    if hprio:
        A(f"s_setprio {hprio}")
    A("s_sub_u32 s28, s28, 4")
    A("s_and_b32 s29, s2, 31")
    A("s_lshr_b32 s30, s2, 5")
    A("s_and_b32 s31, s2, 7")
    A("s_lshl_b32 s31, s31, 2")
    A("s_lshr_b32 s3, s29, 3")
    A("s_add_u32 s31, s31, s3")
    A(f"v_and_b32 v{HC}, 15, v2")
    A(f"v_lshrrev_b32 v{HG}, 4, v2")
    A(f"v_mov_b32 v{HLB}, {L_B}")
    for r in range(4):
        A(f"v_mov_b32 v{HD+r}, 0")
    A(f"v_subrev_u32 v{HT}, 256, v0")
    A(f"v_lshl_add_u32 v{HT+1}, v{HT}, 4, v{HLB}")
    A(f"ds_write_b128 v{HT+1}, {vr(HD,4)} offset:{O_OP}")
    A(f"v_lshl_add_u32 v{HT+1}, v{HC}, 2, v{HLB}")
    A(f"ds_write_b32 v{HT+1}, v{HD} offset:{O_CNT}")
    A(f"v_mul_u32_u24 v{HT}, 36, v{HT}")
    A("s_mov_b32 s58, 0x05040100")
    A("s_mov_b32 s59, 0x07060302")
    A("s_waitcnt lgkmcnt(0)")
    XR = 52
    srd(8, SX, None, 9216)
    A(f"buffer_load_dwordx4 {vr(XR,4)}, v{HT}, s[8:11], 0 offen")
    A(f"buffer_load_dwordx4 {vr(XR+4,4)}, v{HT}, s[8:11], 0 offen offset:16")
    A(f"buffer_load_dword v{XR+8}, v{HT}, s[8:11], 0 offen offset:32")
    A("s_cmp_eq_u32 s28, 0")
    A(f"s_cselect_b32 s12, s{SWQ}, s{SW1}")
    A(f"s_cselect_b32 s13, s{SWQ+1}, s{SW1+1}")
    A(f"s_mov_b32 s14, {576*9216}")
    A(f"s_cselect_b32 s14, {576*8192}, s14")
    A("s_mov_b32 s15, 0x20000")
    A("s_movk_i32 s32, 9216")
    A("s_cselect_b32 s32, 8192, s32")
    A("s_mul_i32 s33, s31, 288")
    A("s_lshl_b32 s3, s29, 8")
    A("s_cmp_eq_u32 s28, 0")
    A("s_cselect_b32 s33, s3, s33")
    A("s_mul_i32 s3, s32, 72")
    A("s_mul_i32 s3, s3, s30")
    A("s_add_u32 s33, s33, s3")
    A("s_mul_i32 s3, s32, 18")
    A(f"v_mul_lo_u32 v{HT+1}, s3, v{HG}")
    L1 = HF
    A("s_cmp_ge_u32 s28, 2")
    A("s_cbranch_scc1 L_h_ld_narrow")
    A(f"v_lshl_add_u32 v{HT+1}, v{HC}, 4, v{HT+1}")
    for e in range(18):
        A(f"buffer_load_dwordx4 {vr(L1+4*e,4)}, v{HT+1}, s[12:15], s33 offen {wpol}")
        A("s_add_u32 s33, s33, s32")
    A("s_barrier")
    A("s_waitcnt vmcnt(18)")
    A("s_branch L_h_ln")
    Lb("L_h_ld_narrow")
    A("s_cmp_eq_u32 s28, 3")
    A("s_cbranch_scc1 L_h_ld_none")
    A(f"v_lshl_add_u32 v{HT+1}, v{HC}, 1, v{HT+1}")
    for e in range(18):
        A(f"buffer_load_ushort v{L1+e}, v{HT+1}, s[12:15], s33 offen offset:256 {wpol}")
        A("s_add_u32 s33, s33, s32")
    A("s_barrier")
    A("s_waitcnt vmcnt(18)")
    A("s_branch L_h_ln")
    Lb("L_h_ld_none")

    def xchg_setup():
        A(f"s_lshl_b32 s3, s29, 11")
        A(f"s_add_u32 s3, s3, {WS_X}")
        srd(24, SWS, "s3", 2048)
        A("s_lshl_b32 s3, s30, 7")
        A(f"v_lshl_add_u32 v{XP if xown else XO}, v2, 2, s3")
        A("s_lshl_b32 s3, s30, 2")
        A(f"v_lshl_add_u32 v{XO if xown else XP}, v2, 7, s3")
    xchg_setup()
    A("s_mov_b64 exec, 0xff")
    A(f"buffer_load_dword v{XZ}, v{XO}, s[24:27], 0 offen sc1")
    A("s_mov_b64 exec, -1")
    A("s_barrier")
    A("s_waitcnt vmcnt(1)")

    Lb("L_h_ln")
    stamp(1)
    XF = HD
    SUM, T1, MEAN = 34, 35, 36
    for d in range(9):
        A(f"v_lshlrev_b32 v{XF+2*d}, 16, v{XR+d}")
        A(f"v_and_b32 v{XF+2*d+1}, 0xffff0000, v{XR+d}")
    A(f"v_add_f32 v{SUM}, v{XF}, v{XF+1}")
    for e in range(2, 18):
        A(f"v_add_f32 v{SUM}, v{SUM}, v{XF+e}")
    allreduce_row("v_add_f32", SUM)
    swap_reduce("v_add_f32", SUM, T1, 16)
    A(f"v_mul_f32 v{MEAN}, {f32(1/576)}, v{SUM}")
    A(f"v_mov_b32 v{SUM}, 0")
    for e in range(18):
        t = 38 + (e & 1)
        A(f"v_sub_f32 v{t}, v{XF+e}, v{MEAN}")
        A(f"v_fmac_f32 v{SUM}, v{t}, v{t}")
    allreduce_row("v_add_f32", SUM)
    swap_reduce("v_add_f32", SUM, T1, 16)
    A(f"v_mul_f32 v{SUM}, {f32(1/576)}, v{SUM}")
    bfround(MEAN, MEAN)
    bfround(SUM, SUM)
    A(f"v_add_f32 v{SUM}, {f32(1e-5)}, v{SUM}")
    bfround(SUM, SUM)
    A(f"v_sqrt_f32 v{SUM}, v{SUM}")
    A("s_nop 0")
    bfround(SUM, SUM)
    A(f"v_rcp_f32 v{SUM}, v{SUM}")
    for e in range(18):
        A(f"v_sub_f32 v{XF+e}, v{XF+e}, v{MEAN}")
    for d in range(9):
        A(f"v_cvt_pk_bf16_f32 v{XR+d}, v{XF+2*d}, v{XF+2*d+1}")
    for d in range(9):
        A(f"v_lshlrev_b32 v{XF+2*d}, 16, v{XR+d}")
        A(f"v_and_b32 v{XF+2*d+1}, 0xffff0000, v{XR+d}")
    for e in range(18):
        A(f"v_mul_f32 v{XF+e}, v{XF+e}, v{SUM}")
    for d in range(9):
        A(f"v_cvt_pk_bf16_f32 v{XR+d}, v{XF+2*d}, v{XF+2*d+1}")
    A(f"v_lshrrev_b32 v{HT}, 5, v2")
    A("s_lshl_b32 s3, s28, 1")
    A(f"v_add_u32 v{HT}, s3, v{HT}")
    A(f"v_and_b32 v{HT+1}, 3, v2")
    A(f"v_lshl_add_u32 v{HT}, v{HT}, 2, v{HT+1}")
    A(f"v_mul_u32_u24 v{HT}, 48, v{HT}")
    A(f"v_add_u32 v{HT}, v{HT}, v{HLB}")
    A(f"v_bfe_u32 v{HT+1}, v2, 2, 3")
    A(f"v_mov_b32 v15, 1")
    A(f"v_cmp_eq_u32 vcc, s30, v{HT+1}")
    A("s_and_saveexec_b64 s[34:35], vcc")
    A(f"ds_write_b128 v{HT}, {vr(XR,4)} offset:{O_XN}")
    A(f"ds_write_b128 v{HT}, {vr(XR+4,4)} offset:{O_XN+16}")
    A(f"ds_write_b32 v{HT}, v{XR+8} offset:{O_XN+32}")
    A("s_waitcnt lgkmcnt(0)")
    lds_arrive(HLB, O_CNT + C_LN, 15)
    A(f"v_mul_u32_u24 v{HVB}, 1152, v{HG}")
    A(f"v_lshl_add_u32 v{HVS}, v{HC}, 3, v{HVB}")
    A(f"v_add_u32 v{HVS}, 1024, v{HVS}")
    A("s_lshl_b32 s3, s28, 8")
    A(f"v_lshl_add_u32 v{HVB}, v{HC}, 4, v{HVB}")
    A(f"v_add_u32 v{HVB}, s3, v{HVB}")
    A(f"v_lshlrev_b32 v{HPM}, 5, v{HC}")
    A(f"v_lshl_add_u32 v{HPM}, v{HG}, 4, v{HPM}")
    A("s_lshl_b32 s3, s28, 9")
    A(f"v_add_u32 v{HPM}, s3, v{HPM}")
    A(f"v_mov_b32 v{HT}, {OOB}")
    A(f"v_cmp_gt_u32 vcc, 2, v{HG}")
    A("s_lshl_b32 s3, s28, 8")
    A("s_add_u32 s3, s3, 2048")
    A(f"v_cndmask_b32 v{HPM}, v{HT}, v{HPM}, vcc")
    A(f"v_lshl_add_u32 v{HPR}, v{HC}, 4, s3")
    A(f"v_cmp_eq_u32 vcc, 0, v{HG}")
    A("s_lshl_b32 s3, s28, 2")
    A(f"v_add_u32 v{HOP}, s3, v{HC}")
    A(f"v_cndmask_b32 v{HPR}, v{HT}, v{HPR}, vcc")
    A(f"v_and_b32 v{HOP}, 15, v{HOP}")
    A(f"v_lshl_add_u32 v{HOP}, v{HG}, 4, v{HOP}")
    A(f"v_lshl_add_u32 v{HOP}, v{HOP}, 3, v{HLB}")
    A("s_mov_b32 s60, 0xffff0000")
    A("s_mov_b32 s61, 0xffff0000")
    A(f"s_mul_i32 s3, s29, {8*8*1152}")
    srd(16, SWS, "s3", 8 * 8 * 1152)
    A("s_cmp_eq_u32 s28, 3")
    A("s_cbranch_scc1 L_h_xchg")

    A(f"v_and_b32 v{HT}, 7, v{HC}")
    A(f"v_lshl_add_u32 v{HT+1}, v{HT}, 2, v{HG}")
    A(f"v_mul_u32_u24 v{HT+1}, 48, v{HT+1}")
    A(f"v_add_u32 v{HT+1}, v{HT+1}, v{HLB}")
    A(f"v_mul_u32_u24 v{HT+3}, 9216, v{HT}")
    A(f"v_lshl_add_u32 v{HT+3}, v{HG}, 4, v{HT+3}")
    A("s_mul_i32 s33, s30, 1152")
    A("s_lshl_b32 s3, s28, 9")
    A("s_add_u32 s33, s33, s3")
    A(f"v_cmp_le_u32 s[34:35], 8, v{HC}")
    lds_spin("L_h_lnwait", HLB, O_CNT + C_LN, HT + 4, 4, sleep=0)
    A(f"ds_read_b128 {vr(XR,4)}, v{HT+1} offset:{O_XN}")
    A(f"ds_read_b128 {vr(XR+4,4)}, v{HT+1} offset:{O_XN+16}")
    A(f"ds_read_b32 v{XR+8}, v{HT+1} offset:{O_XN+32}")
    A(f"v_mov_b32 v{XR+9}, 0")
    stamp(2)
    A("s_cmp_eq_u32 s28, 2")
    A("s_cbranch_scc1 L_h_s1_narrow")
    W0 = HA
    for s in range(2):
        A(f"s_waitcnt vmcnt({10 - 8*s}) lgkmcnt(0)")
        for t in range(9):
            if t < 8:
                for r in range(4):
                    lo = L1 + 4 * (8 * s + 2 * r) + (t >> 1)
                    A(f"v_perm_b32 v{W0+4*(t&1)+r}, v{lo+4}, v{lo}, s{58+(t&1)}")
            else:
                A("s_nop 1")
            if t > 0:
                tt = t - 1
                c_in = "0" if s == 0 else vr(HD + 4 * tt, 4)
                A(f"v_mfma_f32_16x16x32_bf16 {vr(HD+4*tt,4)}, {vr(W0+4*(tt&1),4)}, {vr(XR+4*s,4)}, {c_in}")
    A("s_waitcnt vmcnt(0)")
    W2 = HA
    A("s_nop 1")
    for t in range(8):
        lo = L1 + 4 * 16 + (t >> 1)
        A(f"v_perm_b32 v{W2+2*t}, v{lo+4}, v{lo}, s{58+(t&1)}")
        A(f"v_mov_b32 v{W2+2*t+1}, 0")
    A("s_nop 1")
    for t in range(8):
        A(f"v_mfma_f32_16x16x16_bf16 {vr(HD+4*t,4)}, {vr(W2+2*t,2)}, {vr(XR+8,2)}, {vr(HD+4*t,4)}")
    A(f"v_lshrrev_b32 v{HT+4}, 3, v{HC}")
    A(f"v_lshl_add_u32 v{HT+3}, v{HT+4}, 6, v{HT+3}")
    A("s_nop 7")
    for tt in range(0, 8, 2):
        for r in range(4):
            A(f"v_cndmask_b32 v{HD+4*tt+r}, v{HD+4*tt+r}, v{HD+4*tt+4+r}, s[34:35]")
        A(f"buffer_store_dwordx4 {vr(HD+4*tt,4)}, v{HT+3}, s[16:19], s33 offen offset:{tt*64} sc1")
    A("s_branch L_h_s1_done")
    Lb("L_h_s1_narrow")
    A("s_waitcnt vmcnt(0) lgkmcnt(0)")
    for d in range(9):
        A(f"v_lshl_or_b32 v{HA+d}, v{L1+2*d+1}, 16, v{L1+2*d}")
    A(f"v_mov_b32 v{HA+9}, 0")
    A(f"v_mov_b32 v{HT+4}, {OOB}")
    A(f"v_cndmask_b32 v{HT+3}, v{HT+3}, v{HT+4}, s[34:35]")
    A(f"v_mfma_f32_16x16x32_bf16 {vr(HD,4)}, {vr(HA,4)}, {vr(XR,4)}, 0")
    A(f"v_mfma_f32_16x16x32_bf16 {vr(HD,4)}, {vr(HA+4,4)}, {vr(XR+4,4)}, {vr(HD,4)}")
    A("s_nop 7")
    A(f"v_mfma_f32_16x16x16_bf16 {vr(HD,4)}, {vr(HA+8,2)}, {vr(XR+8,2)}, {vr(HD,4)}")
    A("s_nop 7")
    A(f"buffer_store_dwordx4 {vr(HD,4)}, v{HT+3}, s[16:19], s33 offen sc1")
    Lb("L_h_s1_done")
    stamp(3)
    A("s_waitcnt vmcnt(0)")
    lds_arrive(HLB, O_CNT + C_S1, 15)
    stamp(4)

    def prefetch(base, idx, rows):
        n = (rows * 1152 // 8 + 3071) // 3072
        A(f"s_mul_i32 s3, {idx}, {rows*1152}")
        srd(20, base, "s3", rows * 1152)
        A(f"s_mul_i32 s33, s30, {rows*1152//8}")
        A(f"s_mul_i32 s34, s28, {n*1024}")
        A("s_add_u32 s33, s33, s34")
        for k in range(n):
            A(f"buffer_load_dwordx4 {vr(ST+4*k,4)}, v{HT}, s[20:23], s33 offen")
            A("s_add_u32 s33, s33, 1024")
        A("s_waitcnt vmcnt(0)")
    if pf:
        A(f"v_lshlrev_b32 v{HT}, 4, v2")
        prefetch(SW2, "s31", 144)
        prefetch(SWO, "s29", 128)
    A("s_branch L_h_w2")

    Lb("L_h_xchg")
    xchg_setup()
    A("s_mov_b64 exec, 0xff")
    A("s_waitcnt vmcnt(0)")
    A(f"v_add_u32 v{XZ}, 1, v{XZ}")
    A(f"buffer_store_dword v{XZ}, v{XP}, s[24:27], 0 offen offset:1024 sc1")
    A("s_mov_b64 exec, -1")
    A(f"s_mul_i32 s3, s2, {SLOT2}")
    A(f"s_add_u32 s3, s3, {WS_G}")
    srd(20, SWS, "s3", SLOT2)
    for r in range(4):
        A(f"v_mov_b32 v{HF+r}, -1")
    A(f"v_lshlrev_b32 v{HF+4}, 4, v2")
    A("s_movk_i32 s3, 4096")
    for k in range(6):
        A(f"buffer_store_dwordx4 {vr(HF,4)}, v{HF+4}, s[20:23], {'s3' if k >= 4 else '0'} offen offset:{(k%4)*1024} sc1")
    GB = 52
    A(f"v_and_b32 v{HT+4}, 3, v2")
    A(f"v_bfe_u32 v{HT+5}, v2, 2, 3")
    A(f"v_and_b32 v{HT+10}, 3, v{HT+5}")
    A(f"v_lshl_add_u32 v{HT+10}, v{HT+10}, 2, v{HT+4}")
    A(f"v_lshrrev_b32 v{HT+11}, 2, v{HT+5}")
    A(f"v_lshl_add_u32 v{HT+10}, v{HT+10}, 3, v{HT+11}")
    A(f"v_lshl_add_u32 v{HT+4}, v{HT+4}, 5, v{HT+5}")
    A("s_mul_i32 s33, s31, 288")
    srd(12, SB1, "s33", 288)
    A(f"v_lshlrev_b32 v{HT+5}, 1, v{HT+4}")
    for r in range(4):
        A(f"buffer_load_ushort v{GB+r}, v{HT+5}, s[12:15], 0 offen offset:{16*r}")
    A(f"v_lshlrev_b32 v{HT+6}, 1, v{HC}")
    A(f"buffer_load_ushort v{GB+4}, v{HT+6}, s[12:15], 0 offen offset:256")
    A(f"v_lshlrev_b32 v{HT+7}, 4, v2")
    A(f"v_lshlrev_b32 v{HT+8}, 2, v{HC}")
    A(f"v_add_u32 v{HT+5}, v{HT+5}, v{HLB}")
    A(f"v_lshl_add_u32 v{HT+4}, v{HT+10}, 2, v{HLB}")
    A(f"v_and_b32 v{HT+6}, 3, v{HC}")
    A(f"v_lshrrev_b32 v{HT+11}, 2, v{HC}")
    A(f"v_lshl_add_u32 v{HT+6}, v{HT+6}, 2, v{HT+11}")
    A(f"v_lshl_add_u32 v{HT+6}, v{HT+6}, 1, v{HLB}")
    A("s_mul_i32 s33, s30, 9216")
    A("s_mov_b64 exec, 0xff")
    A("s_waitcnt vmcnt(0)")
    A(f"buffer_load_dword v{XE}, v{XO}, s[24:27], 0 offen offset:1024 sc1")
    lds_spin("L_h_s1wait", HLB, O_CNT + C_S1, HT + 9, 3, sleep=1)
    A("s_waitcnt vmcnt(0)")
    A(f"buffer_store_dword v{XE}, v{XP}, s[24:27], 0 offen sc1")
    stamp(4)
    if xs0:
        A(f"s_sleep {xs0}")
    Lb("L_h_gpoll")
    A(f"buffer_load_dword v{HT+9}, v{XO}, s[24:27], 0 offen sc1")
    A(f"buffer_load_dword v{HT+11}, v{XO}, s[24:27], 0 offen offset:1024 sc1")
    A("s_waitcnt vmcnt(0)")
    A(f"v_cmp_ne_u32 vcc, v{HT+9}, v{XZ}")
    A("s_cbranch_vccz L_h_gpoll_ok")
    A(f"v_cmp_ne_u32 vcc, v{HT+11}, v{XE}")
    A("s_cbranch_vccz L_h_gpoll_same")
    A(f"v_mov_b32 v{XE}, v{HT+11}")
    A(f"buffer_store_dword v{XE}, v{XP}, s[24:27], 0 offen sc1")
    Lb("L_h_gpoll_same")
    if xs1:
        A(f"s_sleep {xs1}")
    A("s_sub_u32 s69, s69, 16")
    A("s_cbranch_scc0 L_h_gpoll")
    A("s_mov_b32 s69, 0")
    Lb("L_h_gpoll_ok")
    A(f"buffer_load_dword v{HT+11}, v{XO}, s[24:27], 0 offen offset:1024 sc1")
    A("s_mov_b64 exec, -1")
    stamp(5)
    GL = HF
    A("s_mov_b32 s34, s33")
    for p in range(8):
        A(f"buffer_load_dwordx4 {vr(GL+4*p,4)}, v{HT+7}, s[16:19], s33 offen sc1")
        A("s_add_u32 s33, s33, 1152")
    for p in range(8):
        A(f"buffer_load_dword v{GL+32+p}, v{HT+8}, s[16:19], s34 offen offset:1024 sc1")
        A("s_add_u32 s34, s34, 1152")
    A("s_waitcnt vmcnt(16)")
    A("s_mov_b64 exec, 0xff")
    A(f"v_cmp_ne_u32 vcc, v{HT+11}, v{XE}")
    A("s_cbranch_vccz L_h_echo_ok")
    A("s_waitcnt vmcnt(0)")
    A(f"buffer_store_dword v{HT+11}, v{XP}, s[24:27], 0 offen sc1")
    Lb("L_h_echo_ok")
    A("s_mov_b64 exec, -1")
    for p in range(1, 8):
        A(f"s_waitcnt vmcnt({15-p})")
        for r in range(4):
            A(f"v_add_f32 v{GL+r}, v{GL+r}, v{GL+4*p+r}")
    for r in range(4):
        A(f"v_cvt_pk_bf16_f32 v{GL+r}, v{GL+r}, v{GL+r}")
    A("s_mov_b32 exec_hi, 0")
    for r in range(4):
        A(f"ds_write_b16 v{HT+5}, v{GL+r} offset:{O_Q+16*r}")
    A("s_waitcnt lgkmcnt(0)")
    A(f"ds_write_b32 v{HLB}, v15 offset:{O_CNT+C_Q}")
    A("s_mov_b32 exec_hi, -1")
    stamp(6)
    A("s_waitcnt vmcnt(0)")
    for p in range(1, 8):
        A(f"v_add_f32 v{GL+32}, v{GL+32}, v{GL+32+p}")
    A(f"v_cvt_pk_bf16_f32 v{GL+4}, v{GL+32}, v{GL+32}")
    c1 = -2.0 * LOG2E * 0.7978845608028654
    for r in range(5):
        A(f"v_and_b32 v{GL+r}, 0xffff0000, v{GL+r}")
        A(f"v_lshlrev_b32 v{GB+r}, 16, v{GB+r}")
        A(f"v_add_f32 v{GL+r}, v{GL+r}, v{GB+r}")
        bfround(GL + r, GL + r)
        A(f"v_mul_f32 v{GB+r}, v{GL+r}, v{GL+r}")
        A(f"v_mov_b32 v{GL+8}, {f32(c1)}")
        A(f"v_fmac_f32 v{GL+8}, {f32(c1*0.044715)}, v{GB+r}")
        A(f"v_mul_f32 v{GB+r}, v{GL+8}, v{GL+r}")
        A(f"v_exp_f32 v{GB+r}, v{GB+r}")
        A("s_nop 0")
        A(f"v_add_f32 v{GB+r}, 1.0, v{GB+r}")
        A(f"v_rcp_f32 v{GB+r}, v{GB+r}")
        A("s_nop 0")
        A(f"v_mul_f32 v{GL+r}, v{GL+r}, v{GB+r}")
        bfround(GL + r, GL + r)
    A("s_mov_b32 exec_lo, 0")
    for r in range(4):
        A(f"ds_write_b32 v{HT+4}, v{GL+r} offset:{O_OP+8*r}")
    A(f"ds_write_b16_d16_hi v{HT+6}, v{GL+4} offset:{O_HR}")
    A("s_waitcnt lgkmcnt(0)")
    A(f"ds_write_b32 v{HLB}, v15 offset:{O_CNT+C_H}")
    A("s_mov_b32 exec_lo, -1")
    A("s_cmp_lg_u32 s30, 0")
    A("s_cbranch_scc1 L_h_w2")
    A("s_lshl_b32 s3, s29, 3")
    A(f"v_mov_b32 v{HT}, s3")
    A("s_mov_b64 exec, 1")
    A(f"global_store_dword v{HT}, v15, s[{SDBG}:{SDBG+1}] sc1")
    A("s_mov_b64 exec, -1")

    Lb("L_h_w2")
    if hprio:
        A("s_setprio 0")
    A(f"s_mul_i32 s3, s31, {144*1152}")
    srd(20, SW2, "s3", 144 * 1152)
    HT = 104
    A("s_cmp_eq_u32 s28, 0")
    A("s_cselect_b32 s35, 0, 0x100000")
    for e in range(4):
        A(f"s_mov_b32 s33, {(128+4*e)*1152}")
        A("s_add_u32 s34, s33, s35")
        A(f"buffer_load_dwordx4 {vr(ST+4*e,4)}, v{HVB}, s[20:23], s33 offen {spol}")
        A(f"buffer_load_dwordx2 {vr(ST+16+2*e,2)}, v{HVS}, s[20:23], s34 offen {spol}")
    A("s_waitcnt vmcnt(0)")
    for r in range(2):
        for t in range(8):
            lo = ST + 8 * r + (t >> 1)
            A(f"v_perm_b32 v{HF2+2*t+r}, v{lo+4}, v{lo}, s{58+(t&1)}")
        for t in range(4):
            lo = ST + 16 + 4 * r + (t >> 1)
            A(f"v_perm_b32 v{HF2+16+2*t+r}, v{lo+2}, v{lo}, s{58+(t&1)}")
    A("s_call_b64 s[62:63], L_sub_load")
    stamp(7)
    lds_spin("L_h_hwait", HLB, O_CNT + C_H, HT, 1)
    A(f"v_lshl_add_u32 v{HT}, v{HG}, 3, v{HLB}")
    A(f"ds_read_b64 {vr(HT+2,2)}, v{HT} offset:{O_HR}")
    A(f"s_mul_i32 s3, s2, {SLOT2}")
    A(f"s_add_u32 s3, s3, {WS_G}")
    srd(24, SWS, "s3", 0)
    A("s_waitcnt lgkmcnt(0)")
    for t in range(12):
        A(f"v_mfma_f32_16x16x16_bf16 {vr(HD+4*t,4)}, {vr(HT+2,2)}, {vr(HF2+2*t,2)}, 0")
    A("s_call_b64 s[62:63], L_sub_gemv")
    OR = HF2
    for r in range(8):
        A(f"v_mov_b32 v{GH+r}, v{OR+4+r}")
    A(f"s_mov_b32 s26, {SLOT2}")
    lds_arrive(HLB, O_CNT + C_SM, 15)
    stamp(8)
    A(f"s_mul_i32 s3, s29, {128*1152}")
    srd(20, SWO, "s3", 128 * 1152)
    A("s_call_b64 s[62:63], L_sub_load")
    stamp(9)

    A("s_cmp_eq_u32 s28, 3")
    A("s_cselect_b32 s64, 1, 0")
    A("s_cmp_lt_u32 s29, 24")
    A("s_cselect_b32 s64, s64, 0")
    A(f"s_mul_i32 s3, s30, {32*SLOT2}")
    A(f"s_add_u32 s3, s3, {WS_G}")
    srd(12, SWS, "s3", 0)
    A("s_lshl_b32 s33, s29, 5")
    A("s_lshl_b32 s34, s29, 3")
    A("s_add_u32 s34, s34, 384")
    A("s_cmp_lt_u32 s29, 16")
    A("s_cselect_b32 s33, s33, s34")
    A("s_cselect_b32 s34, 3, 1")
    A("s_cselect_b32 s35, 7, 1")
    A("s_cselect_b32 s78, 8, 14")
    A("s_movk_i32 s65, 256")
    A(f"s_cselect_b32 s65, {8*SLOT2}, s65")
    A("s_lshl_b32 s66, s65, 1")
    A("s_add_u32 s67, s66, s65")
    A(f"v_lshrrev_b32 v{HT}, s34, v2")
    A(f"v_mul_u32_u24 v{HT}, {SLOT2}, v{HT}")
    A(f"v_and_b32 v{HT+1}, s35, v2")
    A(f"v_lshl_add_u32 v{HT+1}, v{HT+1}, 2, s33")
    A(f"v_lshl_add_u32 v{GS}, v{HT+1}, 2, v{HT}")
    A(f"v_bfe_u32 v{HT+2}, v2, 4, 1")
    A(f"v_lshrrev_b32 v{HT+3}, 5, v2")
    A(f"v_lshl_add_u32 v{HT+2}, v{HT+2}, 1, v{HT+3}")
    A(f"v_add_lshl_u32 v{HOA}, v{HT+2}, v{HT+1}, 1")
    A("s_mul_i32 s68, s30, 1152")
    srd(16, SOUT, None, 0)
    A("s_cmp_eq_u32 s64, 0")
    A("s_cbranch_scc1 L_h_pvpre")
    srd(20, SB2, None, 1152)
    A(f"buffer_load_ushort v{HXV}, v{HOA}, s[8:11], s68 offen")
    A(f"buffer_load_ushort v{HB2}, v{HOA}, s[20:23], 0 offen")
    A(f"v_and_b32 v{HT+1}, 31, v2")
    A(f"v_lshlrev_b32 v{HT+1}, 3, v{HT+1}")
    A(f"global_load_dword v{HT}, v{HT+1}, s[{SDBG}:{SDBG+1}]")
    Lb("L_h_bpoll")
    A("s_waitcnt vmcnt(0)")
    A(f"v_cmp_ne_u32 vcc, 1, v{HT}")
    A("s_cbranch_vccz L_h_bpoll_ok")
    A("s_sleep 32")
    A(f"global_load_dword v{HT}, v{HT+1}, s[{SDBG}:{SDBG+1}] sc1")
    A("s_sub_u32 s69, s69, 16")
    A("s_cbranch_scc0 L_h_bpoll")
    A("s_mov_b32 s69, 0")
    A("s_waitcnt vmcnt(0)")
    Lb("L_h_bpoll_ok")
    A(f"v_lshlrev_b32 v{HXV}, 16, v{HXV}")
    A(f"v_lshlrev_b32 v{HB2}, 16, v{HB2}")
    A(f"v_mov_b32 v{HT}, {OOB}")
    A(f"v_and_b32 v{HT+1}, s78, v2")
    A(f"v_cmp_eq_u32 vcc, 0, v{HT+1}")
    A("s_nop 1")
    A(f"v_cndmask_b32 v{HOA}, v{HT}, v{HOA}, vcc")
    A("s_call_b64 s[62:63], L_sub_final")
    A(f"s_mov_b32 s14, {32*SLOT2}")
    A("s_movk_i32 s18, 9216")

    Lb("L_h_pvpre")
    PT = 28
    pv_masks(VM, HC, PT)
    for r in range(4):
        A(f"v_mov_b32 v{VACC+r}, 0")
    stamp(10)
    lds_spin("L_h_smwait", HLB, O_CNT + C_SM, PT, 8, sleep=4)
    A("s_lshl_b32 s3, s28, 3")
    A(f"v_add_u32 v{PT}, s3, v{HLB}")
    A(f"ds_read_b32 v{PT+1}, v{PT} offset:{O_ST}")
    A("s_lshl_b32 s3, s28, 9")
    A(f"v_lshl_add_u32 v{PT}, v2, 2, v{HLB}")
    A(f"v_add_u32 v{PT}, s3, v{PT}")
    A(f"ds_read_b32 v{VPC}, v{PT} offset:{O_E}")
    A(f"ds_read_b32 v{VPC+1}, v{PT} offset:{O_E+256}")
    softmax_factor(HLB, RING, PT, PT + 1)
    for u in range(2):
        A(f"v_mul_f32 v{VPC+u}, v{VPC+u}, v{PT}")
        A(f"v_cvt_pk_bf16_f32 v{VPC+u}, v{VPC+u}, v{VPC+u}")
    A("s_lshl_b32 s3, s28, 15")
    A(f"v_lshl_add_u32 v{PT}, v2, 4, s3")
    A("s_mov_b32 s34, 2")
    Lb("L_h_pv")
    for i in range(16):
        if i == 8:
            A("s_waitcnt lgkmcnt(0)")
        A(f"ds_read_b128 {vr(RING+4*i,4)}, v{PT} offset:{i*1024}")
    A("s_waitcnt lgkmcnt(0)")
    A("s_call_b64 s[62:63], L_sub_pv")
    A(f"v_mov_b32 v{VPC}, v{VPC+1}")
    A(f"v_add_u32 v{PT}, 16384, v{PT}")
    A("s_sub_u32 s34, s34, 1")
    A("s_cmp_lg_u32 s34, 0")
    A("s_cbranch_scc1 L_h_pv")
    A(f"v_lshl_add_u32 v{PT}, v0, 3, v{HLB}")
    A("s_nop 1")
    A(f"ds_write_b64 v{PT}, {vr(VACC,2)} offset:{O_OP}")
    for r in range(8):
        A(f"v_mov_b32 v{GT+r}, v{GH+r}")
    A("s_waitcnt lgkmcnt(0)")
    for r in range(48):
        A(f"v_mov_b32 v{HD+r}, 0")
    stamp(11)
    A("s_barrier")
    stamp(12)
    A("s_call_b64 s[62:63], L_sub_gemv")
    stamp(13)
    A("s_cmp_eq_u32 s64, 0")
    A("s_cbranch_scc1 L_fin")
    A("s_call_b64 s[62:63], L_sub_final")
    stamp(14)

    Lb("L_fin")
    if fixdur:
        Lb("L_fix")
        A("s_memrealtime s[76:77]")
        A("s_waitcnt lgkmcnt(0)")
        A("s_sub_u32 s76, s76, s74")
        A(f"s_cmp_lt_u32 s76, {fixdur*100}")
        A("s_cbranch_scc1 L_fix")
    if stamps:
        A("s_waitcnt vmcnt(0)")
        stamp(15)
        A("s_getreg_b32 s70, hwreg(HW_REG_XCC_ID)")
        A(f"v_writelane_b32 v{VST}, s70, 16")
        A("s_getreg_b32 s70, hwreg(HW_REG_HW_ID)")
        A(f"v_writelane_b32 v{VST}, s70, 63")
        A(f"s_add_u32 s72, s72, {WS_STAMP}")
        A("s_addc_u32 s73, s73, 0")
        A("s_lshl_b32 s3, s2, 11")
        A("v_lshlrev_b32 v0, 2, v0")
        A("v_add_u32 v0, s3, v0")
        A(f"global_store_dword v0, v{VST}, s[72:73]")
    Lb("L_end")
    A("s_endpgm")

    Lb("L_sub_load")

    def issue_pair(n):
        sl = ST + 12 * (n % NSL)
        if (n & 3) == 0:
            A(f"s_add_u32 s35, s28, {n >> 2}")
            A("s_and_b32 s35, s35, 3")
            A(f"s_mul_i32 s35, s35, {32*1152}")
        A(f"s_add_u32 s33, s35, {8*(n&3)*1152}")
        A(f"s_add_u32 s34, s33, {4*1152}")
        A(f"buffer_load_dwordx4 {vr(sl,4)}, v{HVB}, s[20:23], s33 offen {spol}")
        A(f"buffer_load_dwordx4 {vr(sl+4,4)}, v{HVB}, s[20:23], s34 offen {spol}")
        if n < 4:
            A(f"buffer_load_dwordx2 {vr(sl+8,2)}, v{HVS}, s[20:23], s33 offen {spol}")
            A(f"buffer_load_dwordx2 {vr(sl+10,2)}, v{HVS}, s[20:23], s34 offen {spol}")

    for n in range(NSL):
        issue_pair(n)
    for n in range(16):
        sg, r = n >> 2, n & 3
        sl = ST + 12 * (n % NSL)
        younger = sum((4 if m < 4 else 2) for m in range(n + 1, min(n + NSL, 16)))
        A(f"s_waitcnt vmcnt({younger})")
        for t in range(8):
            A(f"v_perm_b32 v{HF+32*sg+4*t+r}, v{sl+4+(t>>1)}, v{sl+(t>>1)}, s{58+(t&1)}")
        if n < 4:
            for t in range(4):
                A(f"v_perm_b32 v{HF+128+4*t+r}, v{sl+10+(t>>1)}, v{sl+8+(t>>1)}, s{58+(t&1)}")
        if n + NSL < 16:
            issue_pair(n + NSL)
    A("s_setpc_b64 s[62:63]")

    Lb("L_sub_gemv")
    for k in range(8):
        A(f"ds_read_b64 {vr(OR+2*k,2)}, v{HOP} offset:{O_OP+512*k}")
    A(f"buffer_store_dwordx4 {vr(GT,4)}, v{HPM}, s[24:27], 0 offen sc1")
    A(f"buffer_store_dwordx4 {vr(GT+4,4)}, v{HPR}, s[24:27], 0 offen sc1")
    for k in range(1, 8):
        A(f"s_waitcnt lgkmcnt({7-k})")
        A(f"v_add_f32 v{OR}, v{OR}, v{OR+2*k}")
        A(f"v_add_f32 v{OR+1}, v{OR+1}, v{OR+2*k+1}")
    A(f"v_cvt_pk_bf16_f32 v{OR}, v{OR}, v{OR+1}")
    A("s_nop 1")
    bc = [f"v_mov_b32_dpp v{HA+n}, v{OR} row_newbcast:{n} {DPP_ALL}" for n in range(16)]
    for n in range(6):
        A(bc.pop(0))
    fill = bc + [f"v_mov_b32 v{OR+8+r}, v{HD+32+4*r}" for r in range(4)]
    fill += [f"buffer_store_dwordx4 {vr(OR+8,4)}, v{HPR}, s[24:27], 0 offen offset:{SLOT} sc1"]
    for t in range(4):
        A(f"v_mfma_f32_16x16x32_bf16 {vr(HD+32+4*t,4)}, {vr(HA,4)}, {vr(HF+128+4*t,4)}, {vr(HD+32+4*t,4)}")
        A(fill.pop(0))
    for sg in range(4):
        order = range(8) if sg < 3 else (0, 4, 1, 5, 2, 6, 3, 7)
        for t in order:
            A(f"v_mfma_f32_16x16x32_bf16 {vr(HD+4*t,4)}, {vr(HA+4*sg,4)}, {vr(HF+32*sg+4*t,4)}, {vr(HD+4*t,4)}")
            if fill:
                A(fill.pop(0))
    A("s_nop 4")
    for r in range(4):
        A(f"v_cndmask_b32 v{OR+4+r}, v{HD+4*r}, v{HD+16+4*r}, s[60:61]")
    A(f"buffer_store_dwordx4 {vr(OR+4,4)}, v{HPM}, s[24:27], 0 offen offset:{SLOT} sc1")
    A("s_setpc_b64 s[62:63]")

    GA, YA = 32, 48
    Lb("L_sub_final")
    for base, off in ((GA, 0), (YA, SLOT)):
        for k in range(4):
            so = "0" if k == 0 else f"s{64+k}"
            A(f"buffer_load_dwordx4 {vr(base+4*k,4)}, v{GS}, s[12:15], {so} offen offset:{off} sc1")

    def fold(base, first):
        if first:
            A(f"v_max3_u32 v{HT}, v{base}, v{base+1}, v{base+2}")
            for n in range(3, 15, 2):
                A(f"v_max3_u32 v{HT}, v{HT}, v{base+n}, v{base+n+1}")
            A(f"v_max_u32 v{HT}, v{HT}, v{base+15}")
        else:
            for n in range(0, 16, 2):
                A(f"v_max3_u32 v{HT}, v{HT}, v{base+n}, v{base+n+1}")
            A(f"v_cmp_eq_u32 vcc, -1, v{HT}")
        for r in range(4):
            A(f"v_add_f32 v{base+r}, v{base+r}, v{base+4+r}")
        for r in range(4):
            A(f"v_add_f32 v{base+8+r}, v{base+8+r}, v{base+12+r}")
        for r in range(4):
            A(f"v_add_f32 v{base+r}, v{base+r}, v{base+8+r}")
    A("s_waitcnt vmcnt(4)")
    fold(GA, True)
    A("s_waitcnt vmcnt(0)")
    fold(YA, False)
    A("s_cbranch_vccnz L_sub_final_again")
    Lb("L_sub_final_ok")
    for b in (GA, YA):
        A(f"v_permlane32_swap_b32 v{b}, v{b+1}")
        A(f"v_permlane32_swap_b32 v{b+2}, v{b+3}")
    for b in (GA, YA):
        A(f"v_add_f32 v{b}, v{b}, v{b+1}")
        A(f"v_add_f32 v{b+2}, v{b+2}, v{b+3}")
    A(f"v_permlane16_swap_b32 v{GA}, v{GA+2}")
    A("s_cmp_lt_u32 s29, 16")
    A(f"v_permlane16_swap_b32 v{YA}, v{YA+2}")
    A(f"v_add_f32 v{GA}, v{GA}, v{GA+2}")
    A("s_nop 0")
    A(f"v_add_f32 v{YA}, v{YA}, v{YA+2}")
    A(f"v_add_f32_dpp v{GA}, v{GA}, v{GA} row_ror:8 {DPP_ALL}")
    A("s_nop 0")
    A(f"v_add_f32_dpp v{YA}, v{YA}, v{YA} row_ror:8 {DPP_ALL}")
    A("s_cbranch_scc1 L_sub_final_wide")
    for sh in (4, 2):
        A(f"v_add_f32_dpp v{GA}, v{GA}, v{GA} row_ror:{sh} {DPP_ALL}")
        A("s_nop 0")
        A(f"v_add_f32_dpp v{YA}, v{YA}, v{YA} row_ror:{sh} {DPP_ALL}")
        A("s_nop 0")
    Lb("L_sub_final_wide")
    A(f"v_cvt_pk_bf16_f32 v{GA}, v{GA}, v{YA}")
    A(f"v_and_b32 v{YA}, 0xffff0000, v{GA}")
    A(f"v_lshlrev_b32 v{GA}, 16, v{GA}")
    A(f"v_add_f32 v{GA}, v{GA}, v{HB2}")
    bfround(GA, GA)
    A(f"v_mul_f32 v{HT}, {f32(-LOG2E)}, v{GA}")
    A(f"v_exp_f32 v{HT}, v{HT}")
    A("s_nop 0")
    A(f"v_add_f32 v{HT}, 1.0, v{HT}")
    A(f"v_rcp_f32 v{HT}, v{HT}")
    A("s_nop 0")
    A(f"v_mul_f32 v{GA}, v{GA}, v{HT}")
    bfround(GA, GA)
    A(f"v_mul_f32 v{YA}, v{YA}, v{GA}")
    bfround(YA, YA)
    A(f"v_add_f32 v{YA}, v{YA}, v{HXV}")
    A(f"v_cvt_pk_bf16_f32 v{YA}, v{YA}, v{YA}")
    A(f"buffer_store_short v{YA}, v{HOA}, s[16:19], s68 offen")
    A("s_setpc_b64 s[62:63]")
    Lb("L_sub_final_again")
    A("s_sub_u32 s69, s69, 16")
    A("s_cbranch_scc0 L_sub_final")
    A("s_mov_b32 s69, 0")
    A("s_branch L_sub_final_ok")

    o.append('.section .rodata,"a"')
    o.append(".p2align 6")
    o.append(f".amdhsa_kernel {NAME}_kernel")
    o.append("  .amdhsa_next_free_vgpr 256")
    o.append("  .amdhsa_next_free_sgpr 80")
    o.append("  .amdhsa_accum_offset 256")
    o.append("  .amdhsa_group_segment_fixed_size 0")
    o.append("  .amdhsa_kernarg_size 104")
    o.append("  .amdhsa_user_sgpr_count 2")
    o.append("  .amdhsa_user_sgpr_kernarg_segment_ptr 1")
    o.append("  .amdhsa_system_sgpr_workgroup_id_x 1")
    o.append("  .amdhsa_float_denorm_mode_32 3")
    o.append(".end_amdhsa_kernel")
    return "\n".join(o) + "\n"


if __name__ == "__main__":
    cfg = json.loads(sys.argv[2]) if len(sys.argv) > 2 else {}
    open(sys.argv[1], "w").write(gen(**cfg))
```

```python
import struct, sys, json

NAME = "recurrent_scan__mha_block_cached__dense_activation_gelu__decode"
HEADER = open("header.txt").read()

WS_P1 = 0x000000
WS_G = 0x300000
WS_X = 0x500000
SLOT = 3072
SLOT2 = 2 * SLOT
WS_S = 0x520000
WS_STAMP = 0x20000000

L_V = 0x00000
L_B = 0x20000
O_OP = 0x0000
O_E = 0x1000
O_ST = 0x1800
O_CNT = 0x1840
O_Q = 0x1880
O_HR = 0x1980
O_XN = 0x19C0
LDS_BYTES = L_B + 0x2000
C_LN, C_S1, C_Q, C_H, C_SM = 0, 4, 8, 12, 16

LOG2E = 1.4426950408889634
OOB = "0x10000000"


def f32(x):
    return "0x%08x" % struct.unpack("<I", struct.pack("<f", x))[0]


def vr(a, n=1):
    return f"v{a}" if n == 1 else f"v[{a}:{a+n-1}]"


DPP_ALL = "row_mask:0xf bank_mask:0xf"


def cl(i):
    return ((i & 1) << 3) | (((i >> 1) & 1) << 2) | (i >> 2)


def gen(D=5, D0=0, DK=0, DV=0, stag_shift=20, stamps=False, hprio=0, kvpol="nt", wpol="nt", spol="",
        NSL=1, xown=False, pf=2, xs0=0, xs1=0, fixdur=0, ctl=True, Dhi=6, theta=10, pmask=3, pacer=1, DT=0):
    o = []
    cur = [o]
    A = lambda s: cur[0].append("  " + s)
    Lb = lambda s: cur[0].append(s + ":")

    def capture(fn):
        tmp = []
        cur[0] = tmp
        fn()
        cur[0] = o
        return tmp

    VST = 1
    D0 = D0 or D; DK = DK or D; DV = DV or D; DT = DT or DV
    pace = lambda d, i: f"s_waitcnt vmcnt({int(d + (0.5 if i & 1 else 0)) - 1})"

    def stamp(i):
        if stamps:
            A("s_memrealtime s[70:71]")
            A("s_waitcnt lgkmcnt(0)")
            A(f"v_writelane_b32 v{VST}, s70, {i}")

    def bfround(dst, src):
        A(f"v_cvt_pk_bf16_f32 v{dst}, v{src}, v{src}")
        A(f"v_and_b32 v{dst}, 0xffff0000, v{dst}")

    def allreduce_row(op, v):
        for sh in (8, 4, 2, 1):
            A("s_nop 1")
            A(f"{op}_dpp v{v}, v{v}, v{v} row_ror:{sh} {DPP_ALL}")

    def swap_reduce(op, v, t, which):
        A(f"v_mov_b32 v{t}, v{v}")
        A("s_nop 1")
        A(f"v_permlane{which}_swap_b32 v{t}, v{v}")
        A("s_nop 1")
        A(f"{op} v{v}, v{v}, v{t}")

    def lds_spin(label, vaddr, off, vtmp, target, sleep=1):
        Lb(label)
        A(f"ds_read_b32 v{vtmp}, v{vaddr} offset:{off}")
        A("s_waitcnt lgkmcnt(0)")
        A(f"v_readfirstlane_b32 s3, v{vtmp}")
        A(f"s_cmp_ge_u32 s3, {target}")
        A(f"s_cbranch_scc1 {label}_ok")
        if sleep:
            A(f"s_sleep {sleep}")
        A("s_sub_u32 s69, s69, 1")
        A(f"s_cbranch_scc0 {label}")
        A("s_mov_b32 s69, 0")
        Lb(label + "_ok")

    def lds_arrive(vaddr, off, vone):
        A("s_mov_b64 exec, 1")
        A(f"ds_add_u32 v{vaddr}, v{vone} offset:{off}")
        A("s_mov_b64 exec, -1")

    def pv_masks(vm, vc, t0):
        A(f"v_and_b32 v{t0}, 4, v{vc}")
        A(f"v_lshlrev_b32 v{t0}, 2, v{t0}")
        A(f"v_mov_b32 v{t0+1}, 0xffff")
        A(f"v_lshlrev_b32 v{t0}, v{t0}, v{t0+1}")
        A(f"v_and_b32 v{t0+1}, 3, v{vc}")
        A(f"v_lshrrev_b32 v{vm}, 3, v{vc}")
        A(f"v_lshl_add_u32 v{t0+1}, v{t0+1}, 1, v{vm}")
        for r in range(4):
            A(f"v_cmp_eq_u32 vcc, {r}, v{t0+1}")
            A("s_nop 1")
            A(f"v_cndmask_b32 v{vm+r}, 0, v{t0}, vcc")

    def softmax_factor(vbase, vst, vf, vown):
        A(f"ds_read_b128 {vr(vst,4)}, v{vbase} offset:{O_ST}")
        A(f"ds_read_b128 {vr(vst+4,4)}, v{vbase} offset:{O_ST+16}")
        A("s_waitcnt lgkmcnt(0)")
        m, t = vst + 8, vst + 9
        A(f"v_max3_f32 v{m}, v{vst}, v{vst+2}, v{vst+4}")
        A(f"v_max_f32 v{m}, v{m}, v{vst+6}")
        for k in range(4):
            A(f"v_sub_f32 v{vst+2*k}, v{vst+2*k}, v{m}")
        A(f"v_sub_f32 v{t}, v{vown}, v{m}")
        for k in range(4):
            A(f"v_mul_f32 v{vst+2*k}, {f32(LOG2E)}, v{vst+2*k}")
        A(f"v_mul_f32 v{t}, {f32(LOG2E)}, v{t}")
        for k in range(4):
            A(f"v_exp_f32 v{vst+2*k}, v{vst+2*k}")
        A(f"v_exp_f32 v{t}, v{t}")
        A(f"v_mul_f32 v{m}, v{vst}, v{vst+1}")
        for k in range(1, 4):
            A(f"v_fmac_f32 v{m}, v{vst+2*k}, v{vst+2*k+1}")
        A(f"v_rcp_f32 v{m}, v{m}")
        A("s_nop 0")
        A(f"v_mul_f32 v{vf}, v{t}, v{m}")

    o.append(HEADER.rstrip())
    o.append(f"; @launch grid=(256,1,1) block=(512,1,1) lds={LDS_BYTES}")
    o.append('.amdgcn_target "amdgcn-amd-amdhsa--gfx950"')
    o.append(".text")
    o.append(f".globl {NAME}_kernel")
    o.append(".p2align 8")
    o.append(f".type {NAME}_kernel,@function")
    Lb(f"{NAME}_kernel")
    A("s_cmp_ge_u32 s2, 256")
    A("s_cbranch_scc1 L_end")
    if fixdur:
        A("s_memrealtime s[74:75]")
    A("s_load_dwordx4 s[4:7], s[0:1], 8")
    if stamps:
        A("s_load_dwordx2 s[72:73], s[0:1], 96")
    A("v_lshrrev_b32 v1, 6, v0")
    A("v_and_b32 v2, 63, v0")
    A("v_readfirstlane_b32 s28, v1")
    A("s_mov_b32 s69, 0x200000")
    if stamps:
        A(f"v_mov_b32 v{VST}, 0")
    stamp(0)
    A("s_cmp_ge_u32 s28, 4")
    A("s_cbranch_scc1 L_helper")

    VQ, VP, VA0, VA1, VB, VC, VS, VMAX = 4, 8, 10, 11, 12, 13, 14, 15
    VE, VM, VAO, VACC = 16, 32, 36, 44
    RING, RING2, VT, VLB = 48, 112, 176, 188
    VPC = VE + 2
    if ctl:
        A("s_load_dwordx2 s[46:47], s[0:1], 96")
    A("v_lshlrev_b32 v3, 4, v2")
    A("s_lshl_b32 s3, s28, 12")
    A("v_add_u32 v3, s3, v3")
    A(f"s_lshl_b32 s29, s2, {stag_shift}")
    A("s_lshl_b32 s3, s2, 20")
    A("s_mov_b32 s18, 0x100000")
    A("s_mov_b32 s19, 0x20000")

    def tile_offsets():
        for k in range(4):
            A(f"s_add_u32 s{36+k}, s29, {k*16384}")
            A(f"s_and_b32 s{36+k}, s{36+k}, 0xfffff")

    def next_group():
        A("s_add_u32 s29, s29, 65536")
        tile_offsets()

    def ring_load(i, ring=RING):
        A(f"buffer_load_dwordx4 {vr(ring+4*i,4)}, v3, s[16:19], s{36+i//4} offen offset:{(i%4)*1024} {kvpol}")

    tile_offsets()
    A("s_waitcnt lgkmcnt(0)")
    A("s_add_u32 s16, s4, s3")
    A("s_addc_u32 s17, s5, 0")
    for i in range(int(D0)):
        ring_load(i)
    A("s_add_u32 s12, s6, s3")
    A("s_addc_u32 s13, s7, 0")
    A("s_mov_b32 s14, 0x100000")
    A("s_mov_b32 s15, 0x20000")
    A("s_barrier")
    for i in range(int(D0), 16):
        A(pace(D0, i))
        ring_load(i)
    A(f"s_add_u32 s35, s29, {56*16384}")
    A("s_lshl_b32 s33, s28, 15")
    A("s_mov_b32 s34, 8")
    Lb("L_vdma")
    A("s_and_b32 s36, s35, 0xfffff")
    A("s_mov_b32 m0, s33")
    for j in range(4):
        A(pace(D0, j))
        A(f"buffer_load_dwordx4 v3, s[12:15], s36 offen offset:{j*1024} {kvpol} lds")
    A("s_add_u32 s35, s35, 16384")
    A("s_add_u32 s33, s33, 4096")
    A("s_sub_u32 s34, s34, 1")
    A("s_cmp_lg_u32 s34, 0")
    A("s_cbranch_scc1 L_vdma")
    stamp(1)
    A(f"v_mov_b32 v{VLB}, {L_B}")
    for k in (1, 2, 3):
        A(f"s_mov_b32 s{38+2*k}, 0x{(0x11111111 << k) & 0xffffffff:08x}")
        A(f"s_mov_b32 s{39+2*k}, 0x{(0x11111111 << k) & 0xffffffff:08x}")
    A(f"v_mov_b32 v{VMAX}, 0xff800000")
    if ctl:
        A(f"s_add_u32 s46, s46, {WS_S}")
        A("s_addc_u32 s47, s47, 0")
        A("s_mov_b32 s20, s46")
        A("s_mov_b32 s21, s47")
        A(f"s_movk_i32 s22, {40*128}")
        A("s_mov_b32 s23, 0x20000")
        A("s_lshl_b32 s54, s2, 2")
        A("s_add_u32 s54, s54, s28")
        A("s_mov_b32 s48, 0")
    A(f"v_and_b32 v{VT+2}, 15, v2")
    A(f"v_lshl_add_u32 v{VT+3}, v{VT+2}, 4, v{VLB}")
    lds_spin("L_qwait", VLB, O_CNT + C_Q, VT, 1)
    A(f"ds_read_b128 {vr(VQ,4)}, v{VT+3} offset:{O_Q}")
    A("s_mov_b32 s34, 16")
    if ctl:
        A("s_memrealtime s[50:51]")
        A("s_waitcnt lgkmcnt(0)")
        A("s_mov_b32 s49, s50")
        A("s_mov_b32 s52, s50")
        A("s_mov_b32 s53, s50")
    stamp(2)
    A("s_waitcnt lgkmcnt(0)")

    def loop_stamp(base):
        if stamps:
            A("s_memrealtime s[70:71]")
            A(f"s_sub_u32 m0, {base}, s34")
            A("s_waitcnt lgkmcnt(0)")
            A(f"v_writelane_b32 v{VST}, s70, m0")

    ckn = [0]

    def clock():
        if ctl:
            A("s_memrealtime s[50:51]")

    def checkpoint():
        if not ctl:
            return
        ckn[0] += 1
        n = ckn[0]
        A("s_waitcnt lgkmcnt(0)")
        A("s_sub_u32 s55, s50, s49")
        A("s_add_u32 s48, s48, 128")
        A(f"s_cmp_lg_u32 s54, {4*pacer}")
        A(f"s_cbranch_scc1 L_ck{n}_follow")
        A("s_sub_u32 s3, s50, s53")
        A("s_lshr_b32 s55, s3, 1")
        A("s_add_u32 s3, s3, s55")
        A("s_add_u32 s3, s3, s50")
        A("s_mov_b32 s53, s52")
        A("s_mov_b32 s52, s50")
        A(f"v_mov_b32 v{VT+11}, s3")
        A("s_cmp_lt_u32 s48, 384")
        A(f"s_cbranch_scc1 L_ck{n}_nopub")
        A("s_mov_b64 exec, 1")
        A(f"buffer_store_dword v{VT+11}, off, s[20:23], s48 offset:256 sc1")
        A("s_mov_b64 exec, -1")
        Lb(f"L_ck{n}_nopub")
        A(f"s_and_b32 s3, s48, {pmask*128}")
        A(f"s_cmp_eq_u32 s3, 0")
        A(f"s_branch L_ck{n}_done")
        Lb(f"L_ck{n}_follow")
        A("s_load_dword s49, s[46:47], s48")
        A(f"s_sub_u32 s55, s55, {theta}")
        A(f"s_cmp_lt_u32 s55, 1500")
        Lb(f"L_ck{n}_done")

    def cpace(d, i, tag):
        if not ctl:
            A(pace(d, i))
            return
        A(f"s_cbranch_scc1 L_{tag}{i}")
        A(pace(d, i))
        Lb(f"L_{tag}{i}")
        A(pace(Dhi, i))

    Lb("L_kloop")
    loop_stamp(33)
    next_group()
    A("s_cmp_eq_u32 s34, 1")
    A("s_cselect_b32 s16, s12, s16")
    A("s_cselect_b32 s17, s13, s17")
    checkpoint()

    def red_a(i):
        j = i & 3
        dst = VA0 if j < 2 else VA1
        bm = "0x3" if (j & 1) == 0 else "0xc"
        p = VP + (i & 1)
        A(f"v_add_f32_dpp v{dst}, v{p}, v{p} row_ror:8 row_mask:0xf bank_mask:{bm}")

    def red_b(which):
        src = VA0 if which == 0 else VA1
        bm = "0x5" if which == 0 else "0xa"
        A(f"v_add_f32_dpp v{VB}, v{src}, v{src} row_half_mirror row_mask:0xf bank_mask:{bm}")

    def red_c():
        A(f"v_add_f32_dpp v{VC}, v{VB}, v{VB} quad_perm:[1,0,3,2] {DPP_ALL}")

    def red_d(k):
        dst = VS if k == 0 else VB
        A(f"v_add_f32_dpp v{dst}, v{VC}, v{VC} quad_perm:[2,3,0,1] {DPP_ALL}")

    def red_e(k):
        if k:
            A(f"v_cndmask_b32 v{VS}, v{VS}, v{VB}, s[{38+2*k}:{39+2*k}]")

    for i in range(16):
        k, j = i >> 2, i & 3
        p = VP + (i & 1)
        R = RING + 4 * i
        A(f"v_dot2_f32_bf16 v{p}, v{R}, v{VQ}, 0")
        A(f"v_dot2_f32_bf16 v{p}, v{R+1}, v{VQ+1}, v{p}")
        if i > 0:
            red_a(i - 1)
        A(f"v_dot2_f32_bf16 v{p}, v{R+2}, v{VQ+2}, v{p}")
        if k > 0:
            if j == 0:
                red_b(0)
            elif j == 1:
                red_b(1)
            elif j == 2:
                red_c()
            else:
                red_d(k - 1)
        A(f"v_dot2_f32_bf16 v{p}, v{R+3}, v{VQ+3}, v{p}")
        if k > 0 and j == 3:
            red_e(k - 1)
        cpace(DK, i, "pk")
        ring_load(i)
        if i == 14:
            clock()
    rot = [f"v_mov_b32 v{VE+u}, v{VE+u+1}" for u in range(15)]
    A(rot.pop(0))
    red_a(15)
    red_b(0)
    A(rot.pop(0))
    red_b(1)
    A(rot.pop(0)); A(rot.pop(0))
    red_c()
    A(rot.pop(0)); A(rot.pop(0))
    red_d(3)
    red_e(3)
    bfround(VS, VS)
    A(f"v_mul_f32 v{VS}, {f32(128 ** -0.5)}, v{VS}")
    for s in rot:
        A(s)
    bfround(VE + 15, VS)
    A(f"v_max_f32 v{VMAX}, v{VMAX}, v{VE+15}")
    A("s_sub_u32 s34, s34, 1")
    A("s_cmp_lg_u32 s34, 0")
    A("s_cbranch_scc1 L_kloop")
    stamp(3)

    def sm_a():
        allreduce_row("v_max_f32", VMAX)
        swap_reduce("v_max_f32", VMAX, VT, 16)
        swap_reduce("v_max_f32", VMAX, VT, 32)
        for u in range(16):
            A(f"v_sub_f32 v{VE+u}, v{VE+u}, v{VMAX}")
        for u in range(16):
            A(f"v_mul_f32 v{VE+u}, {f32(LOG2E)}, v{VE+u}")
        for u in range(16):
            A(f"v_exp_f32 v{VE+u}, v{VE+u}")
        A(f"v_add_f32 v{VS}, v{VE}, v{VE+1}")
        for u in range(2, 16):
            A(f"v_add_f32 v{VS}, v{VS}, v{VE+u}")
        A(f"s_lshl_b32 s3, s28, 9")
        A(f"v_lshl_add_u32 v{VT+2}, v2, 2, v{VLB}")
        A(f"v_add_u32 v{VT+2}, s3, v{VT+2}")
        A(f"ds_write_b32 v{VT+2}, v{VE+14} offset:{O_E}")
        A(f"ds_write_b32 v{VT+2}, v{VE+15} offset:{O_E+256}")
        allreduce_row("v_add_f32", VS)
        swap_reduce("v_add_f32", VS, VT, 16)
        swap_reduce("v_add_f32", VS, VT, 32)
        A(f"s_lshl_b32 s3, s28, 3")
        A(f"v_add_u32 v{VT+2}, s3, v{VLB}")
        A(f"ds_write_b32 v{VT+2}, v{VMAX} offset:{O_ST}")
        A(f"ds_write_b32 v{VT+2}, v{VS} offset:{O_ST+4}")
        A(f"v_mov_b32 v{VT+3}, 1")

    def sm_m():
        A(f"v_and_b32 v{VT+2}, 15, v2")
        pv_masks(VM, VT + 2, VT)
        for r in range(4):
            A(f"v_mov_b32 v{VACC+r}, 0")

    def sm_b():
        softmax_factor(VLB, VT, VS, VMAX)
        for u in range(14):
            A(f"v_mul_f32 v{VE+u}, v{VE+u}, v{VS}")
        for u in range(14):
            A(f"v_cvt_pk_bf16_f32 v{VE+u}, v{VE+u}, v{VE+u}")

    nxt = [0]

    def issue2():
        A(pace(DT, nxt[0]))
        ring_load(nxt[0], RING2)
        if nxt[0] == 14:
            clock()
        nxt[0] += 1

    def weave(lines, n):
        step = (len(lines) + n - 1) // n
        for a in range(0, len(lines), step):
            issue2()
            o.extend(lines[a:a + step])

    if stamps:
        A("s_mov_b32 s34, 14")
        loop_stamp(47)
    next_group()
    checkpoint()
    weave(capture(sm_a), 4)
    A("s_waitcnt lgkmcnt(0)")
    lds_arrive(VLB, O_CNT + C_SM, VT + 3)
    weave(capture(sm_m), 1)
    while nxt[0] < 12:
        issue2()
    lds_spin("L_smwait", VLB, O_CNT + C_SM, VT, 8, sleep=0)
    weave(capture(sm_b), 3)
    while nxt[0] < 16:
        issue2()
    stamp(4)

    def build_a(n, i, vp):
        for r in range(4):
            A(f"v_and_b32_dpp v{VAO+4*(n&1)+r}, v{vp}, v{VM+r} row_newbcast:{cl(i)} {DPP_ALL}")

    def pv_mfma(n, reg):
        A(f"v_mfma_f32_16x16x32_bf16 {vr(VACC,4)}, {vr(VAO+4*(n&1),4)}, {vr(reg,4)}, {vr(VACC,4)}")

    if stamps:
        A("s_mov_b32 s34, 13")
        loop_stamp(47)
    next_group()
    checkpoint()
    build_a(0, 0, VE)
    for i in range(16):
        build_a(1, i, VE + 1)
        pv_mfma(0, RING + 4 * i)
        if i < 15:
            build_a(0, i + 1, VE)
        else:
            A("s_nop 0")
        pv_mfma(1, RING2 + 4 * i)
        cpace(DV, i, "px")
        ring_load(i)
        if i == 14:
            clock()
    A("s_mov_b32 s34, 11")

    Lb("L_vloop")
    loop_stamp(46)
    next_group()
    checkpoint()
    build_a(0, 0, VPC)
    for i in range(16):
        if i < 15:
            build_a(i + 1, i + 1, VPC)
        else:
            for u in range(11):
                A(f"v_mov_b32 v{VPC+u}, v{VPC+u+1}")
        pv_mfma(i, RING + 4 * i)
        cpace(DV, i, "pv")
        ring_load(i)
        if i == 14:
            clock()
    A("s_sub_u32 s34, s34, 1")
    A("s_cmp_lg_u32 s34, 0")
    A("s_cbranch_scc1 L_vloop")
    loop_stamp(46)
    A(f"v_lshl_add_u32 v{VT}, v0, 3, v{VLB}")
    A("s_call_b64 s[62:63], L_sub_pv")
    A("s_nop 6")
    A(f"ds_write_b64 v{VT}, {vr(VACC,2)} offset:{O_OP}")
    A("s_waitcnt lgkmcnt(0)")
    stamp(5)
    A("s_barrier")
    if stamps or fixdur:
        A("s_branch L_fin")
    else:
        A("s_endpgm")

    Lb("L_sub_pv")
    build_a(0, 0, VPC)
    for i in range(16):
        if i < 15:
            build_a(i + 1, i + 1, VPC)
        if 15 - i < int(max(DV, Dhi if ctl else 0) + 0.5):
            A(f"s_waitcnt vmcnt({15-i})")
        pv_mfma(i, RING + 4 * i)
    A("s_setpc_b64 s[62:63]")

    GS = 3
    HC, HG, HLB = 4, 5, 6
    HVB, HVS = 7, 8
    HPM, HPR = 9, 10
    HOP = 11
    HB2, HXV, HOA = 12, 13, 14
    HD = 16
    HF2 = 64
    HT = 64
    HA = 88
    XO, XP, XZ, XE = 104, 105, 106, 107
    HF = 112
    ST = 28
    GH, GT = 20, 80
    SX, SWQ, SWO, SW1, SB1, SW2, SB2, SOUT, SDBG, SWS = 36, 40, 42, 44, 46, 48, 50, 52, 54, 56

    def srd(n, base, off_s, size):
        if off_s is None:
            A(f"s_mov_b32 s{n}, s{base}")
            A(f"s_mov_b32 s{n+1}, s{base+1}")
        else:
            A(f"s_add_u32 s{n}, s{base}, {off_s}")
            A(f"s_addc_u32 s{n+1}, s{base+1}, 0")
        A(f"s_mov_b32 s{n+2}, {size}")
        A(f"s_mov_b32 s{n+3}, 0x20000")

    Lb("L_helper")
    A(f"s_load_dwordx2 s[{SX}:{SX+1}], s[0:1], 0")
    A(f"s_load_dwordx4 s[{SWQ}:{SWQ+3}], s[0:1], 24")
    A(f"s_load_dwordx8 s[{SW1}:{SW1+7}], s[0:1], 48")
    A(f"s_load_dwordx4 s[{SOUT}:{SOUT+3}], s[0:1], 80")
    A(f"s_load_dwordx2 s[{SWS}:{SWS+1}], s[0:1], 96")
    if hprio:
        A(f"s_setprio {hprio}")
    A("s_sub_u32 s28, s28, 4")
    A("s_and_b32 s29, s2, 31")
    A("s_lshr_b32 s30, s2, 5")
    A("s_and_b32 s31, s2, 7")
    A("s_lshl_b32 s31, s31, 2")
    A("s_lshr_b32 s3, s29, 3")
    A("s_add_u32 s31, s31, s3")
    A(f"v_and_b32 v{HC}, 15, v2")
    A(f"v_lshrrev_b32 v{HG}, 4, v2")
    A(f"v_mov_b32 v{HLB}, {L_B}")
    for r in range(4):
        A(f"v_mov_b32 v{HD+r}, 0")
    A(f"v_subrev_u32 v{HT}, 256, v0")
    A(f"v_lshl_add_u32 v{HT+1}, v{HT}, 4, v{HLB}")
    A(f"ds_write_b128 v{HT+1}, {vr(HD,4)} offset:{O_OP}")
    A(f"v_lshl_add_u32 v{HT+1}, v{HC}, 2, v{HLB}")
    A(f"ds_write_b32 v{HT+1}, v{HD} offset:{O_CNT}")
    A(f"v_mul_u32_u24 v{HT}, 36, v{HT}")
    A("s_mov_b32 s58, 0x05040100")
    A("s_mov_b32 s59, 0x07060302")
    A("s_waitcnt lgkmcnt(0)")
    XR = 52
    srd(8, SX, None, 9216)
    A(f"buffer_load_dwordx4 {vr(XR,4)}, v{HT}, s[8:11], 0 offen")
    A(f"buffer_load_dwordx4 {vr(XR+4,4)}, v{HT}, s[8:11], 0 offen offset:16")
    A(f"buffer_load_dword v{XR+8}, v{HT}, s[8:11], 0 offen offset:32")
    A("s_cmp_eq_u32 s28, 0")
    A(f"s_cselect_b32 s12, s{SWQ}, s{SW1}")
    A(f"s_cselect_b32 s13, s{SWQ+1}, s{SW1+1}")
    A(f"s_mov_b32 s14, {576*9216}")
    A(f"s_cselect_b32 s14, {576*8192}, s14")
    A("s_mov_b32 s15, 0x20000")
    A("s_movk_i32 s32, 9216")
    A("s_cselect_b32 s32, 8192, s32")
    A("s_mul_i32 s33, s31, 288")
    A("s_lshl_b32 s3, s29, 8")
    A("s_cmp_eq_u32 s28, 0")
    A("s_cselect_b32 s33, s3, s33")
    A("s_mul_i32 s3, s32, 72")
    A("s_mul_i32 s3, s3, s30")
    A("s_add_u32 s33, s33, s3")
    A("s_mul_i32 s3, s32, 18")
    A(f"v_mul_lo_u32 v{HT+1}, s3, v{HG}")
    L1 = HF
    A("s_cmp_ge_u32 s28, 2")
    A("s_cbranch_scc1 L_h_ld_narrow")
    A(f"v_lshl_add_u32 v{HT+1}, v{HC}, 4, v{HT+1}")
    for e in range(18):
        A(f"buffer_load_dwordx4 {vr(L1+4*e,4)}, v{HT+1}, s[12:15], s33 offen {wpol}")
        A("s_add_u32 s33, s33, s32")
    A("s_barrier")
    A("s_waitcnt vmcnt(18)")
    A("s_branch L_h_ln")
    Lb("L_h_ld_narrow")
    A("s_cmp_eq_u32 s28, 3")
    A("s_cbranch_scc1 L_h_ld_none")
    A(f"v_lshl_add_u32 v{HT+1}, v{HC}, 1, v{HT+1}")
    for e in range(18):
        A(f"buffer_load_ushort v{L1+e}, v{HT+1}, s[12:15], s33 offen offset:256 {wpol}")
        A("s_add_u32 s33, s33, s32")
    A("s_barrier")
    A("s_waitcnt vmcnt(18)")
    A("s_branch L_h_ln")
    Lb("L_h_ld_none")

    def xchg_setup():
        A(f"s_lshl_b32 s3, s29, 11")
        A(f"s_add_u32 s3, s3, {WS_X}")
        srd(24, SWS, "s3", 2048)
        A("s_lshl_b32 s3, s30, 7")
        A(f"v_lshl_add_u32 v{XP if xown else XO}, v2, 2, s3")
        A("s_lshl_b32 s3, s30, 2")
        A(f"v_lshl_add_u32 v{XO if xown else XP}, v2, 7, s3")
    xchg_setup()
    A("s_mov_b64 exec, 0xff")
    A(f"buffer_load_dword v{XZ}, v{XO}, s[24:27], 0 offen sc1")
    A("s_mov_b64 exec, -1")
    A("s_barrier")
    A("s_waitcnt vmcnt(1)")

    Lb("L_h_ln")
    stamp(1)
    XF = HD
    SUM, T1, MEAN = 34, 35, 36
    for d in range(9):
        A(f"v_lshlrev_b32 v{XF+2*d}, 16, v{XR+d}")
        A(f"v_and_b32 v{XF+2*d+1}, 0xffff0000, v{XR+d}")
    A(f"v_add_f32 v{SUM}, v{XF}, v{XF+1}")
    for e in range(2, 18):
        A(f"v_add_f32 v{SUM}, v{SUM}, v{XF+e}")
    allreduce_row("v_add_f32", SUM)
    swap_reduce("v_add_f32", SUM, T1, 16)
    A(f"v_mul_f32 v{MEAN}, {f32(1/576)}, v{SUM}")
    A(f"v_mov_b32 v{SUM}, 0")
    for e in range(18):
        t = 38 + (e & 1)
        A(f"v_sub_f32 v{t}, v{XF+e}, v{MEAN}")
        A(f"v_fmac_f32 v{SUM}, v{t}, v{t}")
    allreduce_row("v_add_f32", SUM)
    swap_reduce("v_add_f32", SUM, T1, 16)
    A(f"v_mul_f32 v{SUM}, {f32(1/576)}, v{SUM}")
    bfround(MEAN, MEAN)
    bfround(SUM, SUM)
    A(f"v_add_f32 v{SUM}, {f32(1e-5)}, v{SUM}")
    bfround(SUM, SUM)
    A(f"v_sqrt_f32 v{SUM}, v{SUM}")
    A("s_nop 0")
    bfround(SUM, SUM)
    A(f"v_rcp_f32 v{SUM}, v{SUM}")
    for e in range(18):
        A(f"v_sub_f32 v{XF+e}, v{XF+e}, v{MEAN}")
    for d in range(9):
        A(f"v_cvt_pk_bf16_f32 v{XR+d}, v{XF+2*d}, v{XF+2*d+1}")
    for d in range(9):
        A(f"v_lshlrev_b32 v{XF+2*d}, 16, v{XR+d}")
        A(f"v_and_b32 v{XF+2*d+1}, 0xffff0000, v{XR+d}")
    for e in range(18):
        A(f"v_mul_f32 v{XF+e}, v{XF+e}, v{SUM}")
    for d in range(9):
        A(f"v_cvt_pk_bf16_f32 v{XR+d}, v{XF+2*d}, v{XF+2*d+1}")
    A(f"v_lshrrev_b32 v{HT}, 5, v2")
    A("s_lshl_b32 s3, s28, 1")
    A(f"v_add_u32 v{HT}, s3, v{HT}")
    A(f"v_and_b32 v{HT+1}, 3, v2")
    A(f"v_lshl_add_u32 v{HT}, v{HT}, 2, v{HT+1}")
    A(f"v_mul_u32_u24 v{HT}, 48, v{HT}")
    A(f"v_add_u32 v{HT}, v{HT}, v{HLB}")
    A(f"v_bfe_u32 v{HT+1}, v2, 2, 3")
    A(f"v_mov_b32 v15, 1")
    A(f"v_cmp_eq_u32 vcc, s30, v{HT+1}")
    A("s_and_saveexec_b64 s[34:35], vcc")
    A(f"ds_write_b128 v{HT}, {vr(XR,4)} offset:{O_XN}")
    A(f"ds_write_b128 v{HT}, {vr(XR+4,4)} offset:{O_XN+16}")
    A(f"ds_write_b32 v{HT}, v{XR+8} offset:{O_XN+32}")
    A("s_waitcnt lgkmcnt(0)")
    lds_arrive(HLB, O_CNT + C_LN, 15)
    A(f"v_mul_u32_u24 v{HVB}, 1152, v{HG}")
    A(f"v_lshl_add_u32 v{HVS}, v{HC}, 3, v{HVB}")
    A(f"v_add_u32 v{HVS}, 1024, v{HVS}")
    A("s_lshl_b32 s3, s28, 8")
    A(f"v_lshl_add_u32 v{HVB}, v{HC}, 4, v{HVB}")
    A(f"v_add_u32 v{HVB}, s3, v{HVB}")
    A(f"v_lshlrev_b32 v{HPM}, 5, v{HC}")
    A(f"v_lshl_add_u32 v{HPM}, v{HG}, 4, v{HPM}")
    A("s_lshl_b32 s3, s28, 9")
    A(f"v_add_u32 v{HPM}, s3, v{HPM}")
    A(f"v_mov_b32 v{HT}, {OOB}")
    A(f"v_cmp_gt_u32 vcc, 2, v{HG}")
    A("s_lshl_b32 s3, s28, 8")
    A("s_add_u32 s3, s3, 2048")
    A(f"v_cndmask_b32 v{HPM}, v{HT}, v{HPM}, vcc")
    A(f"v_lshl_add_u32 v{HPR}, v{HC}, 4, s3")
    A(f"v_cmp_eq_u32 vcc, 0, v{HG}")
    A("s_lshl_b32 s3, s28, 2")
    A(f"v_add_u32 v{HOP}, s3, v{HC}")
    A(f"v_cndmask_b32 v{HPR}, v{HT}, v{HPR}, vcc")
    A(f"v_and_b32 v{HOP}, 15, v{HOP}")
    A(f"v_lshl_add_u32 v{HOP}, v{HG}, 4, v{HOP}")
    A(f"v_lshl_add_u32 v{HOP}, v{HOP}, 3, v{HLB}")
    A("s_mov_b32 s60, 0xffff0000")
    A("s_mov_b32 s61, 0xffff0000")
    A(f"s_mul_i32 s3, s29, {8*8*1152}")
    srd(16, SWS, "s3", 8 * 8 * 1152)
    A("s_cmp_eq_u32 s28, 3")
    A("s_cbranch_scc1 L_h_xchg")

    A(f"v_and_b32 v{HT}, 7, v{HC}")
    A(f"v_lshl_add_u32 v{HT+1}, v{HT}, 2, v{HG}")
    A(f"v_mul_u32_u24 v{HT+1}, 48, v{HT+1}")
    A(f"v_add_u32 v{HT+1}, v{HT+1}, v{HLB}")
    A(f"v_mul_u32_u24 v{HT+3}, 9216, v{HT}")
    A(f"v_lshl_add_u32 v{HT+3}, v{HG}, 4, v{HT+3}")
    A("s_mul_i32 s33, s30, 1152")
    A("s_lshl_b32 s3, s28, 9")
    A("s_add_u32 s33, s33, s3")
    A(f"v_cmp_le_u32 s[34:35], 8, v{HC}")
    lds_spin("L_h_lnwait", HLB, O_CNT + C_LN, HT + 4, 4, sleep=0)
    A(f"ds_read_b128 {vr(XR,4)}, v{HT+1} offset:{O_XN}")
    A(f"ds_read_b128 {vr(XR+4,4)}, v{HT+1} offset:{O_XN+16}")
    A(f"ds_read_b32 v{XR+8}, v{HT+1} offset:{O_XN+32}")
    A(f"v_mov_b32 v{XR+9}, 0")
    stamp(2)
    A("s_cmp_eq_u32 s28, 2")
    A("s_cbranch_scc1 L_h_s1_narrow")
    W0 = HA
    for s in range(2):
        A(f"s_waitcnt vmcnt({10 - 8*s}) lgkmcnt(0)")
        for t in range(9):
            if t < 8:
                for r in range(4):
                    lo = L1 + 4 * (8 * s + 2 * r) + (t >> 1)
                    A(f"v_perm_b32 v{W0+4*(t&1)+r}, v{lo+4}, v{lo}, s{58+(t&1)}")
            else:
                A("s_nop 1")
            if t > 0:
                tt = t - 1
                c_in = "0" if s == 0 else vr(HD + 4 * tt, 4)
                A(f"v_mfma_f32_16x16x32_bf16 {vr(HD+4*tt,4)}, {vr(W0+4*(tt&1),4)}, {vr(XR+4*s,4)}, {c_in}")
    A("s_waitcnt vmcnt(0)")
    W2 = HA
    A("s_nop 1")
    for t in range(8):
        lo = L1 + 4 * 16 + (t >> 1)
        A(f"v_perm_b32 v{W2+2*t}, v{lo+4}, v{lo}, s{58+(t&1)}")
        A(f"v_mov_b32 v{W2+2*t+1}, 0")
    A("s_nop 1")
    for t in range(8):
        A(f"v_mfma_f32_16x16x16_bf16 {vr(HD+4*t,4)}, {vr(W2+2*t,2)}, {vr(XR+8,2)}, {vr(HD+4*t,4)}")
    A(f"v_lshrrev_b32 v{HT+4}, 3, v{HC}")
    A(f"v_lshl_add_u32 v{HT+3}, v{HT+4}, 6, v{HT+3}")
    A("s_nop 7")
    for tt in range(0, 8, 2):
        for r in range(4):
            A(f"v_cndmask_b32 v{HD+4*tt+r}, v{HD+4*tt+r}, v{HD+4*tt+4+r}, s[34:35]")
        A(f"buffer_store_dwordx4 {vr(HD+4*tt,4)}, v{HT+3}, s[16:19], s33 offen offset:{tt*64} sc1")
    A("s_branch L_h_s1_done")
    Lb("L_h_s1_narrow")
    A("s_waitcnt vmcnt(0) lgkmcnt(0)")
    for d in range(9):
        A(f"v_lshl_or_b32 v{HA+d}, v{L1+2*d+1}, 16, v{L1+2*d}")
    A(f"v_mov_b32 v{HA+9}, 0")
    A(f"v_mov_b32 v{HT+4}, {OOB}")
    A(f"v_cndmask_b32 v{HT+3}, v{HT+3}, v{HT+4}, s[34:35]")
    A(f"v_mfma_f32_16x16x32_bf16 {vr(HD,4)}, {vr(HA,4)}, {vr(XR,4)}, 0")
    A(f"v_mfma_f32_16x16x32_bf16 {vr(HD,4)}, {vr(HA+4,4)}, {vr(XR+4,4)}, {vr(HD,4)}")
    A("s_nop 7")
    A(f"v_mfma_f32_16x16x16_bf16 {vr(HD,4)}, {vr(HA+8,2)}, {vr(XR+8,2)}, {vr(HD,4)}")
    A("s_nop 7")
    A(f"buffer_store_dwordx4 {vr(HD,4)}, v{HT+3}, s[16:19], s33 offen sc1")
    Lb("L_h_s1_done")
    stamp(3)
    A("s_waitcnt vmcnt(0)")
    lds_arrive(HLB, O_CNT + C_S1, 15)
    stamp(4)

    def prefetch(base, idx, rows):
        n = (rows * 1152 // 8 + 3071) // 3072
        A(f"s_mul_i32 s3, {idx}, {rows*1152}")
        srd(20, base, "s3", rows * 1152)
        A(f"s_mul_i32 s33, s30, {rows*1152//8}")
        A(f"s_mul_i32 s34, s28, {n*1024}")
        A("s_add_u32 s33, s33, s34")
        for k in range(n):
            A(f"buffer_load_dwordx4 {vr(ST+4*k,4)}, v{HT}, s[20:23], s33 offen")
            A("s_add_u32 s33, s33, 1024")
        A("s_waitcnt vmcnt(0)")
    if pf:
        A(f"v_lshlrev_b32 v{HT}, 4, v2")
        prefetch(SW2, "s31", 144)
        prefetch(SWO, "s29", 128)
    A("s_branch L_h_w2")

    Lb("L_h_xchg")
    xchg_setup()
    A("s_mov_b64 exec, 0xff")
    A("s_waitcnt vmcnt(0)")
    A(f"v_add_u32 v{XZ}, 1, v{XZ}")
    A(f"buffer_store_dword v{XZ}, v{XP}, s[24:27], 0 offen offset:1024 sc1")
    A("s_mov_b64 exec, -1")
    A(f"s_mul_i32 s3, s2, {SLOT2}")
    A(f"s_add_u32 s3, s3, {WS_G}")
    srd(20, SWS, "s3", SLOT2)
    for r in range(4):
        A(f"v_mov_b32 v{HF+r}, -1")
    A(f"v_lshlrev_b32 v{HF+4}, 4, v2")
    A("s_movk_i32 s3, 4096")
    for k in range(6):
        A(f"buffer_store_dwordx4 {vr(HF,4)}, v{HF+4}, s[20:23], {'s3' if k >= 4 else '0'} offen offset:{(k%4)*1024} sc1")
    GB = 52
    A(f"v_and_b32 v{HT+4}, 3, v2")
    A(f"v_bfe_u32 v{HT+5}, v2, 2, 3")
    A(f"v_and_b32 v{HT+10}, 3, v{HT+5}")
    A(f"v_lshl_add_u32 v{HT+10}, v{HT+10}, 2, v{HT+4}")
    A(f"v_lshrrev_b32 v{HT+11}, 2, v{HT+5}")
    A(f"v_lshl_add_u32 v{HT+10}, v{HT+10}, 3, v{HT+11}")
    A(f"v_lshl_add_u32 v{HT+4}, v{HT+4}, 5, v{HT+5}")
    A("s_mul_i32 s33, s31, 288")
    srd(12, SB1, "s33", 288)
    A(f"v_lshlrev_b32 v{HT+5}, 1, v{HT+4}")
    for r in range(4):
        A(f"buffer_load_ushort v{GB+r}, v{HT+5}, s[12:15], 0 offen offset:{16*r}")
    A(f"v_lshlrev_b32 v{HT+6}, 1, v{HC}")
    A(f"buffer_load_ushort v{GB+4}, v{HT+6}, s[12:15], 0 offen offset:256")
    A(f"v_lshlrev_b32 v{HT+7}, 4, v2")
    A(f"v_lshlrev_b32 v{HT+8}, 2, v{HC}")
    A(f"v_add_u32 v{HT+5}, v{HT+5}, v{HLB}")
    A(f"v_lshl_add_u32 v{HT+4}, v{HT+10}, 2, v{HLB}")
    A(f"v_and_b32 v{HT+6}, 3, v{HC}")
    A(f"v_lshrrev_b32 v{HT+11}, 2, v{HC}")
    A(f"v_lshl_add_u32 v{HT+6}, v{HT+6}, 2, v{HT+11}")
    A(f"v_lshl_add_u32 v{HT+6}, v{HT+6}, 1, v{HLB}")
    A("s_mul_i32 s33, s30, 9216")
    A("s_mov_b64 exec, 0xff")
    A("s_waitcnt vmcnt(0)")
    A(f"buffer_load_dword v{XE}, v{XO}, s[24:27], 0 offen offset:1024 sc1")
    lds_spin("L_h_s1wait", HLB, O_CNT + C_S1, HT + 9, 3, sleep=1)
    A("s_waitcnt vmcnt(0)")
    A(f"buffer_store_dword v{XE}, v{XP}, s[24:27], 0 offen sc1")
    stamp(4)
    if xs0:
        A(f"s_sleep {xs0}")
    Lb("L_h_gpoll")
    A(f"buffer_load_dword v{HT+9}, v{XO}, s[24:27], 0 offen sc1")
    A(f"buffer_load_dword v{HT+11}, v{XO}, s[24:27], 0 offen offset:1024 sc1")
    A("s_waitcnt vmcnt(0)")
    A(f"v_cmp_ne_u32 vcc, v{HT+9}, v{XZ}")
    A("s_cbranch_vccz L_h_gpoll_ok")
    A(f"v_cmp_ne_u32 vcc, v{HT+11}, v{XE}")
    A("s_cbranch_vccz L_h_gpoll_same")
    A(f"v_mov_b32 v{XE}, v{HT+11}")
    A(f"buffer_store_dword v{XE}, v{XP}, s[24:27], 0 offen sc1")
    Lb("L_h_gpoll_same")
    if xs1:
        A(f"s_sleep {xs1}")
    A("s_sub_u32 s69, s69, 16")
    A("s_cbranch_scc0 L_h_gpoll")
    A("s_mov_b32 s69, 0")
    Lb("L_h_gpoll_ok")
    A(f"buffer_load_dword v{HT+11}, v{XO}, s[24:27], 0 offen offset:1024 sc1")
    A("s_mov_b64 exec, -1")
    stamp(5)
    GL = HF
    A("s_mov_b32 s34, s33")
    for p in range(8):
        A(f"buffer_load_dwordx4 {vr(GL+4*p,4)}, v{HT+7}, s[16:19], s33 offen sc1")
        A("s_add_u32 s33, s33, 1152")
    for p in range(8):
        A(f"buffer_load_dword v{GL+32+p}, v{HT+8}, s[16:19], s34 offen offset:1024 sc1")
        A("s_add_u32 s34, s34, 1152")
    A("s_waitcnt vmcnt(16)")
    A("s_mov_b64 exec, 0xff")
    A(f"v_cmp_ne_u32 vcc, v{HT+11}, v{XE}")
    A("s_cbranch_vccz L_h_echo_ok")
    A("s_waitcnt vmcnt(0)")
    A(f"buffer_store_dword v{HT+11}, v{XP}, s[24:27], 0 offen sc1")
    Lb("L_h_echo_ok")
    A("s_mov_b64 exec, -1")
    for p in range(1, 8):
        A(f"s_waitcnt vmcnt({15-p})")
        for r in range(4):
            A(f"v_add_f32 v{GL+r}, v{GL+r}, v{GL+4*p+r}")
    for r in range(4):
        A(f"v_cvt_pk_bf16_f32 v{GL+r}, v{GL+r}, v{GL+r}")
    A("s_mov_b32 exec_hi, 0")
    for r in range(4):
        A(f"ds_write_b16 v{HT+5}, v{GL+r} offset:{O_Q+16*r}")
    A("s_waitcnt lgkmcnt(0)")
    A(f"ds_write_b32 v{HLB}, v15 offset:{O_CNT+C_Q}")
    A("s_mov_b32 exec_hi, -1")
    stamp(6)
    A("s_waitcnt vmcnt(0)")
    for p in range(1, 8):
        A(f"v_add_f32 v{GL+32}, v{GL+32}, v{GL+32+p}")
    A(f"v_cvt_pk_bf16_f32 v{GL+4}, v{GL+32}, v{GL+32}")
    c1 = -2.0 * LOG2E * 0.7978845608028654
    for r in range(5):
        A(f"v_and_b32 v{GL+r}, 0xffff0000, v{GL+r}")
        A(f"v_lshlrev_b32 v{GB+r}, 16, v{GB+r}")
        A(f"v_add_f32 v{GL+r}, v{GL+r}, v{GB+r}")
        bfround(GL + r, GL + r)
        A(f"v_mul_f32 v{GB+r}, v{GL+r}, v{GL+r}")
        A(f"v_mov_b32 v{GL+8}, {f32(c1)}")
        A(f"v_fmac_f32 v{GL+8}, {f32(c1*0.044715)}, v{GB+r}")
        A(f"v_mul_f32 v{GB+r}, v{GL+8}, v{GL+r}")
        A(f"v_exp_f32 v{GB+r}, v{GB+r}")
        A("s_nop 0")
        A(f"v_add_f32 v{GB+r}, 1.0, v{GB+r}")
        A(f"v_rcp_f32 v{GB+r}, v{GB+r}")
        A("s_nop 0")
        A(f"v_mul_f32 v{GL+r}, v{GL+r}, v{GB+r}")
        bfround(GL + r, GL + r)
    A("s_mov_b32 exec_lo, 0")
    for r in range(4):
        A(f"ds_write_b32 v{HT+4}, v{GL+r} offset:{O_OP+8*r}")
    A(f"ds_write_b16_d16_hi v{HT+6}, v{GL+4} offset:{O_HR}")
    A("s_waitcnt lgkmcnt(0)")
    A(f"ds_write_b32 v{HLB}, v15 offset:{O_CNT+C_H}")
    A("s_mov_b32 exec_lo, -1")
    A("s_cmp_lg_u32 s30, 0")
    A("s_cbranch_scc1 L_h_w2")
    A("s_lshl_b32 s3, s29, 3")
    A(f"v_mov_b32 v{HT}, s3")
    A("s_mov_b64 exec, 1")
    A(f"global_store_dword v{HT}, v15, s[{SDBG}:{SDBG+1}] sc1")
    A("s_mov_b64 exec, -1")

    Lb("L_h_w2")
    if hprio:
        A("s_setprio 0")
    A(f"s_mul_i32 s3, s31, {144*1152}")
    srd(20, SW2, "s3", 144 * 1152)
    HT = 104
    A("s_cmp_eq_u32 s28, 0")
    A("s_cselect_b32 s35, 0, 0x100000")
    for e in range(4):
        A(f"s_mov_b32 s33, {(128+4*e)*1152}")
        A("s_add_u32 s34, s33, s35")
        A(f"buffer_load_dwordx4 {vr(ST+4*e,4)}, v{HVB}, s[20:23], s33 offen {spol}")
        A(f"buffer_load_dwordx2 {vr(ST+16+2*e,2)}, v{HVS}, s[20:23], s34 offen {spol}")
    A("s_waitcnt vmcnt(0)")
    for r in range(2):
        for t in range(8):
            lo = ST + 8 * r + (t >> 1)
            A(f"v_perm_b32 v{HF2+2*t+r}, v{lo+4}, v{lo}, s{58+(t&1)}")
        for t in range(4):
            lo = ST + 16 + 4 * r + (t >> 1)
            A(f"v_perm_b32 v{HF2+16+2*t+r}, v{lo+2}, v{lo}, s{58+(t&1)}")
    A("s_call_b64 s[62:63], L_sub_load")
    stamp(7)
    lds_spin("L_h_hwait", HLB, O_CNT + C_H, HT, 1)
    A(f"v_lshl_add_u32 v{HT}, v{HG}, 3, v{HLB}")
    A(f"ds_read_b64 {vr(HT+2,2)}, v{HT} offset:{O_HR}")
    A(f"s_mul_i32 s3, s2, {SLOT2}")
    A(f"s_add_u32 s3, s3, {WS_G}")
    srd(24, SWS, "s3", 0)
    A("s_waitcnt lgkmcnt(0)")
    for t in range(12):
        A(f"v_mfma_f32_16x16x16_bf16 {vr(HD+4*t,4)}, {vr(HT+2,2)}, {vr(HF2+2*t,2)}, 0")
    A("s_call_b64 s[62:63], L_sub_gemv")
    OR = HF2
    for r in range(8):
        A(f"v_mov_b32 v{GH+r}, v{OR+4+r}")
    A(f"s_mov_b32 s26, {SLOT2}")
    lds_arrive(HLB, O_CNT + C_SM, 15)
    stamp(8)
    A(f"s_mul_i32 s3, s29, {128*1152}")
    srd(20, SWO, "s3", 128 * 1152)
    A("s_call_b64 s[62:63], L_sub_load")
    stamp(9)

    A("s_cmp_eq_u32 s28, 3")
    A("s_cselect_b32 s64, 1, 0")
    A("s_cmp_lt_u32 s29, 24")
    A("s_cselect_b32 s64, s64, 0")
    A(f"s_mul_i32 s3, s30, {32*SLOT2}")
    A(f"s_add_u32 s3, s3, {WS_G}")
    srd(12, SWS, "s3", 0)
    A("s_lshl_b32 s33, s29, 5")
    A("s_lshl_b32 s34, s29, 3")
    A("s_add_u32 s34, s34, 384")
    A("s_cmp_lt_u32 s29, 16")
    A("s_cselect_b32 s33, s33, s34")
    A("s_cselect_b32 s34, 3, 1")
    A("s_cselect_b32 s35, 7, 1")
    A("s_cselect_b32 s78, 8, 14")
    A("s_movk_i32 s65, 256")
    A(f"s_cselect_b32 s65, {8*SLOT2}, s65")
    A("s_lshl_b32 s66, s65, 1")
    A("s_add_u32 s67, s66, s65")
    A(f"v_lshrrev_b32 v{HT}, s34, v2")
    A(f"v_mul_u32_u24 v{HT}, {SLOT2}, v{HT}")
    A(f"v_and_b32 v{HT+1}, s35, v2")
    A(f"v_lshl_add_u32 v{HT+1}, v{HT+1}, 2, s33")
    A(f"v_lshl_add_u32 v{GS}, v{HT+1}, 2, v{HT}")
    A(f"v_bfe_u32 v{HT+2}, v2, 4, 1")
    A(f"v_lshrrev_b32 v{HT+3}, 5, v2")
    A(f"v_lshl_add_u32 v{HT+2}, v{HT+2}, 1, v{HT+3}")
    A(f"v_add_lshl_u32 v{HOA}, v{HT+2}, v{HT+1}, 1")
    A("s_mul_i32 s68, s30, 1152")
    srd(16, SOUT, None, 0)
    A("s_cmp_eq_u32 s64, 0")
    A("s_cbranch_scc1 L_h_pvpre")
    srd(20, SB2, None, 1152)
    A(f"buffer_load_ushort v{HXV}, v{HOA}, s[8:11], s68 offen")
    A(f"buffer_load_ushort v{HB2}, v{HOA}, s[20:23], 0 offen")
    A(f"v_and_b32 v{HT+1}, 31, v2")
    A(f"v_lshlrev_b32 v{HT+1}, 3, v{HT+1}")
    A(f"global_load_dword v{HT}, v{HT+1}, s[{SDBG}:{SDBG+1}]")
    Lb("L_h_bpoll")
    A("s_waitcnt vmcnt(0)")
    A(f"v_cmp_ne_u32 vcc, 1, v{HT}")
    A("s_cbranch_vccz L_h_bpoll_ok")
    A("s_sleep 32")
    A(f"global_load_dword v{HT}, v{HT+1}, s[{SDBG}:{SDBG+1}] sc1")
    A("s_sub_u32 s69, s69, 16")
    A("s_cbranch_scc0 L_h_bpoll")
    A("s_mov_b32 s69, 0")
    A("s_waitcnt vmcnt(0)")
    Lb("L_h_bpoll_ok")
    A(f"v_lshlrev_b32 v{HXV}, 16, v{HXV}")
    A(f"v_lshlrev_b32 v{HB2}, 16, v{HB2}")
    A(f"v_mov_b32 v{HT}, {OOB}")
    A(f"v_and_b32 v{HT+1}, s78, v2")
    A(f"v_cmp_eq_u32 vcc, 0, v{HT+1}")
    A("s_nop 1")
    A(f"v_cndmask_b32 v{HOA}, v{HT}, v{HOA}, vcc")
    A("s_call_b64 s[62:63], L_sub_final")
    A(f"s_mov_b32 s14, {32*SLOT2}")
    A("s_movk_i32 s18, 9216")

    Lb("L_h_pvpre")
    PT = 28
    pv_masks(VM, HC, PT)
    for r in range(4):
        A(f"v_mov_b32 v{VACC+r}, 0")
    stamp(10)
    lds_spin("L_h_smwait", HLB, O_CNT + C_SM, PT, 8, sleep=4)
    A("s_lshl_b32 s3, s28, 3")
    A(f"v_add_u32 v{PT}, s3, v{HLB}")
    A(f"ds_read_b32 v{PT+1}, v{PT} offset:{O_ST}")
    A("s_lshl_b32 s3, s28, 9")
    A(f"v_lshl_add_u32 v{PT}, v2, 2, v{HLB}")
    A(f"v_add_u32 v{PT}, s3, v{PT}")
    A(f"ds_read_b32 v{VPC}, v{PT} offset:{O_E}")
    A(f"ds_read_b32 v{VPC+1}, v{PT} offset:{O_E+256}")
    softmax_factor(HLB, RING, PT, PT + 1)
    for u in range(2):
        A(f"v_mul_f32 v{VPC+u}, v{VPC+u}, v{PT}")
        A(f"v_cvt_pk_bf16_f32 v{VPC+u}, v{VPC+u}, v{VPC+u}")
    A("s_lshl_b32 s3, s28, 15")
    A(f"v_lshl_add_u32 v{PT}, v2, 4, s3")
    A("s_mov_b32 s34, 2")
    Lb("L_h_pv")
    for i in range(16):
        if i == 8:
            A("s_waitcnt lgkmcnt(0)")
        A(f"ds_read_b128 {vr(RING+4*i,4)}, v{PT} offset:{i*1024}")
    A("s_waitcnt lgkmcnt(0)")
    A("s_call_b64 s[62:63], L_sub_pv")
    A(f"v_mov_b32 v{VPC}, v{VPC+1}")
    A(f"v_add_u32 v{PT}, 16384, v{PT}")
    A("s_sub_u32 s34, s34, 1")
    A("s_cmp_lg_u32 s34, 0")
    A("s_cbranch_scc1 L_h_pv")
    A(f"v_lshl_add_u32 v{PT}, v0, 3, v{HLB}")
    A("s_nop 1")
    A(f"ds_write_b64 v{PT}, {vr(VACC,2)} offset:{O_OP}")
    for r in range(8):
        A(f"v_mov_b32 v{GT+r}, v{GH+r}")
    A("s_waitcnt lgkmcnt(0)")
    for r in range(48):
        A(f"v_mov_b32 v{HD+r}, 0")
    stamp(11)
    A("s_barrier")
    stamp(12)
    A("s_call_b64 s[62:63], L_sub_gemv")
    stamp(13)
    A("s_cmp_eq_u32 s64, 0")
    A("s_cbranch_scc1 L_fin")
    A("s_call_b64 s[62:63], L_sub_final")
    stamp(14)

    Lb("L_fin")
    if fixdur:
        Lb("L_fix")
        A("s_memrealtime s[76:77]")
        A("s_waitcnt lgkmcnt(0)")
        A("s_sub_u32 s76, s76, s74")
        A(f"s_cmp_lt_u32 s76, {fixdur*100}")
        A("s_cbranch_scc1 L_fix")
    if stamps:
        A("s_waitcnt vmcnt(0)")
        stamp(15)
        A("s_getreg_b32 s70, hwreg(HW_REG_XCC_ID)")
        A(f"v_writelane_b32 v{VST}, s70, 16")
        A("s_getreg_b32 s70, hwreg(HW_REG_HW_ID)")
        A(f"v_writelane_b32 v{VST}, s70, 63")
        A(f"s_add_u32 s72, s72, {WS_STAMP}")
        A("s_addc_u32 s73, s73, 0")
        A("s_lshl_b32 s3, s2, 11")
        A("v_lshlrev_b32 v0, 2, v0")
        A("v_add_u32 v0, s3, v0")
        A(f"global_store_dword v0, v{VST}, s[72:73]")
    Lb("L_end")
    A("s_endpgm")

    Lb("L_sub_load")

    def issue_pair(n):
        sl = ST + 12 * (n % NSL)
        if (n & 3) == 0:
            A(f"s_add_u32 s35, s28, {n >> 2}")
            A("s_and_b32 s35, s35, 3")
            A(f"s_mul_i32 s35, s35, {32*1152}")
        A(f"s_add_u32 s33, s35, {8*(n&3)*1152}")
        A(f"s_add_u32 s34, s33, {4*1152}")
        A(f"buffer_load_dwordx4 {vr(sl,4)}, v{HVB}, s[20:23], s33 offen {spol}")
        A(f"buffer_load_dwordx4 {vr(sl+4,4)}, v{HVB}, s[20:23], s34 offen {spol}")
        if n < 4:
            A(f"buffer_load_dwordx2 {vr(sl+8,2)}, v{HVS}, s[20:23], s33 offen {spol}")
            A(f"buffer_load_dwordx2 {vr(sl+10,2)}, v{HVS}, s[20:23], s34 offen {spol}")

    for n in range(NSL):
        issue_pair(n)
    for n in range(16):
        sg, r = n >> 2, n & 3
        sl = ST + 12 * (n % NSL)
        younger = sum((4 if m < 4 else 2) for m in range(n + 1, min(n + NSL, 16)))
        A(f"s_waitcnt vmcnt({younger})")
        for t in range(8):
            A(f"v_perm_b32 v{HF+32*sg+4*t+r}, v{sl+4+(t>>1)}, v{sl+(t>>1)}, s{58+(t&1)}")
        if n < 4:
            for t in range(4):
                A(f"v_perm_b32 v{HF+128+4*t+r}, v{sl+10+(t>>1)}, v{sl+8+(t>>1)}, s{58+(t&1)}")
        if n + NSL < 16:
            issue_pair(n + NSL)
    A("s_setpc_b64 s[62:63]")

    Lb("L_sub_gemv")
    for k in range(8):
        A(f"ds_read_b64 {vr(OR+2*k,2)}, v{HOP} offset:{O_OP+512*k}")
    A(f"buffer_store_dwordx4 {vr(GT,4)}, v{HPM}, s[24:27], 0 offen sc1")
    A(f"buffer_store_dwordx4 {vr(GT+4,4)}, v{HPR}, s[24:27], 0 offen sc1")
    for k in range(1, 8):
        A(f"s_waitcnt lgkmcnt({7-k})")
        A(f"v_add_f32 v{OR}, v{OR}, v{OR+2*k}")
        A(f"v_add_f32 v{OR+1}, v{OR+1}, v{OR+2*k+1}")
    A(f"v_cvt_pk_bf16_f32 v{OR}, v{OR}, v{OR+1}")
    A("s_nop 1")
    bc = [f"v_mov_b32_dpp v{HA+n}, v{OR} row_newbcast:{n} {DPP_ALL}" for n in range(16)]
    for n in range(6):
        A(bc.pop(0))
    fill = bc + [f"v_mov_b32 v{OR+8+r}, v{HD+32+4*r}" for r in range(4)]
    fill += [f"buffer_store_dwordx4 {vr(OR+8,4)}, v{HPR}, s[24:27], 0 offen offset:{SLOT} sc1"]
    for t in range(4):
        A(f"v_mfma_f32_16x16x32_bf16 {vr(HD+32+4*t,4)}, {vr(HA,4)}, {vr(HF+128+4*t,4)}, {vr(HD+32+4*t,4)}")
        A(fill.pop(0))
    for sg in range(4):
        order = range(8) if sg < 3 else (0, 4, 1, 5, 2, 6, 3, 7)
        for t in order:
            A(f"v_mfma_f32_16x16x32_bf16 {vr(HD+4*t,4)}, {vr(HA+4*sg,4)}, {vr(HF+32*sg+4*t,4)}, {vr(HD+4*t,4)}")
            if fill:
                A(fill.pop(0))
    A("s_nop 4")
    for r in range(4):
        A(f"v_cndmask_b32 v{OR+4+r}, v{HD+4*r}, v{HD+16+4*r}, s[60:61]")
    A(f"buffer_store_dwordx4 {vr(OR+4,4)}, v{HPM}, s[24:27], 0 offen offset:{SLOT} sc1")
    A("s_setpc_b64 s[62:63]")

    GA, YA = 32, 48
    Lb("L_sub_final")
    for base, off in ((GA, 0), (YA, SLOT)):
        for k in range(4):
            so = "0" if k == 0 else f"s{64+k}"
            A(f"buffer_load_dwordx4 {vr(base+4*k,4)}, v{GS}, s[12:15], {so} offen offset:{off} sc1")

    def fold(base, first):
        if first:
            A(f"v_max3_u32 v{HT}, v{base}, v{base+1}, v{base+2}")
            for n in range(3, 15, 2):
                A(f"v_max3_u32 v{HT}, v{HT}, v{base+n}, v{base+n+1}")
            A(f"v_max_u32 v{HT}, v{HT}, v{base+15}")
        else:
            for n in range(0, 16, 2):
                A(f"v_max3_u32 v{HT}, v{HT}, v{base+n}, v{base+n+1}")
            A(f"v_cmp_eq_u32 vcc, -1, v{HT}")
        for r in range(4):
            A(f"v_add_f32 v{base+r}, v{base+r}, v{base+4+r}")
        for r in range(4):
            A(f"v_add_f32 v{base+8+r}, v{base+8+r}, v{base+12+r}")
        for r in range(4):
            A(f"v_add_f32 v{base+r}, v{base+r}, v{base+8+r}")
    A("s_waitcnt vmcnt(4)")
    fold(GA, True)
    A("s_waitcnt vmcnt(0)")
    fold(YA, False)
    A("s_cbranch_vccnz L_sub_final_again")
    Lb("L_sub_final_ok")
    for b in (GA, YA):
        A(f"v_permlane32_swap_b32 v{b}, v{b+1}")
        A(f"v_permlane32_swap_b32 v{b+2}, v{b+3}")
    for b in (GA, YA):
        A(f"v_add_f32 v{b}, v{b}, v{b+1}")
        A(f"v_add_f32 v{b+2}, v{b+2}, v{b+3}")
    A(f"v_permlane16_swap_b32 v{GA}, v{GA+2}")
    A("s_cmp_lt_u32 s29, 16")
    A(f"v_permlane16_swap_b32 v{YA}, v{YA+2}")
    A(f"v_add_f32 v{GA}, v{GA}, v{GA+2}")
    A("s_nop 0")
    A(f"v_add_f32 v{YA}, v{YA}, v{YA+2}")
    A(f"v_add_f32_dpp v{GA}, v{GA}, v{GA} row_ror:8 {DPP_ALL}")
    A("s_nop 0")
    A(f"v_add_f32_dpp v{YA}, v{YA}, v{YA} row_ror:8 {DPP_ALL}")
    A("s_cbranch_scc1 L_sub_final_wide")
    for sh in (4, 2):
        A(f"v_add_f32_dpp v{GA}, v{GA}, v{GA} row_ror:{sh} {DPP_ALL}")
        A("s_nop 0")
        A(f"v_add_f32_dpp v{YA}, v{YA}, v{YA} row_ror:{sh} {DPP_ALL}")
        A("s_nop 0")
    Lb("L_sub_final_wide")
    A(f"v_cvt_pk_bf16_f32 v{GA}, v{GA}, v{YA}")
    A(f"v_and_b32 v{YA}, 0xffff0000, v{GA}")
    A(f"v_lshlrev_b32 v{GA}, 16, v{GA}")
    A(f"v_add_f32 v{GA}, v{GA}, v{HB2}")
    bfround(GA, GA)
    A(f"v_mul_f32 v{HT}, {f32(-LOG2E)}, v{GA}")
    A(f"v_exp_f32 v{HT}, v{HT}")
    A("s_nop 0")
    A(f"v_add_f32 v{HT}, 1.0, v{HT}")
    A(f"v_rcp_f32 v{HT}, v{HT}")
    A("s_nop 0")
    A(f"v_mul_f32 v{GA}, v{GA}, v{HT}")
    bfround(GA, GA)
    A(f"v_mul_f32 v{YA}, v{YA}, v{GA}")
    bfround(YA, YA)
    A(f"v_add_f32 v{YA}, v{YA}, v{HXV}")
    A(f"v_cvt_pk_bf16_f32 v{YA}, v{YA}, v{YA}")
    A(f"buffer_store_short v{YA}, v{HOA}, s[16:19], s68 offen")
    A("s_setpc_b64 s[62:63]")
    Lb("L_sub_final_again")
    A("s_sub_u32 s69, s69, 16")
    A("s_cbranch_scc0 L_sub_final")
    A("s_mov_b32 s69, 0")
    A("s_branch L_sub_final_ok")

    o.append('.section .rodata,"a"')
    o.append(".p2align 6")
    o.append(f".amdhsa_kernel {NAME}_kernel")
    o.append("  .amdhsa_next_free_vgpr 256")
    o.append("  .amdhsa_next_free_sgpr 80")
    o.append("  .amdhsa_accum_offset 256")
    o.append("  .amdhsa_group_segment_fixed_size 0")
    o.append("  .amdhsa_kernarg_size 104")
    o.append("  .amdhsa_user_sgpr_count 2")
    o.append("  .amdhsa_user_sgpr_kernarg_segment_ptr 1")
    o.append("  .amdhsa_system_sgpr_workgroup_id_x 1")
    o.append("  .amdhsa_float_denorm_mode_32 3")
    o.append(".end_amdhsa_kernel")
    return "\n".join(o) + "\n"


if __name__ == "__main__":
    cfg = json.loads(sys.argv[2]) if len(sys.argv) > 2 else {}
    open(sys.argv[1], "w").write(gen(**cfg))
```

```python
import struct, sys, json

NAME = "recurrent_scan__mha_block_cached__dense_activation_gelu__decode"
HEADER = open("header.txt").read()

WS_P1 = 0x000000
WS_G = 0x300000
WS_X = 0x500000
SLOT = 3072
SLOT2 = 2 * SLOT
WS_S = 0x520000
WS_STAMP = 0x20000000

L_V = 0x00000
L_B = 0x20000
O_OP = 0x0000
O_E = 0x1000
O_ST = 0x1800
O_CNT = 0x1840
O_Q = 0x1880
O_HR = 0x1980
O_XN = 0x19C0
LDS_BYTES = L_B + 0x2000
C_LN, C_S1, C_Q, C_H, C_SM, C_PV = 0, 4, 8, 12, 16, 20

LOG2E = 1.4426950408889634
OOB = "0x10000000"


def f32(x):
    return "0x%08x" % struct.unpack("<I", struct.pack("<f", x))[0]


def vr(a, n=1):
    return f"v{a}" if n == 1 else f"v[{a}:{a+n-1}]"


DPP_ALL = "row_mask:0xf bank_mask:0xf"


def cl(i):
    return ((i & 1) << 3) | (((i >> 1) & 1) << 2) | (i >> 2)


def gen(D=5, D0=0, DK=0, DV=0, DT=0, stamps=False, hprio=1, kvpol="nt", wpol="", spol="",
        NSL=1, xown=False, pf=2, xs0=0, xs1=0, fixdur=0,
        ctl=True, DL=(4, 5, 6, 6), TH=(-50, 0, 40), LOOK=2, SSTR=40*128,
        fs=0, fslow=0, fthr=16, outpol="", fwait=True, ypol="sc1", lpol="sc1", wb=(16, 13), tb=(14, 19), gb=(15, 17, 18, 12), mid=True):
    o = []
    cur = [o]
    A = lambda s: cur[0].append("  " + s)
    Lb = lambda s: cur[0].append(s + ":")

    def capture(fn):
        tmp = []
        cur[0] = tmp
        fn()
        cur[0] = o
        return tmp

    VST = 1
    assert sorted(list(wb) + list(tb) + list(gb)) == list(range(12, 20))
    dep = lambda v, pos: sum(((v >> k) & 1) << p for k, p in enumerate(pos))
    TOFF = [dep(k, tb) for k in range(4)]
    D0 = D0 or D; DK = DK or D; DV = DV or D; DT = DT or DV
    pace = lambda d, i: f"s_waitcnt vmcnt({int(d + (0.5 if i & 1 else 0)) - 1})"

    def stamp(i):
        if stamps and (stamps != "lite" or i in (0, 15)):
            A("s_memrealtime s[70:71]")
            A("s_waitcnt lgkmcnt(0)")
            A(f"v_writelane_b32 v{VST}, s70, {i}")

    def bfround(dst, src):
        A(f"v_cvt_pk_bf16_f32 v{dst}, v{src}, v{src}")
        A(f"v_and_b32 v{dst}, 0xffff0000, v{dst}")

    def allreduce_row(op, v):
        for sh in (8, 4, 2, 1):
            A("s_nop 1")
            A(f"{op}_dpp v{v}, v{v}, v{v} row_ror:{sh} {DPP_ALL}")

    def swap_reduce(op, v, t, which):
        A(f"v_mov_b32 v{t}, v{v}")
        A("s_nop 1")
        A(f"v_permlane{which}_swap_b32 v{t}, v{v}")
        A("s_nop 1")
        A(f"{op} v{v}, v{v}, v{t}")

    def lds_spin(label, vaddr, off, vtmp, target, sleep=1):
        Lb(label)
        A(f"ds_read_b32 v{vtmp}, v{vaddr} offset:{off}")
        A("s_waitcnt lgkmcnt(0)")
        A(f"v_readfirstlane_b32 s3, v{vtmp}")
        A(f"s_cmp_ge_u32 s3, {target}")
        A(f"s_cbranch_scc1 {label}_ok")
        if sleep:
            A(f"s_sleep {sleep}")
        A("s_sub_u32 s69, s69, 1")
        A(f"s_cbranch_scc0 {label}")
        A("s_mov_b32 s69, 0")
        Lb(label + "_ok")

    def lds_arrive(vaddr, off, vone):
        A("s_mov_b64 exec, 1")
        A(f"ds_add_u32 v{vaddr}, v{vone} offset:{off}")
        A("s_mov_b64 exec, -1")

    def pv_masks(vm, vc, t0):
        A(f"v_and_b32 v{t0}, 4, v{vc}")
        A(f"v_lshlrev_b32 v{t0}, 2, v{t0}")
        A(f"v_mov_b32 v{t0+1}, 0xffff")
        A(f"v_lshlrev_b32 v{t0}, v{t0}, v{t0+1}")
        A(f"v_and_b32 v{t0+1}, 3, v{vc}")
        A(f"v_lshrrev_b32 v{vm}, 3, v{vc}")
        A(f"v_lshl_add_u32 v{t0+1}, v{t0+1}, 1, v{vm}")
        for r in range(4):
            A(f"v_cmp_eq_u32 vcc, {r}, v{t0+1}")
            A("s_nop 1")
            A(f"v_cndmask_b32 v{vm+r}, 0, v{t0}, vcc")

    def softmax_factor(vbase, vst, vf, vown):
        A(f"ds_read_b128 {vr(vst,4)}, v{vbase} offset:{O_ST}")
        A(f"ds_read_b128 {vr(vst+4,4)}, v{vbase} offset:{O_ST+16}")
        A("s_waitcnt lgkmcnt(0)")
        m, t = vst + 8, vst + 9
        A(f"v_max3_f32 v{m}, v{vst}, v{vst+2}, v{vst+4}")
        A(f"v_max_f32 v{m}, v{m}, v{vst+6}")
        for k in range(4):
            A(f"v_sub_f32 v{vst+2*k}, v{vst+2*k}, v{m}")
        A(f"v_sub_f32 v{t}, v{vown}, v{m}")
        for k in range(4):
            A(f"v_mul_f32 v{vst+2*k}, {f32(LOG2E)}, v{vst+2*k}")
        A(f"v_mul_f32 v{t}, {f32(LOG2E)}, v{t}")
        for k in range(4):
            A(f"v_exp_f32 v{vst+2*k}, v{vst+2*k}")
        A(f"v_exp_f32 v{t}, v{t}")
        A(f"v_mul_f32 v{m}, v{vst}, v{vst+1}")
        for k in range(1, 4):
            A(f"v_fmac_f32 v{m}, v{vst+2*k}, v{vst+2*k+1}")
        A(f"v_rcp_f32 v{m}, v{m}")
        A("s_nop 0")
        A(f"v_mul_f32 v{vf}, v{t}, v{m}")

    o.append(HEADER.rstrip())
    o.append(f"; @launch grid=(256,1,1) block=(512,1,1) lds={LDS_BYTES}")
    o.append('.amdgcn_target "amdgcn-amd-amdhsa--gfx950"')
    o.append(".text")
    o.append(f".globl {NAME}_kernel")
    o.append(".p2align 8")
    o.append(f".type {NAME}_kernel,@function")
    Lb(f"{NAME}_kernel")
    A("s_cmp_ge_u32 s2, 256")
    A("s_cbranch_scc1 L_end")
    if fixdur or stamps:
        A("s_memrealtime s[74:75]")
    SX, SK, SV, SWQ, SWO, SW1, SB1, SW2, SB2, SOUT, SDBG, SWS = 36, 38, 40, 42, 44, 48, 50, 52, 54, 56, 58, 60
    A("s_load_dwordx16 s[36:51], s[0:1], 0")
    A("s_load_dwordx8 s[52:59], s[0:1], 64")
    A("s_load_dwordx2 s[60:61], s[0:1], 96")
    A("v_lshrrev_b32 v1, 6, v0")
    A("v_and_b32 v2, 63, v0")
    A("v_readfirstlane_b32 s28, v1")
    A(f"v_mov_b32 v6, {L_B}")
    A("v_mov_b32 v8, 0")
    A("v_mov_b32 v9, 0")
    A("v_lshl_add_u32 v7, v0, 3, v6")
    A(f"ds_write_b64 v7, v[8:9] offset:{O_OP}")
    A("v_and_b32 v4, 15, v2")
    A("v_lshl_add_u32 v7, v4, 2, v6")
    A(f"ds_write_b32 v7, v8 offset:{O_CNT}")
    A("v_lshlrev_b32 v3, 4, v2")
    A("v_and_b32 v7, 1, v1")
    A(f"v_lshl_add_u32 v3, v7, {wb[0]}, v3")
    A("v_bfe_u32 v7, v1, 1, 1")
    A(f"v_lshl_add_u32 v3, v7, {wb[1]}, v3")
    A("s_lshl_b32 s3, s2, 20")
    A("s_mov_b32 s18, 0x100000")
    A("s_mov_b32 s19, 0x20000")
    A("s_mov_b32 s69, 0x200000")
    A(f"s_mov_b32 s33, {TOFF[1]}")
    if stamps:
        A(f"v_mov_b32 v{VST}, 0")
    A("s_cmp_ge_u32 s28, 4")
    A("s_waitcnt lgkmcnt(0)")
    if stamps:
        A("s_mov_b64 s[72:73], s[60:61]")
    A("s_cbranch_scc1 L_helper")

    VQ, VP, VA0, VA1, VB, VC, VS, VMAX = 4, 8, 10, 11, 12, 13, 14, 15
    VE, VM, VAO, VACC = 16, 32, 36, 44
    RING, RING2, VT, VLB = 48, 112, 176, 188
    VPC, VN = VE + 2, VE + 1
    def ring_load(i, ring=RING):
        so = "0" if i < 4 else f"s{36+i//4}"
        A(f"buffer_load_dwordx4 {vr(ring+4*i,4)}, v3, s[16:19], {so} offen offset:{(i%4)*1024} {kvpol}")

    VB0 = 189

    def next_group():
        A("s_add_u32 s29, s29, 1")
        runs = []
        for k, p in enumerate(gb):
            if runs and p == runs[-1][1] + runs[-1][2]:
                runs[-1][2] += 1
            else:
                runs.append([k, p, 1])
        for n, (k, p, w) in enumerate(runs):
            d = "s35" if n == 0 else "s3"
            A(f"s_bfe_u32 {d}, s29, {k | (w << 16)}")
            A(f"s_lshl_b32 {d}, {d}, {p}")
            if n:
                A("s_or_b32 s35, s35, s3")
        A(f"v_add_u32 v3, s35, v{VB0}")

    A(f"s_add_u32 s16, s{SK}, s3")
    A(f"s_addc_u32 s17, s{SK+1}, 0")
    for i in range(int(D0)):
        A(f"buffer_load_dwordx4 {vr(RING+4*i,4)}, v3, s[16:19], {'0' if i < 4 else 's33'} offen offset:{(i%4)*1024} {kvpol}")
    stamp(6)
    A("s_barrier")
    A("s_branch L_streamer")
    head_end = len(o)
    Lb("L_streamer")
    stamp(7)
    A(f"s_add_u32 s12, s{SV}, s3")
    A(f"s_addc_u32 s13, s{SV+1}, 0")
    A("s_mov_b32 s14, 0x100000")
    A("s_mov_b32 s15, 0x20000")
    for k in (1, 2, 3):
        A(f"s_mov_b32 s{36+k}, {TOFF[k]}")
    A(f"v_mov_b32 v{VLB}, {L_B}")
    A(f"v_mov_b32 v{VB0}, v3")
    A("s_mov_b32 s29, 0")
    for k in (1, 2, 3):
        A(f"s_mov_b32 s{38+2*k}, 0x{(0x11111111 << k) & 0xffffffff:08x}")
        A(f"s_mov_b32 s{39+2*k}, 0x{(0x11111111 << k) & 0xffffffff:08x}")
    if ctl:
        A("s_lshr_b32 s3, s2, 5")
        A("s_and_b32 s54, s2, 31")
        A("s_cmp_eq_u32 s54, s3")
        A("s_cselect_b32 s54, 1, 0")
        A("s_cmp_eq_u32 s28, 0")
        A("s_cselect_b32 s54, s54, 0")
        A(f"s_mul_i32 s3, s3, {SSTR}")
        A(f"s_add_u32 s3, s3, {WS_S}")
        A(f"s_add_u32 s20, s{SWS}, s3")
        A(f"s_addc_u32 s21, s{SWS+1}, 0")
        A(f"s_movk_i32 s22, {40*128}")
        A("s_mov_b32 s23, 0x20000")
        A(f"s_add_u32 s46, s{SWS}, {WS_S - LOOK*128}")
        A(f"s_addc_u32 s47, s{SWS+1}, 0")
        A("s_mov_b32 s48, 0")
    A(f"v_and_b32 v{VT+2}, 15, v2")
    A(f"v_lshl_add_u32 v{VT+3}, v{VT+2}, 4, v{VLB}")
    pv_masks(VM, VT + 2, VT)
    for r in range(4):
        A(f"v_mov_b32 v{VACC+r}, 0")
    for i in range(int(D0), 16):
        A(pace(D0, i))
        ring_load(i)
        if i in (int(D0), 2 * int(D0), 15):
            stamp({int(D0): 8, 2 * int(D0): 9, 15: 10}[i])
    A(f"v_add_u32 v{VT+4}, {dep(14, gb)}, v3")
    A("s_lshl_b32 s33, s28, 15")
    A("s_mov_b32 s35, 2")
    Lb("L_vdma")
    for i in range(16):
        if i % 4 == 0:
            A("s_mov_b32 m0, s33")
            A("s_add_u32 s33, s33, 4096")
        A(pace(D0, i))
        A(f"buffer_load_dwordx4 v{VT+4}, s[12:15], {'0' if i < 4 else 's%d' % (36+i//4)} offen offset:{(i%4)*1024} {kvpol} lds")
    A(f"v_add_u32 v{VT+4}, {dep(1, gb)}, v{VT+4}")
    A("s_sub_u32 s35, s35, 1")
    A("s_cmp_lg_u32 s35, 0")
    A("s_cbranch_scc1 L_vdma")
    stamp(1)
    lds_spin("L_qwait", VLB, O_CNT + C_Q, VT, 1, sleep=0)
    A(f"ds_read_b128 {vr(VQ,4)}, v{VT+3} offset:{O_Q}")
    A("s_mov_b32 s34, 16")
    if ctl:
        A("s_memrealtime s[50:51]")
    stamp(2)
    A("s_waitcnt lgkmcnt(0)")
    if ctl:
        for r in (49, 52, 53, 56, 57):
            A(f"s_mov_b32 s{r}, s50")

    def loop_stamp(base):
        if stamps and stamps != "lite":
            A("s_memrealtime s[70:71]")
            A(f"s_sub_u32 m0, {base}, s34")
            A("s_waitcnt lgkmcnt(0)")
            A(f"v_writelane_b32 v{VST}, s70, m0")

    ckn = [0]

    def level(lag):
        return [f"s_add_u32 s93, {lag}, 1500", "s_cmp_lt_u32 s93, 3000", f"s_cselect_b32 {lag}, {lag}, {TH[0]}",
                f"s_cmp_ge_i32 {lag}, {TH[1]}", "s_cselect_b64 vcc, -1, 0", "s_cselect_b32 s93, s5, s4",
                f"s_cmp_ge_i32 {lag}, s93", "s_cselect_b32 s90, 1, 0"]

    def decide(last=False):
        if not ctl:
            return
        A("s_waitcnt lgkmcnt(0)")
        A("s_sub_u32 s55, s50, s49")
        for l in level("s55"):
            A(l)

    def atoms():
        if not ctl:
            return {}
        ckn[0] += 1
        n = ckn[0]
        at = {}
        at[0] = ["s_cmp_eq_u32 s54, 0", f"s_cbranch_scc1 L_ck{n}_nopub", f"v_mov_b32 v{VT+11}, s50", "s_mov_b64 exec, 1",
                 f"buffer_store_dword v{VT+11}, off, s[20:23], s48 sc1", "s_mov_b64 exec, -1", f"L_ck{n}_nopub:"]
        at[1] = ["s_add_u32 s88, s46, s48", "s_addc_u32 s89, s47, 0", f"s_cmp_lt_u32 s48, {LOOK*128}", f"s_cbranch_scc1 L_ck{n}_early"]
        at[1] += [f"s_load_dword s{80+j}, s[88:89], {j*SSTR}" for j in range(8)] + [f"L_ck{n}_early:"]
        if mid:
            at[6] = ["s_memrealtime s[98:99]", "s_lshr_b32 s92, s92, 3", "s_add_u32 s49, s49, s92"]
            at[7] = ["s_waitcnt lgkmcnt(0)", "s_sub_u32 s55, s98, s49"] + level("s55")
            at[8] = [f"s_sub_u32 s{80+j}, s50, s{80+j}" for j in range(8)] + ["s_max_u32 s91, s80, s81", "s_add_u32 s55, s80, s81"]
        else:
            at[7] = ["s_waitcnt lgkmcnt(0)"] + [f"s_sub_u32 s{80+j}, s50, s{80+j}" for j in range(4)]
            at[8] = [f"s_sub_u32 s{80+j}, s50, s{80+j}" for j in range(4, 8)] + ["s_max_u32 s91, s80, s81", "s_add_u32 s55, s80, s81"]
        at[9] = sum(([f"s_max_u32 s91, s91, s{80+j}", f"s_add_u32 s55, s55, s{80+j}"] for j in range(2, 5)), [])
        at[10] = sum(([f"s_max_u32 s91, s91, s{80+j}", f"s_add_u32 s55, s55, s{80+j}"] for j in range(5, 8)), [])
        at[11] = ["s_lshr_b32 s55, s55, 3", "s_sub_u32 s55, s50, s55", "s_lshl_b32 s49, s52, 1", "s_sub_u32 s49, s49, s53",
                  "s_cmp_lt_u32 s91, 2500", "s_cselect_b32 s55, s55, s49"]
        at[12] = ["s_sub_u32 s91, s55, s53", "s_lshl_b32 s91, s91, 1", "s_sub_u32 s49, s55, s57",
                  f"s_cmp_ge_u32 s48, {(LOOK+5)*128}", "s_cselect_b32 s92, s49, s91", f"s_mul_i32 s91, s92, {LOOK+1}"]
        at[13] = ["s_lshr_b32 s91, s91, 2", "s_add_u32 s49, s55, s91", "s_mov_b32 s57, s56", "s_mov_b32 s56, s53",
                  "s_mov_b32 s53, s52", "s_mov_b32 s52, s55"]
        at[14] = ["s_add_u32 s91, s50, 0x40000000", f"s_cmp_lt_u32 s48, {(LOOK+2)*128}", "s_cselect_b32 s49, s91, s49",
                  "s_add_u32 s48, s48, 128", "s_memrealtime s[50:51]"]
        return at

    def emit_atom(at, i, restore=True):
        if i in at:
            for l in at[i]:
                if l.endswith(":"):
                    Lb(l[:-1])
                else:
                    A(l)
            if restore:
                A("s_cmp_lg_u32 s90, 0")

    def cpace(d, i, tag):
        if not ctl:
            A(pace(d, i))
            return
        A(f"s_cbranch_vccnz L_{tag}a{i}")
        A(f"s_cbranch_scc1 L_{tag}b{i}")
        A(pace(DL[0], i))
        Lb(f"L_{tag}b{i}")
        A(pace(DL[1], i))
        Lb(f"L_{tag}a{i}")
        if DL[3] != DL[2]:
            A(f"s_cbranch_scc1 L_{tag}c{i}")
            A(pace(DL[2], i))
            Lb(f"L_{tag}c{i}")
        A(pace(DL[3], i))

    def red_a(i):
        j = i & 3
        dst = VA0 if j < 2 else VA1
        bm = "0x3" if (j & 1) == 0 else "0xc"
        p = VP + (i & 1)
        A(f"v_add_f32_dpp v{dst}, v{p}, v{p} row_ror:8 row_mask:0xf bank_mask:{bm}")

    def red_b(which):
        src = VA0 if which == 0 else VA1
        bm = "0x5" if which == 0 else "0xa"
        A(f"v_add_f32_dpp v{VB}, v{src}, v{src} row_half_mirror row_mask:0xf bank_mask:{bm}")

    def red_c():
        A(f"v_add_f32_dpp v{VC}, v{VB}, v{VB} quad_perm:[1,0,3,2] {DPP_ALL}")

    def red_d(k):
        dst = VS if k == 0 else VB
        A(f"v_add_f32_dpp v{dst}, v{VC}, v{VC} quad_perm:[2,3,0,1] {DPP_ALL}")

    def red_e(k):
        if k:
            A(f"v_cndmask_b32 v{VS}, v{VS}, v{VB}, s[{38+2*k}:{39+2*k}]")

    def post_a():
        bfround(VS, VS)
        A(f"v_mul_f32 v{VS}, {f32(128 ** -0.5)}, v{VS}")

    def post_b():
        bfround(VE + 15, VS)

    if ctl:
        A("s_add_u32 s49, s49, 0x40000000")
        A("s_mov_b32 s92, 0")
        A(f"s_mov_b32 s4, {TH[0]}")
        A(f"s_mov_b32 s5, {TH[2]}")
    Lb("L_kloop")
    loop_stamp(33)
    next_group()
    A("s_cmp_eq_u32 s34, 1")
    A("s_cselect_b32 s16, s12, s16")
    A("s_cselect_b32 s17, s13, s17")
    decide()
    at = atoms()
    for i in range(16):
        k, j = i >> 2, i & 3
        p = VP + (i & 1)
        R = RING + 4 * i
        A(f"v_dot2_f32_bf16 v{p}, v{R}, v{VQ}, 0")
        A(f"v_dot2_f32_bf16 v{p}, v{R+1}, v{VQ+1}, v{p}")
        red_a((i - 1) & 15)
        A(f"v_dot2_f32_bf16 v{p}, v{R+2}, v{VQ+2}, v{p}")
        if j == 0:
            red_b(0)
        elif j == 1:
            red_b(1)
        elif j == 2:
            red_c()
        else:
            red_d((k - 1) & 3)
        A(f"v_dot2_f32_bf16 v{p}, v{R+3}, v{VQ+3}, v{p}")
        cpace(DK, i, "pk")
        ring_load(i)
        if j == 3:
            red_e((k - 1) & 3)
        if i == 4:
            post_a()
        if i == 5:
            post_b()
        if i < 15:
            A(f"v_mov_b32 v{VE+i}, v{VE+i+1}")
        emit_atom(at, i)
    A("s_sub_u32 s34, s34, 1")
    A("s_cmp_lg_u32 s34, 0")
    A("s_cbranch_scc1 L_kloop")
    stamp(3)

    def sm_a():
        red_a(15)
        red_b(0)
        A("s_nop 0")
        red_b(1)
        A("s_nop 1")
        red_c()
        A("s_nop 1")
        red_d(3)
        red_e(3)
        post_a()
        post_b()
        A(f"v_max3_f32 v{VMAX}, v{VE}, v{VE+1}, v{VE+2}")
        for u in range(3, 15, 2):
            A(f"v_max3_f32 v{VMAX}, v{VMAX}, v{VE+u}, v{VE+u+1}")
        A(f"v_max_f32 v{VMAX}, v{VMAX}, v{VE+15}")
        allreduce_row("v_max_f32", VMAX)
        swap_reduce("v_max_f32", VMAX, VT, 16)
        swap_reduce("v_max_f32", VMAX, VT, 32)
        for u in range(16):
            A(f"v_sub_f32 v{VE+u}, v{VE+u}, v{VMAX}")
        for u in range(16):
            A(f"v_mul_f32 v{VE+u}, {f32(LOG2E)}, v{VE+u}")
        for u in range(16):
            A(f"v_exp_f32 v{VE+u}, v{VE+u}")
        A(f"v_add_f32 v{VS}, v{VE}, v{VE+1}")
        for u in range(2, 16):
            A(f"v_add_f32 v{VS}, v{VS}, v{VE+u}")
        A(f"s_lshl_b32 s3, s28, 9")
        A(f"v_lshl_add_u32 v{VT+2}, v2, 2, v{VLB}")
        A(f"v_add_u32 v{VT+2}, s3, v{VT+2}")
        A(f"ds_write_b32 v{VT+2}, v{VE+14} offset:{O_E}")
        A(f"ds_write_b32 v{VT+2}, v{VE+15} offset:{O_E+256}")
        allreduce_row("v_add_f32", VS)
        swap_reduce("v_add_f32", VS, VT, 16)
        swap_reduce("v_add_f32", VS, VT, 32)
        A(f"s_lshl_b32 s3, s28, 3")
        A(f"v_add_u32 v{VT+2}, s3, v{VLB}")
        A(f"ds_write_b32 v{VT+2}, v{VMAX} offset:{O_ST}")
        A(f"ds_write_b32 v{VT+2}, v{VS} offset:{O_ST+4}")
        A(f"v_mov_b32 v{VT+3}, 1")

    def sm_b():
        softmax_factor(VLB, VT, VS, VMAX)
        for u in range(14):
            A(f"v_mul_f32 v{VE+u}, v{VE+u}, v{VS}")
        for u in range(14):
            A(f"v_cvt_pk_bf16_f32 v{VE+u}, v{VE+u}, v{VE+u}")

    nxt = [0]

    def issue2():
        i = nxt[0]
        if ctl:
            A("s_cmp_lg_u32 s90, 0")
        cpace(DT, i, "pt")
        ring_load(i, RING2)
        emit_atom(at, i, restore=False)
        nxt[0] += 1

    def weave(lines, n):
        step = (len(lines) + n - 1) // n
        for a in range(0, len(lines), step):
            issue2()
            o.extend(lines[a:a + step])

    if stamps:
        A("s_mov_b32 s34, 14")
        loop_stamp(47)
    next_group()
    decide()
    at = atoms()
    weave(capture(sm_a), 6)
    A("s_waitcnt lgkmcnt(0)")
    lds_arrive(VLB, O_CNT + C_SM, VT + 3)
    while nxt[0] < 12:
        issue2()
    lds_spin("L_smwait", VLB, O_CNT + C_SM, VT, 8, sleep=0)
    weave(capture(sm_b), 4)
    while nxt[0] < 16:
        issue2()
    stamp(4)

    def build_a(n, i, vp):
        for r in range(4):
            A(f"v_and_b32_dpp v{VAO+4*(n&1)+r}, v{vp}, v{VM+r} row_newbcast:{cl(i)} {DPP_ALL}")

    def pv_mfma(n, reg):
        A(f"v_mfma_f32_16x16x32_bf16 {vr(VACC,4)}, {vr(VAO+4*(n&1),4)}, {vr(reg,4)}, {vr(VACC,4)}")

    if stamps:
        A("s_mov_b32 s34, 13")
        loop_stamp(47)
    next_group()
    decide()
    at = atoms()
    build_a(0, 0, VE)
    for i in range(16):
        build_a(1, i, VE + 1)
        pv_mfma(0, RING + 4 * i)
        cpace(DV, i, "px")
        ring_load(i)
        build_a(0, (i + 1) & 15, VE if i < 15 else VPC)
        pv_mfma(1, RING2 + 4 * i)
        emit_atom(at, i)
    A("s_mov_b32 s34, 11")

    Lb("L_vloop")
    loop_stamp(46)
    next_group()
    decide(True)
    at = atoms()
    for i in range(16):
        pv_mfma(i, RING + 4 * i)
        cpace(DV, i, "pv")
        ring_load(i)
        build_a(i + 1, (i + 1) & 15, VPC if i < 15 else VN)
        if i == 0:
            A(f"v_mov_b32 v{VN}, v{VPC+1}")
        if 1 <= i <= 10:
            A(f"v_mov_b32 v{VPC+i}, v{VPC+i+1}")
        if i == 15:
            A(f"v_mov_b32 v{VPC}, v{VN}")
        emit_atom(at, i)
        if i > 10 and i < 15 and i not in at:
            A("s_nop 0")
        if i < 15 and i not in at:
            A("s_nop 0")
    A("s_sub_u32 s34, s34, 1")
    A("s_cmp_lg_u32 s34, 0")
    A("s_cbranch_scc1 L_vloop")
    loop_stamp(46)
    A(f"v_lshl_add_u32 v{VT}, v0, 3, v{VLB}")
    A("s_call_b64 s[62:63], L_sub_pv")
    A("s_nop 6")
    A(f"ds_write_b64 v{VT}, {vr(VACC,2)} offset:{O_OP}")
    A("s_waitcnt lgkmcnt(0)")
    stamp(5)
    A("s_barrier")
    if stamps or fixdur:
        A("s_branch L_fin")
    else:
        A("s_endpgm")

    Lb("L_sub_pv")
    build_a(0, 0, VPC)
    for i in range(16):
        if i < 15:
            build_a(i + 1, i + 1, VPC)
        if 15 - i < int((DL[3] if ctl else DV) + 0.5):
            A(f"s_waitcnt vmcnt({15-i})")
        pv_mfma(i, RING + 4 * i)
    A("s_setpc_b64 s[62:63]")

    GS = 3
    HC, HG, HLB = 4, 5, 6
    HVB, HVS = 7, 8
    HPM, HPR = 9, 10
    HOP = 11
    HB2, HXV, HOA = 12, 13, 14
    HD = 16
    HF2 = 64
    HT = 64
    HA = 88
    XO, XP, XZ, XE = 104, 105, 106, 107
    HF = 112
    ST = 28
    GH, GT = 20, 80

    def srd(n, base, off_s, size):
        if off_s is None:
            A(f"s_mov_b32 s{n}, s{base}")
            A(f"s_mov_b32 s{n+1}, s{base+1}")
        else:
            A(f"s_add_u32 s{n}, s{base}, {off_s}")
            A(f"s_addc_u32 s{n+1}, s{base+1}, 0")
        A(f"s_mov_b32 s{n+2}, {size}")
        A(f"s_mov_b32 s{n+3}, 0x20000")

    helper_start = len(o)
    Lb("L_helper")
    if hprio:
        A(f"s_setprio {hprio}")
    A(f"v_subrev_u32 v{HT}, 256, v0")
    A(f"v_mul_u32_u24 v{HT}, 36, v{HT}")
    XR = 52
    srd(8, SX, None, 9216)
    A(f"buffer_load_dwordx4 {vr(XR,4)}, v{HT}, s[8:11], 0 offen")
    A(f"buffer_load_dwordx4 {vr(XR+4,4)}, v{HT}, s[8:11], 0 offen offset:16")
    A(f"buffer_load_dword v{XR+8}, v{HT}, s[8:11], 0 offen offset:32")
    A("s_barrier")
    A("s_sub_u32 s28, s28, 4")
    A("s_and_b32 s29, s2, 31")
    A("s_lshr_b32 s30, s2, 5")
    A("s_and_b32 s31, s2, 7")
    A("s_lshl_b32 s31, s31, 2")
    A("s_lshr_b32 s3, s29, 3")
    A("s_add_u32 s31, s31, s3")
    A(f"v_lshrrev_b32 v{HG}, 4, v2")
    A("s_cmp_eq_u32 s28, 0")
    A(f"s_cselect_b32 s12, s{SWQ}, s{SW1}")
    A(f"s_cselect_b32 s13, s{SWQ+1}, s{SW1+1}")
    A(f"s_mov_b32 s14, {576*9216}")
    A(f"s_cselect_b32 s14, {576*8192}, s14")
    A("s_mov_b32 s15, 0x20000")
    A("s_movk_i32 s32, 9216")
    A("s_cselect_b32 s32, 8192, s32")
    A("s_mul_i32 s33, s31, 288")
    A("s_lshl_b32 s3, s29, 8")
    A("s_cmp_eq_u32 s28, 0")
    A("s_cselect_b32 s33, s3, s33")
    A("s_mul_i32 s3, s32, 72")
    A("s_mul_i32 s3, s3, s30")
    A("s_add_u32 s33, s33, s3")
    A("s_mul_i32 s3, s32, 18")
    A(f"v_mul_lo_u32 v{HT+1}, s3, v{HG}")
    L1 = HF
    A("s_cmp_ge_u32 s28, 2")
    A("s_cbranch_scc1 L_h_ld_narrow")
    A(f"v_lshl_add_u32 v{HT+1}, v{HC}, 4, v{HT+1}")
    for e in range(18):
        A(f"buffer_load_dwordx4 {vr(L1+4*e,4)}, v{HT+1}, s[12:15], s33 offen {wpol}")
        A("s_add_u32 s33, s33, s32")
    stamp(16 + 1)
    A("s_waitcnt vmcnt(18)")
    A("s_branch L_h_ln")
    Lb("L_h_ld_narrow")
    A("s_cmp_eq_u32 s28, 3")
    A("s_cbranch_scc1 L_h_ld_none")
    A(f"v_lshl_add_u32 v{HT+1}, v{HC}, 1, v{HT+1}")
    for e in range(18):
        A(f"buffer_load_ushort v{L1+e}, v{HT+1}, s[12:15], s33 offen offset:256 {wpol}")
        A("s_add_u32 s33, s33, s32")
    stamp(16 + 1)
    A("s_waitcnt vmcnt(18)")
    A("s_branch L_h_ln")
    Lb("L_h_ld_none")

    def xchg_setup():
        A(f"s_lshl_b32 s3, s29, 11")
        A(f"s_add_u32 s3, s3, {WS_X}")
        srd(24, SWS, "s3", 2048)
        A("s_lshl_b32 s3, s30, 7")
        A(f"v_lshl_add_u32 v{XP if xown else XO}, v2, 2, s3")
        A("s_lshl_b32 s3, s30, 2")
        A(f"v_lshl_add_u32 v{XO if xown else XP}, v2, 7, s3")
    xchg_setup()
    A("s_mov_b64 exec, 0xff")
    A(f"buffer_load_dword v{XZ}, v{XO}, s[24:27], 0 offen sc1")
    A("s_mov_b64 exec, -1")
    A("s_waitcnt vmcnt(1)")

    Lb("L_h_ln")
    stamp(1)
    A("s_mov_b32 s94, 0x05040100")
    A("s_mov_b32 s95, 0x07060302")
    XF = HD
    SUM, T1, MEAN = 34, 35, 36
    for d in range(9):
        A(f"v_lshlrev_b32 v{XF+2*d}, 16, v{XR+d}")
        A(f"v_and_b32 v{XF+2*d+1}, 0xffff0000, v{XR+d}")
    A(f"v_add_f32 v{SUM}, v{XF}, v{XF+1}")
    for e in range(2, 18):
        A(f"v_add_f32 v{SUM}, v{SUM}, v{XF+e}")
    allreduce_row("v_add_f32", SUM)
    swap_reduce("v_add_f32", SUM, T1, 16)
    A(f"v_mul_f32 v{MEAN}, {f32(1/576)}, v{SUM}")
    A(f"v_mov_b32 v{SUM}, 0")
    for e in range(18):
        t = 38 + (e & 1)
        A(f"v_sub_f32 v{t}, v{XF+e}, v{MEAN}")
        A(f"v_fmac_f32 v{SUM}, v{t}, v{t}")
    allreduce_row("v_add_f32", SUM)
    swap_reduce("v_add_f32", SUM, T1, 16)
    A(f"v_mul_f32 v{SUM}, {f32(1/576)}, v{SUM}")
    bfround(MEAN, MEAN)
    bfround(SUM, SUM)
    A(f"v_add_f32 v{SUM}, {f32(1e-5)}, v{SUM}")
    bfround(SUM, SUM)
    A(f"v_sqrt_f32 v{SUM}, v{SUM}")
    A("s_nop 0")
    bfround(SUM, SUM)
    A(f"v_rcp_f32 v{SUM}, v{SUM}")
    for e in range(18):
        A(f"v_sub_f32 v{XF+e}, v{XF+e}, v{MEAN}")
    for d in range(9):
        A(f"v_cvt_pk_bf16_f32 v{XR+d}, v{XF+2*d}, v{XF+2*d+1}")
    for d in range(9):
        A(f"v_lshlrev_b32 v{XF+2*d}, 16, v{XR+d}")
        A(f"v_and_b32 v{XF+2*d+1}, 0xffff0000, v{XR+d}")
    for e in range(18):
        A(f"v_mul_f32 v{XF+e}, v{XF+e}, v{SUM}")
    for d in range(9):
        A(f"v_cvt_pk_bf16_f32 v{XR+d}, v{XF+2*d}, v{XF+2*d+1}")
    A(f"v_lshrrev_b32 v{HT}, 5, v2")
    A("s_lshl_b32 s3, s28, 1")
    A(f"v_add_u32 v{HT}, s3, v{HT}")
    A(f"v_and_b32 v{HT+1}, 3, v2")
    A(f"v_lshl_add_u32 v{HT}, v{HT}, 2, v{HT+1}")
    A(f"v_mul_u32_u24 v{HT}, 48, v{HT}")
    A(f"v_add_u32 v{HT}, v{HT}, v{HLB}")
    A(f"v_bfe_u32 v{HT+1}, v2, 2, 3")
    A(f"v_mov_b32 v15, 1")
    A(f"v_cmp_eq_u32 vcc, s30, v{HT+1}")
    A("s_and_saveexec_b64 s[34:35], vcc")
    A(f"ds_write_b128 v{HT}, {vr(XR,4)} offset:{O_XN}")
    A(f"ds_write_b128 v{HT}, {vr(XR+4,4)} offset:{O_XN+16}")
    A(f"ds_write_b32 v{HT}, v{XR+8} offset:{O_XN+32}")
    A("s_waitcnt lgkmcnt(0)")
    lds_arrive(HLB, O_CNT + C_LN, 15)
    A(f"v_mul_u32_u24 v{HVB}, 1152, v{HG}")
    A(f"v_lshl_add_u32 v{HVS}, v{HC}, 3, v{HVB}")
    A(f"v_add_u32 v{HVS}, 1024, v{HVS}")
    A("s_lshl_b32 s3, s28, 8")
    A(f"v_lshl_add_u32 v{HVB}, v{HC}, 4, v{HVB}")
    A(f"v_add_u32 v{HVB}, s3, v{HVB}")
    A(f"v_lshlrev_b32 v{HPM}, 5, v{HC}")
    A(f"v_lshl_add_u32 v{HPM}, v{HG}, 4, v{HPM}")
    A("s_lshl_b32 s3, s28, 9")
    A(f"v_add_u32 v{HPM}, s3, v{HPM}")
    A(f"v_mov_b32 v{HT}, {OOB}")
    A(f"v_cmp_gt_u32 vcc, 2, v{HG}")
    A("s_lshl_b32 s3, s28, 8")
    A("s_add_u32 s3, s3, 2048")
    A(f"v_cndmask_b32 v{HPM}, v{HT}, v{HPM}, vcc")
    A(f"v_lshl_add_u32 v{HPR}, v{HC}, 4, s3")
    A(f"v_cmp_eq_u32 vcc, 0, v{HG}")
    A("s_lshl_b32 s3, s28, 2")
    A(f"v_add_u32 v{HOP}, s3, v{HC}")
    A(f"v_cndmask_b32 v{HPR}, v{HT}, v{HPR}, vcc")
    A(f"v_and_b32 v{HOP}, 15, v{HOP}")
    A(f"v_lshl_add_u32 v{HOP}, v{HG}, 4, v{HOP}")
    A(f"v_lshl_add_u32 v{HOP}, v{HOP}, 3, v{HLB}")
    A("s_mov_b32 s96, 0xffff0000")
    A("s_mov_b32 s97, 0xffff0000")
    A(f"s_mul_i32 s3, s29, {8*8*1152}")
    srd(16, SWS, "s3", 8 * 8 * 1152)
    A("s_cmp_eq_u32 s28, 3")
    A("s_cbranch_scc1 L_h_xchg")

    A(f"v_and_b32 v{HT}, 7, v{HC}")
    A(f"v_lshl_add_u32 v{HT+1}, v{HT}, 2, v{HG}")
    A(f"v_mul_u32_u24 v{HT+1}, 48, v{HT+1}")
    A(f"v_add_u32 v{HT+1}, v{HT+1}, v{HLB}")
    A(f"v_mul_u32_u24 v{HT+3}, 9216, v{HT}")
    A(f"v_lshl_add_u32 v{HT+3}, v{HG}, 4, v{HT+3}")
    A("s_mul_i32 s33, s30, 1152")
    A("s_lshl_b32 s3, s28, 9")
    A("s_add_u32 s33, s33, s3")
    A(f"v_cmp_le_u32 s[34:35], 8, v{HC}")
    lds_spin("L_h_lnwait", HLB, O_CNT + C_LN, HT + 4, 4, sleep=0)
    A(f"ds_read_b128 {vr(XR,4)}, v{HT+1} offset:{O_XN}")
    A(f"ds_read_b128 {vr(XR+4,4)}, v{HT+1} offset:{O_XN+16}")
    A(f"ds_read_b32 v{XR+8}, v{HT+1} offset:{O_XN+32}")
    A(f"v_mov_b32 v{XR+9}, 0")
    stamp(2)
    A("s_cmp_eq_u32 s28, 2")
    A("s_cbranch_scc1 L_h_s1_narrow")
    W0 = HA
    for s in range(2):
        A(f"s_waitcnt vmcnt({10 - 8*s}) lgkmcnt(0)")
        for t in range(9):
            if t < 8:
                for r in range(4):
                    lo = L1 + 4 * (8 * s + 2 * r) + (t >> 1)
                    A(f"v_perm_b32 v{W0+4*(t&1)+r}, v{lo+4}, v{lo}, s{94+(t&1)}")
            else:
                A("s_nop 1")
            if t > 0:
                tt = t - 1
                c_in = "0" if s == 0 else vr(HD + 4 * tt, 4)
                A(f"v_mfma_f32_16x16x32_bf16 {vr(HD+4*tt,4)}, {vr(W0+4*(tt&1),4)}, {vr(XR+4*s,4)}, {c_in}")
    A("s_waitcnt vmcnt(0)")
    W2 = HA
    A("s_nop 1")
    for t in range(8):
        lo = L1 + 4 * 16 + (t >> 1)
        A(f"v_perm_b32 v{W2+2*t}, v{lo+4}, v{lo}, s{94+(t&1)}")
        A(f"v_mov_b32 v{W2+2*t+1}, 0")
    A("s_nop 1")
    for t in range(8):
        A(f"v_mfma_f32_16x16x16_bf16 {vr(HD+4*t,4)}, {vr(W2+2*t,2)}, {vr(XR+8,2)}, {vr(HD+4*t,4)}")
    A(f"v_lshrrev_b32 v{HT+4}, 3, v{HC}")
    A(f"v_lshl_add_u32 v{HT+3}, v{HT+4}, 6, v{HT+3}")
    A("s_nop 7")
    for tt in range(0, 8, 2):
        for r in range(4):
            A(f"v_cndmask_b32 v{HD+4*tt+r}, v{HD+4*tt+r}, v{HD+4*tt+4+r}, s[34:35]")
        A(f"buffer_store_dwordx4 {vr(HD+4*tt,4)}, v{HT+3}, s[16:19], s33 offen offset:{tt*64} sc1")
    A("s_branch L_h_s1_done")
    Lb("L_h_s1_narrow")
    A("s_waitcnt vmcnt(0) lgkmcnt(0)")
    for d in range(9):
        A(f"v_lshl_or_b32 v{HA+d}, v{L1+2*d+1}, 16, v{L1+2*d}")
    A(f"v_mov_b32 v{HA+9}, 0")
    A(f"v_mov_b32 v{HT+4}, {OOB}")
    A(f"v_cndmask_b32 v{HT+3}, v{HT+3}, v{HT+4}, s[34:35]")
    A(f"v_mfma_f32_16x16x32_bf16 {vr(HD,4)}, {vr(HA,4)}, {vr(XR,4)}, 0")
    A(f"v_mfma_f32_16x16x32_bf16 {vr(HD,4)}, {vr(HA+4,4)}, {vr(XR+4,4)}, {vr(HD,4)}")
    A("s_nop 7")
    A(f"v_mfma_f32_16x16x16_bf16 {vr(HD,4)}, {vr(HA+8,2)}, {vr(XR+8,2)}, {vr(HD,4)}")
    A("s_nop 7")
    A(f"buffer_store_dwordx4 {vr(HD,4)}, v{HT+3}, s[16:19], s33 offen sc1")
    Lb("L_h_s1_done")
    stamp(3)
    A("s_waitcnt vmcnt(0)")
    lds_arrive(HLB, O_CNT + C_S1, 15)
    stamp(4)

    def prefetch(base, idx, rows):
        n = (rows * 1152 // 8 + 3071) // 3072
        A(f"s_mul_i32 s3, {idx}, {rows*1152}")
        srd(20, base, "s3", rows * 1152)
        A(f"s_mul_i32 s33, s30, {rows*1152//8}")
        A(f"s_mul_i32 s34, s28, {n*1024}")
        A("s_add_u32 s33, s33, s34")
        for k in range(n):
            A(f"buffer_load_dwordx4 {vr(ST+4*k,4)}, v{HT}, s[20:23], s33 offen")
            A("s_add_u32 s33, s33, 1024")
        A("s_waitcnt vmcnt(0)")
    if pf:
        A(f"v_lshlrev_b32 v{HT}, 4, v2")
        prefetch(SW2, "s31", 144)
        prefetch(SWO, "s29", 128)
    A("s_branch L_h_w2")

    Lb("L_h_xchg")
    xchg_setup()
    A("s_mov_b64 exec, 0xff")
    A("s_waitcnt vmcnt(0)")
    A(f"v_add_u32 v{XZ}, 1, v{XZ}")
    A(f"buffer_store_dword v{XZ}, v{XP}, s[24:27], 0 offen offset:1024 sc1")
    A("s_mov_b64 exec, -1")
    A(f"s_mul_i32 s3, s2, {SLOT2}")
    A(f"s_add_u32 s3, s3, {WS_G}")
    srd(20, SWS, "s3", SLOT2)
    for r in range(4):
        A(f"v_mov_b32 v{HF+r}, -1")
    A(f"v_lshlrev_b32 v{HF+4}, 4, v2")
    A("s_movk_i32 s3, 4096")
    for k in range(6):
        A(f"buffer_store_dwordx4 {vr(HF,4)}, v{HF+4}, s[20:23], {'s3' if k >= 4 else '0'} offen offset:{(k%4)*1024} sc1")
    GB = 52
    A(f"v_and_b32 v{HT+4}, 3, v2")
    A(f"v_bfe_u32 v{HT+5}, v2, 2, 3")
    A(f"v_and_b32 v{HT+10}, 3, v{HT+5}")
    A(f"v_lshl_add_u32 v{HT+10}, v{HT+10}, 2, v{HT+4}")
    A(f"v_lshrrev_b32 v{HT+11}, 2, v{HT+5}")
    A(f"v_lshl_add_u32 v{HT+10}, v{HT+10}, 3, v{HT+11}")
    A(f"v_lshl_add_u32 v{HT+4}, v{HT+4}, 5, v{HT+5}")
    A("s_mul_i32 s33, s31, 288")
    srd(12, SB1, "s33", 288)
    A(f"v_lshlrev_b32 v{HT+5}, 1, v{HT+4}")
    for r in range(4):
        A(f"buffer_load_ushort v{GB+r}, v{HT+5}, s[12:15], 0 offen offset:{16*r}")
    A(f"v_lshlrev_b32 v{HT+6}, 1, v{HC}")
    A(f"buffer_load_ushort v{GB+4}, v{HT+6}, s[12:15], 0 offen offset:256")
    A(f"v_lshlrev_b32 v{HT+7}, 4, v2")
    A(f"v_lshlrev_b32 v{HT+8}, 2, v{HC}")
    A(f"v_add_u32 v{HT+5}, v{HT+5}, v{HLB}")
    A(f"v_lshl_add_u32 v{HT+4}, v{HT+10}, 2, v{HLB}")
    A(f"v_and_b32 v{HT+6}, 3, v{HC}")
    A(f"v_lshrrev_b32 v{HT+11}, 2, v{HC}")
    A(f"v_lshl_add_u32 v{HT+6}, v{HT+6}, 2, v{HT+11}")
    A(f"v_lshl_add_u32 v{HT+6}, v{HT+6}, 1, v{HLB}")
    A("s_mul_i32 s33, s30, 9216")
    A("s_mov_b64 exec, 0xff")
    A("s_waitcnt vmcnt(0)")
    A(f"buffer_load_dword v{XE}, v{XO}, s[24:27], 0 offen offset:1024 sc1")
    lds_spin("L_h_s1wait", HLB, O_CNT + C_S1, HT + 9, 3, sleep=1)
    A("s_waitcnt vmcnt(0)")
    A(f"buffer_store_dword v{XE}, v{XP}, s[24:27], 0 offen sc1")
    stamp(4)
    if xs0:
        A(f"s_sleep {xs0}")
    Lb("L_h_gpoll")
    A(f"buffer_load_dword v{HT+9}, v{XO}, s[24:27], 0 offen sc1")
    A(f"buffer_load_dword v{HT+11}, v{XO}, s[24:27], 0 offen offset:1024 sc1")
    A("s_waitcnt vmcnt(0)")
    A(f"v_cmp_ne_u32 vcc, v{HT+9}, v{XZ}")
    A("s_cbranch_vccz L_h_gpoll_ok")
    A(f"v_cmp_ne_u32 vcc, v{HT+11}, v{XE}")
    A("s_cbranch_vccz L_h_gpoll_same")
    A(f"v_mov_b32 v{XE}, v{HT+11}")
    A(f"buffer_store_dword v{XE}, v{XP}, s[24:27], 0 offen sc1")
    Lb("L_h_gpoll_same")
    if xs1:
        A(f"s_sleep {xs1}")
    A("s_sub_u32 s69, s69, 16")
    A("s_cbranch_scc0 L_h_gpoll")
    A("s_mov_b32 s69, 0")
    Lb("L_h_gpoll_ok")
    A(f"buffer_load_dword v{HT+11}, v{XO}, s[24:27], 0 offen offset:1024 sc1")
    A("s_mov_b64 exec, -1")
    stamp(5)
    GL = HF
    A("s_mov_b32 s34, s33")
    for p in range(8):
        A(f"buffer_load_dwordx4 {vr(GL+4*p,4)}, v{HT+7}, s[16:19], s33 offen sc1")
        A("s_add_u32 s33, s33, 1152")
    for p in range(8):
        A(f"buffer_load_dword v{GL+32+p}, v{HT+8}, s[16:19], s34 offen offset:1024 sc1")
        A("s_add_u32 s34, s34, 1152")
    A("s_waitcnt vmcnt(16)")
    A("s_mov_b64 exec, 0xff")
    A(f"v_cmp_ne_u32 vcc, v{HT+11}, v{XE}")
    A("s_cbranch_vccz L_h_echo_ok")
    A("s_waitcnt vmcnt(0)")
    A(f"buffer_store_dword v{HT+11}, v{XP}, s[24:27], 0 offen sc1")
    Lb("L_h_echo_ok")
    A("s_mov_b64 exec, -1")
    for p in range(1, 8):
        A(f"s_waitcnt vmcnt({15-p})")
        for r in range(4):
            A(f"v_add_f32 v{GL+r}, v{GL+r}, v{GL+4*p+r}")
    for r in range(4):
        A(f"v_cvt_pk_bf16_f32 v{GL+r}, v{GL+r}, v{GL+r}")
    A("s_mov_b32 exec_hi, 0")
    for r in range(4):
        A(f"ds_write_b16 v{HT+5}, v{GL+r} offset:{O_Q+16*r}")
    A("s_waitcnt lgkmcnt(0)")
    A(f"ds_write_b32 v{HLB}, v15 offset:{O_CNT+C_Q}")
    A("s_mov_b32 exec_hi, -1")
    stamp(6)
    A("s_waitcnt vmcnt(0)")
    for p in range(1, 8):
        A(f"v_add_f32 v{GL+32}, v{GL+32}, v{GL+32+p}")
    A(f"v_cvt_pk_bf16_f32 v{GL+4}, v{GL+32}, v{GL+32}")
    c1 = -2.0 * LOG2E * 0.7978845608028654
    for r in range(5):
        A(f"v_and_b32 v{GL+r}, 0xffff0000, v{GL+r}")
        A(f"v_lshlrev_b32 v{GB+r}, 16, v{GB+r}")
        A(f"v_add_f32 v{GL+r}, v{GL+r}, v{GB+r}")
        bfround(GL + r, GL + r)
        A(f"v_mul_f32 v{GB+r}, v{GL+r}, v{GL+r}")
        A(f"v_mov_b32 v{GL+8}, {f32(c1)}")
        A(f"v_fmac_f32 v{GL+8}, {f32(c1*0.044715)}, v{GB+r}")
        A(f"v_mul_f32 v{GB+r}, v{GL+8}, v{GL+r}")
        A(f"v_exp_f32 v{GB+r}, v{GB+r}")
        A("s_nop 0")
        A(f"v_add_f32 v{GB+r}, 1.0, v{GB+r}")
        A(f"v_rcp_f32 v{GB+r}, v{GB+r}")
        A("s_nop 0")
        A(f"v_mul_f32 v{GL+r}, v{GL+r}, v{GB+r}")
        bfround(GL + r, GL + r)
    A("s_mov_b32 exec_lo, 0")
    for r in range(4):
        A(f"ds_write_b32 v{HT+4}, v{GL+r} offset:{O_OP+8*r}")
    A(f"ds_write_b16_d16_hi v{HT+6}, v{GL+4} offset:{O_HR}")
    A("s_waitcnt lgkmcnt(0)")
    A(f"ds_write_b32 v{HLB}, v15 offset:{O_CNT+C_H}")
    A("s_mov_b32 exec_lo, -1")
    A("s_cmp_lg_u32 s30, 0")
    A("s_cbranch_scc1 L_h_w2")
    A("s_lshl_b32 s3, s29, 3")
    A(f"v_mov_b32 v{HT}, s3")
    A("s_mov_b64 exec, 1")
    A(f"global_store_dword v{HT}, v15, s[{SDBG}:{SDBG+1}] sc1")
    A("s_mov_b64 exec, -1")

    Lb("L_h_w2")
    if hprio:
        A("s_setprio 0")
    A(f"s_mul_i32 s3, s31, {144*1152}")
    srd(20, SW2, "s3", 144 * 1152)
    HT = 104
    PS = 110
    A("s_cmp_eq_u32 s28, 0")
    A("s_cselect_b32 s35, 0, 0x100000")
    for e in range(4):
        A(f"s_mov_b32 s33, {(128+4*e)*1152}")
        A("s_add_u32 s34, s33, s35")
        A(f"buffer_load_dwordx4 {vr(ST+4*e,4)}, v{HVB}, s[20:23], s33 offen {spol}")
        A(f"buffer_load_dwordx2 {vr(ST+16+2*e,2)}, v{HVS}, s[20:23], s34 offen {spol}")
    A("s_waitcnt vmcnt(0)")
    for r in range(2):
        for t in range(8):
            lo = ST + 8 * r + (t >> 1)
            A(f"v_perm_b32 v{HF2+2*t+r}, v{lo+4}, v{lo}, s{94+(t&1)}")
        for t in range(4):
            lo = ST + 16 + 4 * r + (t >> 1)
            A(f"v_perm_b32 v{HF2+16+2*t+r}, v{lo+2}, v{lo}, s{94+(t&1)}")
    A("s_call_b64 s[62:63], L_sub_load")
    stamp(7)
    lds_spin("L_h_hwait", HLB, O_CNT + C_H, HT, 1)
    A(f"v_lshl_add_u32 v{HT}, v{HG}, 3, v{HLB}")
    A(f"ds_read_b64 {vr(HT+2,2)}, v{HT} offset:{O_HR}")
    A(f"s_mul_i32 s3, s2, {SLOT2}")
    A(f"s_add_u32 s3, s3, {WS_G}")
    srd(24, SWS, "s3", 0)
    A(f"v_mov_b32 v{PS}, 0")
    A(f"v_mov_b32 v{PS+1}, 0")
    A("s_waitcnt lgkmcnt(0)")
    for t in range(12):
        A(f"v_mfma_f32_16x16x16_bf16 {vr(HD+4*t,4)}, {vr(HT+2,2)}, {vr(HF2+2*t,2)}, 0")
    A("s_call_b64 s[62:63], L_sub_gemv")
    OR = HF2
    for r in range(8):
        A(f"v_mov_b32 v{GH+r}, v{OR+4+r}")
    A(f"s_mov_b32 s26, {SLOT2}")
    lds_arrive(HLB, O_CNT + C_SM, 15)
    stamp(8)
    A(f"s_mul_i32 s3, s29, {128*1152}")
    srd(20, SWO, "s3", 128 * 1152)
    A("s_call_b64 s[62:63], L_sub_load")
    stamp(9)

    A("s_cmp_eq_u32 s28, 3")
    A("s_cselect_b32 s64, 1, 0")
    A("s_cmp_lt_u32 s29, 24")
    A("s_cselect_b32 s64, s64, 0")
    A(f"s_mul_i32 s3, s30, {32*SLOT2}")
    A(f"s_add_u32 s3, s3, {WS_G}")
    srd(12, SWS, "s3", 0)
    A("s_lshl_b32 s33, s29, 5")
    A("s_lshl_b32 s34, s29, 3")
    A("s_add_u32 s34, s34, 384")
    A("s_cmp_lt_u32 s29, 16")
    A("s_cselect_b32 s33, s33, s34")
    A("s_cselect_b32 s34, 3, 1")
    A("s_cselect_b32 s35, 7, 1")
    A("s_cselect_b32 s78, 8, 14")
    A("s_movk_i32 s65, 256")
    A(f"s_cselect_b32 s65, {8*SLOT2}, s65")
    A("s_lshl_b32 s66, s65, 1")
    A("s_add_u32 s67, s66, s65")
    A(f"v_lshrrev_b32 v{HT}, s34, v2")
    A(f"v_mul_u32_u24 v{HT}, {SLOT2}, v{HT}")
    A(f"v_and_b32 v{HT+1}, s35, v2")
    A(f"v_lshl_add_u32 v{HT+1}, v{HT+1}, 2, s33")
    A(f"v_lshl_add_u32 v{GS}, v{HT+1}, 2, v{HT}")
    A(f"v_bfe_u32 v{HT+2}, v2, 4, 1")
    A(f"v_lshrrev_b32 v{HT+3}, 5, v2")
    A(f"v_lshl_add_u32 v{HT+2}, v{HT+2}, 1, v{HT+3}")
    A(f"v_add_lshl_u32 v{HOA}, v{HT+2}, v{HT+1}, 1")
    A("s_mul_i32 s68, s30, 1152")
    srd(16, SOUT, None, 0)
    A("s_cmp_eq_u32 s64, 0")
    A("s_cbranch_scc1 L_h_pvpre")
    srd(20, SB2, None, 1152)
    A(f"buffer_load_ushort v{HXV}, v{HOA}, s[8:11], s68 offen")
    A(f"buffer_load_ushort v{HB2}, v{HOA}, s[20:23], 0 offen")
    A(f"v_and_b32 v{HT+1}, 31, v2")
    A(f"v_lshlrev_b32 v{HT+1}, 3, v{HT+1}")
    A(f"global_load_dword v{HT}, v{HT+1}, s[{SDBG}:{SDBG+1}]")
    Lb("L_h_bpoll")
    A("s_waitcnt vmcnt(0)")
    A(f"v_cmp_ne_u32 vcc, 1, v{HT}")
    A("s_cbranch_vccz L_h_bpoll_ok")
    A("s_sleep 32")
    A(f"global_load_dword v{HT}, v{HT+1}, s[{SDBG}:{SDBG+1}] sc1")
    A("s_sub_u32 s69, s69, 16")
    A("s_cbranch_scc0 L_h_bpoll")
    A("s_mov_b32 s69, 0")
    A("s_waitcnt vmcnt(0)")
    Lb("L_h_bpoll_ok")
    A(f"v_lshlrev_b32 v{HXV}, 16, v{HXV}")
    A(f"v_lshlrev_b32 v{HB2}, 16, v{HB2}")
    A(f"v_mov_b32 v{HT}, {OOB}")
    A(f"v_and_b32 v{HT+1}, s78, v2")
    A(f"v_cmp_eq_u32 vcc, 0, v{HT+1}")
    A("s_nop 1")
    A(f"v_cndmask_b32 v{HOA}, v{HT}, v{HOA}, vcc")
    A("s_call_b64 s[62:63], L_sub_final")
    A("s_waitcnt vmcnt(0)")
    A(f"s_mov_b32 s14, {32*SLOT2}")
    A("s_movk_i32 s18, 9216")

    Lb("L_h_pvpre")
    PT = 28
    pv_masks(VM, HC, PT)
    for r in range(4):
        A(f"v_mov_b32 v{VACC+r}, 0")
    stamp(10)
    lds_spin("L_h_smwait", HLB, O_CNT + C_SM, PT, 8, sleep=4)
    A("s_lshl_b32 s3, s28, 3")
    A(f"v_add_u32 v{PT}, s3, v{HLB}")
    A(f"ds_read_b32 v{PT+1}, v{PT} offset:{O_ST}")
    A("s_lshl_b32 s3, s28, 9")
    A(f"v_lshl_add_u32 v{PT}, v2, 2, v{HLB}")
    A(f"v_add_u32 v{PT}, s3, v{PT}")
    A(f"ds_read_b32 v{VPC}, v{PT} offset:{O_E}")
    A(f"ds_read_b32 v{VPC+1}, v{PT} offset:{O_E+256}")
    softmax_factor(HLB, RING, PT, PT + 1)
    for u in range(2):
        A(f"v_mul_f32 v{VPC+u}, v{VPC+u}, v{PT}")
        A(f"v_cvt_pk_bf16_f32 v{VPC+u}, v{VPC+u}, v{VPC+u}")
    A("s_lshl_b32 s3, s28, 15")
    A(f"v_lshl_add_u32 v{PT}, v2, 4, s3")
    A("s_mov_b32 s34, 2")
    Lb("L_h_pv")
    for i in range(16):
        if i == 8:
            A("s_waitcnt lgkmcnt(0)")
        A(f"ds_read_b128 {vr(RING+4*i,4)}, v{PT} offset:{i*1024}")
    A("s_waitcnt lgkmcnt(0)")
    A("s_call_b64 s[62:63], L_sub_pv")
    A(f"v_mov_b32 v{VPC}, v{VPC+1}")
    A(f"v_add_u32 v{PT}, 16384, v{PT}")
    A("s_sub_u32 s34, s34, 1")
    A("s_cmp_lg_u32 s34, 0")
    A("s_cbranch_scc1 L_h_pv")
    A(f"v_lshl_add_u32 v{PT}, v0, 3, v{HLB}")
    A("s_nop 1")
    A(f"ds_write_b64 v{PT}, {vr(VACC,2)} offset:{O_OP}")
    for r in range(8):
        A(f"v_mov_b32 v{GT+r}, v{GH+r}")
    A("s_waitcnt lgkmcnt(0)")
    lds_arrive(HLB, O_CNT + C_PV, 15)
    for r in range(48):
        A(f"v_mov_b32 v{HD+r}, 0")
    lds_spin("L_h_pvwait", HLB, O_CNT + C_PV, HT, 4)
    for k in range(4):
        A(f"ds_read_b64 {vr(OR+2*k,2)}, v{HOP} offset:{O_OP+512*(4+k)}")
    A("s_waitcnt lgkmcnt(0)")
    for r in range(2):
        A(f"v_add_f32 v{OR+r}, v{OR+r}, v{OR+2+r}")
        A(f"v_add_f32 v{OR+4+r}, v{OR+4+r}, v{OR+6+r}")
        A(f"v_add_f32 v{PS+r}, v{OR+r}, v{OR+4+r}")
    stamp(11)
    A("s_barrier")
    stamp(12)
    A("s_call_b64 s[62:63], L_sub_gemv")
    stamp(13)
    A("s_cmp_eq_u32 s64, 0")
    A("s_cbranch_scc1 L_fin")
    A("s_call_b64 s[62:63], L_sub_final")
    stamp(14)

    Lb("L_fin")
    if fixdur:
        Lb("L_fix")
        A("s_memrealtime s[76:77]")
        A("s_waitcnt lgkmcnt(0)")
        A("s_sub_u32 s76, s76, s74")
        A(f"s_cmp_lt_u32 s76, {fixdur*100}")
        A("s_cbranch_scc1 L_fix")
    if stamps:
        A("s_waitcnt vmcnt(0)")
        stamp(15)
        A(f"v_writelane_b32 v{VST}, s74, 0")
        A("s_getreg_b32 s70, hwreg(HW_REG_XCC_ID)")
        A(f"v_writelane_b32 v{VST}, s70, 16")
        A("s_getreg_b32 s70, hwreg(HW_REG_HW_ID)")
        A(f"v_writelane_b32 v{VST}, s70, 63")
        A(f"s_add_u32 s72, s72, {WS_STAMP}")
        A("s_addc_u32 s73, s73, 0")
        A("s_lshl_b32 s3, s2, 11")
        A("v_lshlrev_b32 v0, 2, v0")
        A("v_add_u32 v0, s3, v0")
        A(f"global_store_dword v0, v{VST}, s[72:73]")
    Lb("L_end")
    A("s_endpgm")

    Lb("L_sub_load")

    def issue_pair(n):
        sl = ST + 12 * (n % NSL)
        if (n & 3) == 0:
            A(f"s_add_u32 s35, s28, {n >> 2}")
            A("s_and_b32 s35, s35, 3")
            A(f"s_mul_i32 s35, s35, {32*1152}")
        A(f"s_add_u32 s33, s35, {8*(n&3)*1152}")
        A(f"s_add_u32 s34, s33, {4*1152}")
        A(f"buffer_load_dwordx4 {vr(sl,4)}, v{HVB}, s[20:23], s33 offen {spol}")
        A(f"buffer_load_dwordx4 {vr(sl+4,4)}, v{HVB}, s[20:23], s34 offen {spol}")
        if n < 4:
            A(f"buffer_load_dwordx2 {vr(sl+8,2)}, v{HVS}, s[20:23], s33 offen {spol}")
            A(f"buffer_load_dwordx2 {vr(sl+10,2)}, v{HVS}, s[20:23], s34 offen {spol}")

    for n in range(NSL):
        issue_pair(n)
    for n in range(16):
        sg, r = n >> 2, n & 3
        sl = ST + 12 * (n % NSL)
        younger = sum((4 if m < 4 else 2) for m in range(n + 1, min(n + NSL, 16)))
        A(f"s_waitcnt vmcnt({younger})")
        for t in range(8):
            A(f"v_perm_b32 v{HF+32*sg+4*t+r}, v{sl+4+(t>>1)}, v{sl+(t>>1)}, s{94+(t&1)}")
        if n < 4:
            for t in range(4):
                A(f"v_perm_b32 v{HF+128+4*t+r}, v{sl+10+(t>>1)}, v{sl+8+(t>>1)}, s{94+(t&1)}")
        if n + NSL < 16:
            issue_pair(n + NSL)
    A("s_setpc_b64 s[62:63]")

    Lb("L_sub_gemv")
    for k in range(4):
        A(f"ds_read_b64 {vr(OR+2*k,2)}, v{HOP} offset:{O_OP+512*k}")
    A(f"buffer_store_dwordx4 {vr(GT,4)}, v{HPM}, s[24:27], 0 offen {ypol}")
    A(f"buffer_store_dwordx4 {vr(GT+4,4)}, v{HPR}, s[24:27], 0 offen {ypol}")
    for k in range(4):
        A(f"s_waitcnt lgkmcnt({3-k})")
        src = PS if k == 0 else OR + 2 * k
        A(f"v_add_f32 v{OR}, v{OR}, v{src}")
        A(f"v_add_f32 v{OR+1}, v{OR+1}, v{src+1}")
    A(f"v_cvt_pk_bf16_f32 v{OR}, v{OR}, v{OR+1}")
    A("s_nop 1")
    bc = [f"v_mov_b32_dpp v{HA+n}, v{OR} row_newbcast:{n} {DPP_ALL}" for n in range(16)]
    for n in range(6):
        A(bc.pop(0))
    fill = bc + [f"v_mov_b32 v{OR+8+r}, v{HD+32+4*r}" for r in range(4)]
    fill += [f"buffer_store_dwordx4 {vr(OR+8,4)}, v{HPR}, s[24:27], 0 offen offset:{SLOT} {ypol}"]
    for t in range(4):
        A(f"v_mfma_f32_16x16x32_bf16 {vr(HD+32+4*t,4)}, {vr(HA,4)}, {vr(HF+128+4*t,4)}, {vr(HD+32+4*t,4)}")
        A(fill.pop(0))
    for sg in range(4):
        order = range(8) if sg < 3 else (0, 4, 1, 5, 2, 6, 3, 7)
        for t in order:
            A(f"v_mfma_f32_16x16x32_bf16 {vr(HD+4*t,4)}, {vr(HA+4*sg,4)}, {vr(HF+32*sg+4*t,4)}, {vr(HD+4*t,4)}")
            if fill:
                A(fill.pop(0))
    A("s_nop 4")
    for r in range(4):
        A(f"v_cndmask_b32 v{OR+4+r}, v{HD+4*r}, v{HD+16+4*r}, s[96:97]")
    A(f"buffer_store_dwordx4 {vr(OR+4,4)}, v{HPM}, s[24:27], 0 offen offset:{SLOT} {ypol}")
    A("s_setpc_b64 s[62:63]")

    GA, YA, SA = 32, 48, HA
    Lb("L_sub_final")

    def part_load(base, off, k):
        so = "0" if k == 0 else f"s{64+k}"
        A(f"buffer_load_dwordx4 {vr(base+4*k,4)}, v{GS}, s[12:15], {so} offen offset:{off} {lpol}")

    def masks(base):
        for k in range(4):
            A(f"v_max3_u32 v{SA+k}, v{base+4*k}, v{base+4*k+1}, v{base+4*k+2}")
        for k in range(4):
            A(f"v_max_u32 v{SA+k}, v{SA+k}, v{base+4*k+3}")
        for k in range(4):
            A(f"v_cmp_eq_u32 s[{80+2*k}:{81+2*k}], -1, v{SA+k}")
        A("s_or_b64 s[88:89], s[80:81], s[82:83]")
        A("s_or_b64 s[90:91], s[84:85], s[86:87]")
        A("s_or_b64 s[88:89], s[88:89], s[90:91]")

    def masked_loads(base, off, tag):
        for k in range(4):
            A(f"s_mov_b64 exec, s[{80+2*k}:{81+2*k}]")
            A(f"s_cbranch_execz L_f{tag}{k}")
            part_load(base, off, k)
            Lb(f"L_f{tag}{k}")
        A("s_mov_b64 exec, -1")

    def total(base, dst, tag):
        for r in range(4):
            A(f"v_add_f32 v{SA+r}, v{base+r}, v{base+4+r}")
        for r in range(4):
            A(f"v_add_f32 v{SA+4+r}, v{base+8+r}, v{base+12+r}")
        for r in range(4):
            A(f"v_add_f32 v{SA+r}, v{SA+r}, v{SA+4+r}")
        A("s_cmp_lt_u32 s29, 16")
        A(f"v_permlane32_swap_b32 v{SA}, v{SA+1}")
        A(f"v_permlane32_swap_b32 v{SA+2}, v{SA+3}")
        A(f"v_add_f32 v{SA}, v{SA}, v{SA+1}")
        A(f"v_add_f32 v{SA+2}, v{SA+2}, v{SA+3}")
        A("s_nop 1")
        A(f"v_permlane16_swap_b32 v{SA}, v{SA+2}")
        A(f"v_add_f32 v{SA}, v{SA}, v{SA+2}")
        A("s_nop 1")
        A(f"v_add_f32_dpp v{SA}, v{SA}, v{SA} row_ror:8 {DPP_ALL}")
        A(f"s_cbranch_scc1 L_fw{tag}")
        A("s_nop 0")
        A(f"v_add_f32_dpp v{SA}, v{SA}, v{SA} row_ror:4 {DPP_ALL}")
        A("s_nop 1")
        A(f"v_add_f32_dpp v{SA}, v{SA}, v{SA} row_ror:2 {DPP_ALL}")
        Lb(f"L_fw{tag}")
        bfround(dst, SA)

    for base, off in ((GA, 0), (YA, SLOT)):
        for k in range(4):
            for r in range(0 if fwait else 4):
                A(f"v_mov_b32 v{base+4*k+r}, -1")
            part_load(base, off, k)
    A("s_mov_b32 s92, 0")
    A("s_mov_b32 s93, 0")
    Lb("L_f_round")
    if fwait:
        A("s_waitcnt vmcnt(0)")
    if fs:
        A(f"s_sleep {fs}")
    A("s_add_u32 s92, s92, 1")
    A("s_cmp_lg_u32 s93, 0")
    A("s_cbranch_scc1 L_f_y")
    masks(GA)
    A("s_cbranch_scc0 L_f_gate")
    if not fwait:
        A("s_cmp_lt_u32 s92, 4")
        A("s_cbranch_scc1 L_f_y")
    masked_loads(GA, 0, "g")
    Lb("L_f_y")
    masks(YA)
    A("s_cbranch_scc0 L_f_have_y")
    masked_loads(YA, SLOT, "y")
    A("s_bcnt1_i32_b64 s3, s[88:89]")
    A(f"s_cmp_gt_u32 s3, {fthr}")
    A("s_cselect_b32 s3, s92, 0")
    A(f"s_cmp_lt_u32 s3, {1 if fwait else 3}")
    A("s_cbranch_scc1 L_f_next")
    A(f"s_sleep {fslow}" if fslow else "s_nop 0")
    Lb("L_f_next")
    A("s_sub_u32 s69, s69, 4")
    A("s_cbranch_scc0 L_f_round")
    A("s_mov_b32 s69, 0")
    A("s_setpc_b64 s[62:63]")
    Lb("L_f_have_y")
    A("s_cmp_eq_u32 s93, 0")
    A("s_cbranch_scc1 L_f_next")
    total(YA, HT, "y")
    A(f"v_mul_f32 v{HT}, v{HT}, v{HT+1}")
    bfround(HT, HT)
    A(f"v_add_f32 v{HT}, v{HT}, v{HXV}")
    A(f"v_cvt_pk_bf16_f32 v{HT}, v{HT}, v{HT}")
    A(f"buffer_store_short v{HT}, v{HOA}, s[16:19], s68 offen {outpol}")
    A("s_setpc_b64 s[62:63]")
    Lb("L_f_gate")
    total(GA, HT + 1, "g")
    A(f"v_add_f32 v{HT+1}, v{HT+1}, v{HB2}")
    bfround(HT + 1, HT + 1)
    A(f"v_mul_f32 v{HT}, {f32(-LOG2E)}, v{HT+1}")
    A(f"v_exp_f32 v{HT}, v{HT}")
    A("s_mov_b32 s93, 1")
    A(f"v_add_f32 v{HT}, 1.0, v{HT}")
    A(f"v_rcp_f32 v{HT}, v{HT}")
    A("s_nop 0")
    A(f"v_mul_f32 v{HT+1}, v{HT+1}, v{HT}")
    bfround(HT + 1, HT + 1)
    A("s_branch L_f_y")

    o[:] = o[:head_end] + o[helper_start:] + o[head_end:helper_start]
    o.append('.section .rodata,"a"')
    o.append(".p2align 6")
    o.append(f".amdhsa_kernel {NAME}_kernel")
    o.append("  .amdhsa_next_free_vgpr 256")
    o.append("  .amdhsa_next_free_sgpr 100")
    o.append("  .amdhsa_accum_offset 256")
    o.append("  .amdhsa_group_segment_fixed_size 0")
    o.append("  .amdhsa_kernarg_size 104")
    o.append("  .amdhsa_user_sgpr_count 2")
    o.append("  .amdhsa_user_sgpr_kernarg_segment_ptr 1")
    o.append("  .amdhsa_system_sgpr_workgroup_id_x 1")
    o.append("  .amdhsa_float_denorm_mode_32 3")
    o.append(".end_amdhsa_kernel")
    return "\n".join(o) + "\n"


if __name__ == "__main__":
    cfg = json.loads(sys.argv[2]) if len(sys.argv) > 2 else {}
    open(sys.argv[1], "w").write(gen(**cfg))
```

```python
import struct, sys, json

NAME = "recurrent_scan__mha_block_cached__dense_activation_gelu__decode"
HEADER = open("header.txt").read()

WS_G = 0x000000
SLOT = 2304
SLOT2 = 2 * SLOT
WS_S = 0x200000
WS_STAMP = 0x20000000

L_V = 0x00000
L_B = 0x20000
O_OP = 0x0000
O_E = 0x1000
O_ST = 0x1800
O_CNT = 0x1840
O_Q = 0x1880
O_HR = 0x1980
O_XN = 0x19C0
O_CX = 0x2300
O_HS = 0x2700
LDS_BYTES = L_B + 0x2800
C_CL, C_S1, C_Q, C_H, C_SM, C_PV = 0, 4, 8, 12, 16, 20

LOG2E = 1.4426950408889634
OOB = "0x10000000"


def f32(x):
    return "0x%08x" % struct.unpack("<I", struct.pack("<f", x))[0]


def vr(a, n=1):
    return f"v{a}" if n == 1 else f"v[{a}:{a+n-1}]"


DPP_ALL = "row_mask:0xf bank_mask:0xf"


def cl(i):
    return ((i & 1) << 3) | (((i >> 1) & 1) << 2) | (i >> 2)


def gen(D=5, D0=0, DK=0, DV=0, DT=0, stamps=False, hprio=1, kvpol="nt", wpol="", spol="",
        NSL=1, xown=False, pf=2, xs0=0, xs1=0, fixdur=0,
        ctl=True, DL=(4, 5, 6, 8), TH=(-25, 20, 60), LOOK=2, SSTR=40*128,
        fs=0, fslow=0, fthr=16, outpol="", fwait=True, ypol="sc1", lpol="sc1", wb=(16, 13), tb=(14, 19), gb=(15, 17, 18, 12), mid=True, ramp=(0, 0), nop1=False, noclear=False, fakew=False, nonarrow=False, f0=0, nog=False, fa=None, b4=2, warm2=True, DLK=(4, 5.5, 7, 7), noslab=False, hs=0, NQ=4, ring3=True, rot=True, ncl=64, clat="q", srot=4, tmin=False):
    o = []
    cur = [o]
    A = lambda s: cur[0].append("  " + s)
    Lb = lambda s: cur[0].append(s + ":")

    def capture(fn):
        tmp = []
        cur[0] = tmp
        fn()
        cur[0] = o
        return tmp

    VST = 1
    DLV = DL
    assert sorted(list(wb) + list(tb) + list(gb)) == list(range(12, 20))
    dep = lambda v, pos: sum(((v >> k) & 1) << p for k, p in enumerate(pos))
    TOFF = [dep(k, tb) for k in range(4)]
    D0 = D0 or D; DK = DK or D; DV = DV or D; DT = DT or DV
    pace = lambda d, i: f"s_waitcnt vmcnt({int(d + (0.5 if i & 1 else 0)) - 1})"

    def stamp(i):
        if stamps and (stamps != "lite" or i in (0, 15)):
            A("s_memrealtime s[70:71]")
            A("s_waitcnt lgkmcnt(0)")
            A(f"v_writelane_b32 v{VST}, s70, {i}")

    def bfround(dst, src):
        A(f"v_cvt_pk_bf16_f32 v{dst}, v{src}, v{src}")
        A(f"v_and_b32 v{dst}, 0xffff0000, v{dst}")

    def allreduce_row(op, v):
        for sh in (8, 4, 2, 1):
            A("s_nop 1")
            A(f"{op}_dpp v{v}, v{v}, v{v} row_ror:{sh} {DPP_ALL}")

    def swap_reduce(op, v, t, which):
        A(f"v_mov_b32 v{t}, v{v}")
        A("s_nop 1")
        A(f"v_permlane{which}_swap_b32 v{t}, v{v}")
        A("s_nop 1")
        A(f"{op} v{v}, v{v}, v{t}")

    def lds_spin(label, vaddr, off, vtmp, target, sleep=1):
        Lb(label)
        A(f"ds_read_b32 v{vtmp}, v{vaddr} offset:{off}")
        A("s_waitcnt lgkmcnt(0)")
        A(f"v_readfirstlane_b32 s3, v{vtmp}")
        A(f"s_cmp_ge_u32 s3, {target}")
        A(f"s_cbranch_scc1 {label}_ok")
        if sleep:
            A(f"s_sleep {sleep}")
        A("s_sub_u32 s69, s69, 1")
        A(f"s_cbranch_scc0 {label}")
        A("s_mov_b32 s69, 0")
        Lb(label + "_ok")

    def lds_arrive(vaddr, off, vone):
        A("s_mov_b64 exec, 1")
        A(f"ds_add_u32 v{vaddr}, v{vone} offset:{off}")
        A("s_mov_b64 exec, -1")

    def pv_masks(vm, vc, t0):
        A(f"v_and_b32 v{t0}, 4, v{vc}")
        A(f"v_lshlrev_b32 v{t0}, 2, v{t0}")
        A(f"v_mov_b32 v{t0+1}, 0xffff")
        A(f"v_lshlrev_b32 v{t0}, v{t0}, v{t0+1}")
        A(f"v_and_b32 v{t0+1}, 3, v{vc}")
        A(f"v_lshrrev_b32 v{vm}, 3, v{vc}")
        A(f"v_lshl_add_u32 v{t0+1}, v{t0+1}, 1, v{vm}")
        for r in range(4):
            A(f"v_cmp_eq_u32 vcc, {r}, v{t0+1}")
            A("s_nop 1")
            A(f"v_cndmask_b32 v{vm+r}, 0, v{t0}, vcc")

    def softmax_factor(vbase, vst, vf, vown):
        A(f"ds_read_b128 {vr(vst,4)}, v{vbase} offset:{O_ST}")
        A(f"ds_read_b128 {vr(vst+4,4)}, v{vbase} offset:{O_ST+16}")
        A("s_waitcnt lgkmcnt(0)")
        m, t = vst + 8, vst + 9
        A(f"v_max3_f32 v{m}, v{vst}, v{vst+2}, v{vst+4}")
        A(f"v_max_f32 v{m}, v{m}, v{vst+6}")
        for k in range(4):
            A(f"v_sub_f32 v{vst+2*k}, v{vst+2*k}, v{m}")
        A(f"v_sub_f32 v{t}, v{vown}, v{m}")
        for k in range(4):
            A(f"v_mul_f32 v{vst+2*k}, {f32(LOG2E)}, v{vst+2*k}")
        A(f"v_mul_f32 v{t}, {f32(LOG2E)}, v{t}")
        for k in range(4):
            A(f"v_exp_f32 v{vst+2*k}, v{vst+2*k}")
        A(f"v_exp_f32 v{t}, v{t}")
        A(f"v_mul_f32 v{m}, v{vst}, v{vst+1}")
        for k in range(1, 4):
            A(f"v_fmac_f32 v{m}, v{vst+2*k}, v{vst+2*k+1}")
        A(f"v_rcp_f32 v{m}, v{m}")
        A("s_nop 0")
        A(f"v_mul_f32 v{vf}, v{t}, v{m}")

    o.append(HEADER.rstrip())
    o.append(f"; @launch grid=(256,1,1) block=(512,1,1) lds={LDS_BYTES}")
    o.append('.amdgcn_target "amdgcn-amd-amdhsa--gfx950"')
    o.append(".text")
    o.append(f".globl {NAME}_kernel")
    o.append(".p2align 8")
    o.append(f".type {NAME}_kernel,@function")
    Lb(f"{NAME}_kernel")
    A("s_cmp_ge_u32 s2, 256")
    A("s_cbranch_scc1 L_end")
    if fixdur or stamps:
        A("s_memrealtime s[74:75]")
    SX, SK, SV, SWQ, SWO, SW1, SB1, SW2, SB2, SOUT, SDBG, SWS = 36, 38, 40, 42, 44, 48, 50, 52, 54, 56, 58, 60
    A("s_load_dwordx16 s[36:51], s[0:1], 0")
    A("s_load_dwordx8 s[52:59], s[0:1], 64")
    A("s_load_dwordx2 s[60:61], s[0:1], 96")
    A("v_lshrrev_b32 v1, 6, v0")
    A("v_and_b32 v2, 63, v0")
    A("v_readfirstlane_b32 s28, v1")
    A(f"v_mov_b32 v6, {L_B}")
    A("v_mov_b32 v8, 0")
    A("v_mov_b32 v9, 0")
    A("v_lshl_add_u32 v7, v0, 3, v6")
    A(f"ds_write_b64 v7, v[8:9] offset:{O_OP}")
    A("v_and_b32 v4, 15, v2")
    A("v_lshl_add_u32 v7, v4, 2, v6")
    A(f"ds_write_b32 v7, v8 offset:{O_CNT}")
    A("v_lshlrev_b32 v3, 4, v2")
    A("v_and_b32 v7, 1, v1")
    A(f"v_lshl_add_u32 v3, v7, {wb[0]}, v3")
    A("v_bfe_u32 v7, v1, 1, 1")
    A(f"v_lshl_add_u32 v3, v7, {wb[1]}, v3")
    A("s_lshl_b32 s3, s2, 20")
    A("s_mov_b32 s18, 0x100000")
    A("s_mov_b32 s19, 0x20000")
    A("s_mov_b32 s69, 0x200000")
    A(f"s_mov_b32 s33, {TOFF[1]}")
    if stamps:
        A(f"v_mov_b32 v{VST}, 0")
    A("s_cmp_ge_u32 s28, 4")
    A("s_waitcnt lgkmcnt(0)")
    if stamps:
        A("s_mov_b64 s[72:73], s[60:61]")
    A("s_cbranch_scc1 L_helper")

    HB2, HXV, HOA, GS = 12, 13, 14, 15

    def srd(n, base, off_s, size):
        if off_s is None:
            A(f"s_mov_b32 s{n}, s{base}")
            A(f"s_mov_b32 s{n+1}, s{base+1}")
        else:
            A(f"s_add_u32 s{n}, s{base}, {off_s}")
            A(f"s_addc_u32 s{n+1}, s{base+1}, 0")
        A(f"s_mov_b32 s{n+2}, {size}")
        A(f"s_mov_b32 s{n+3}, 0x20000")

    def final_srds(out_ptr, live):
        A("s_lshr_b32 s68, s2, 5")
        A(f"s_mul_i32 s3, s68, {SLOT2}")
        srd(12, SWS, "s3", 249 * SLOT2 if live else 0)
        srd(16, out_ptr, None, 9216 if live else 0)
        for k in (1, 2, 3):
            A(f"s_mov_b32 s{64+k}, {64*k*SLOT2}")
        A("s_mul_i32 s68, s68, 1152")

    VQ, VP, VA0, VA1, VB, VC, VS, VMAX = 4, 8, 10, 11, 12, 13, 14, 15
    VE, VM, VAO, VACC = 16, 32, 36, 44
    RING, RING2, VT, VLB = 48, 112, 176, 188
    VPC, VN = VE + 2, VE + 1
    def ring_load(i, ring=RING):
        so = "0" if i < 4 else f"s{36+i//4}"
        A(f"buffer_load_dwordx4 {vr(ring+4*i,4)}, v3, s[16:19], {so} offen offset:{(i%4)*1024} {kvpol}")

    VB0 = 189

    def next_group():
        A("s_add_u32 s29, s29, 1")
        runs = []
        for k, p in enumerate(gb):
            if runs and p == runs[-1][1] + runs[-1][2]:
                runs[-1][2] += 1
            else:
                runs.append([k, p, 1])
        for n, (k, p, w) in enumerate(runs):
            d = "s35" if n == 0 else "s3"
            A(f"s_bfe_u32 {d}, s29, {k | (w << 16)}")
            A(f"s_lshl_b32 {d}, {d}, {p}")
            if n:
                A("s_or_b32 s35, s35, s3")
        A(f"v_add_u32 v3, s35, v{VB0}")

    A(f"s_add_u32 s16, s{SK}, s3")
    A(f"s_addc_u32 s17, s{SK+1}, 0")
    for i in range(int(D0)):
        A(f"buffer_load_dwordx4 {vr(RING+4*i,4)}, v3, s[16:19], {'0' if i < 4 else 's33'} offen offset:{(i%4)*1024} {kvpol}")
    stamp(6)
    A("s_barrier")
    A("s_branch L_streamer")
    head_end = len(o)
    Lb("L_streamer")
    stamp(7)
    A(f"s_add_u32 s12, s{SV}, s3")
    A(f"s_addc_u32 s13, s{SV+1}, 0")
    A("s_mov_b32 s14, 0x100000")
    A("s_mov_b32 s15, 0x20000")
    for k in (1, 2, 3):
        A(f"s_mov_b32 s{36+k}, {TOFF[k]}")
    A(f"v_mov_b32 v{VLB}, {L_B}")
    A(f"v_mov_b32 v{VB0}, v3")
    A(f"s_mov_b64 s[6:7], s[{SOUT}:{SOUT+1}]")
    if pf:
        A("s_and_b32 s33, s2, 31")
        A("s_lshr_b32 s34, s2, 5")
        A(f"s_mul_i32 s3, s33, {128*1152}")
        A(f"s_mul_i32 s35, s34, {16*1152}")
        A("s_add_u32 s3, s3, s35")
        srd(8, SWO, "s3", 16 * 1152)
        A("s_and_b32 s3, s2, 7")
        A("s_lshl_b32 s3, s3, 2")
        A("s_lshr_b32 s33, s33, 3")
        A("s_add_u32 s3, s3, s33")
        A(f"s_mul_i32 s3, s3, {144*1152}")
        A(f"s_mul_i32 s35, s34, {18*1152}")
        A("s_add_u32 s3, s3, s35")
        srd(24, SW2, "s3", 18 * 1152)
    A("s_mov_b32 s29, 0")
    for k in (1, 2, 3):
        A(f"s_mov_b32 s{38+2*k}, 0x{(0x11111111 << k) & 0xffffffff:08x}")
        A(f"s_mov_b32 s{39+2*k}, 0x{(0x11111111 << k) & 0xffffffff:08x}")
    if ctl:
        A("s_lshr_b32 s3, s2, 5")
        A("s_and_b32 s54, s2, 31")
        if srot == 16:
            A("s_lshr_b32 s35, s54, 3")
            A("s_lshl_b32 s35, s35, 2")
            A("s_add_u32 s35, s35, s28")
            A("s_lshl_b32 s35, s35, 7")
            A("s_and_b32 s54, s54, 7")
        else:
            A("s_lshl_b32 s35, s28, 7")
        A("s_cmp_eq_u32 s54, s3")
        A("s_cselect_b32 s54, s35, -1")
        A(f"s_mul_i32 s3, s3, {SSTR}")
        A(f"s_add_u32 s3, s3, {WS_S}")
        A(f"s_add_u32 s20, s{SWS}, s3")
        A(f"s_addc_u32 s21, s{SWS+1}, 0")
        A(f"s_movk_i32 s22, {40*128}")
        A("s_mov_b32 s23, 0x20000")
        A(f"s_add_u32 s46, s{SWS}, {WS_S - LOOK*128}")
        A(f"s_addc_u32 s47, s{SWS+1}, 0")
        A("s_mov_b32 s48, 0")
    A(f"v_and_b32 v{VT+2}, 15, v2")
    A(f"v_lshl_add_u32 v{VT+3}, v{VT+2}, 4, v{VLB}")
    pv_masks(VM, VT + 2, VT)
    for r in range(4):
        A(f"v_mov_b32 v{VACC+r}, 0")
    for i in range(int(D0), 16):
        A(pace(D0, i))
        ring_load(i)
        if i in (int(D0), 2 * int(D0), 15):
            stamp({int(D0): 8, 2 * int(D0): 9, 15: 10}[i])
    A(f"v_add_u32 v{VT+4}, {dep(14, gb)}, v3")
    A("s_lshl_b32 s33, s28, 15")
    A("s_mov_b32 s35, 2")
    Lb("L_vdma")
    for i in range(16):
        if i % 4 == 0:
            A("s_mov_b32 m0, s33")
            A("s_add_u32 s33, s33, 4096")
        A(pace(D0, i))
        A(f"buffer_load_dwordx4 v{VT+4}, s[12:15], {'0' if i < 4 else 's%d' % (36+i//4)} offen offset:{(i%4)*1024} {kvpol} lds")
    A(f"v_add_u32 v{VT+4}, {dep(1, gb)}, v{VT+4}")
    A("s_sub_u32 s35, s35, 1")
    A("s_cmp_lg_u32 s35, 0")
    A("s_cbranch_scc1 L_vdma")
    RING3 = 190
    if ring3:
        A(f"v_add_u32 v{VT+4}, {dep(13, gb)}, v3")
        for i in range(16):
            A(pace(D0, i))
            A(f"buffer_load_dwordx4 {vr(RING3+4*i,4)}, v{VT+4}, s[12:15], {'0' if i < 4 else 's%d' % (36+i//4)} offen offset:{(i%4)*1024} {kvpol}")
    if pf:
        A(f"v_lshlrev_b32 v{VT+4}, 4, v0")
        for n, (sr, cnt) in enumerate(((24, 6), (8, 5))):
            for k in range(cnt):
                A(f"s_movk_i32 s3, {4096*k}")
                A(pace(D0, k))
                A(f"buffer_load_dwordx4 {vr(RING2+4*(6*n+k),4)}, v{VT+4}, s[{sr}:{sr+3}], s3 offen")
    stamp(1)
    lds_spin("L_qwait", VLB, O_CNT + C_Q, VT, 1, sleep=0)
    A(f"ds_read_b128 {vr(VQ,4)}, v{VT+3} offset:{O_Q}")
    A("s_mov_b32 s34, 16")
    if ctl:
        A("s_memrealtime s[50:51]")
    stamp(2)
    A("s_waitcnt lgkmcnt(0)")
    if ctl:
        for r in (49, 52, 53, 56, 57):
            A(f"s_mov_b32 s{r}, s50")

    def loop_stamp(base):
        if stamps and stamps != "lite":
            A("s_memrealtime s[70:71]")
            A(f"s_sub_u32 m0, {base}, s34")
            A("s_waitcnt lgkmcnt(0)")
            A(f"v_writelane_b32 v{VST}, s70, m0")

    ckn = [0]

    def level(lag):
        return [f"s_add_u32 s93, {lag}, 1500", "s_cmp_lt_u32 s93, 3000", f"s_cselect_b32 {lag}, {lag}, {TH[0]}",
                f"s_cmp_ge_i32 {lag}, {TH[1]}", "s_cselect_b64 vcc, -1, 0", "s_cselect_b32 s93, s5, s4",
                f"s_cmp_ge_i32 {lag}, s93", "s_cselect_b32 s90, 1, 0"]

    def decide(last=False):
        if not ctl:
            return
        A("s_waitcnt lgkmcnt(0)")
        A("s_sub_u32 s55, s50, s49")
        for l in level("s55"):
            A(l)

    def atoms():
        if not ctl:
            return {}
        ckn[0] += 1
        n = ckn[0]
        at = {}
        at[0] = [f"s_and_b32 s93, s48, {(srot-1)*128}", "s_cmp_lg_u32 s54, s93", f"s_cbranch_scc1 L_ck{n}_nopub", f"v_mov_b32 v{VT+11}, s50", "s_mov_b64 exec, 1",
                 f"buffer_store_dword v{VT+11}, off, s[20:23], s48 sc1", "s_mov_b64 exec, -1", f"L_ck{n}_nopub:"]
        at[1] = ["s_add_u32 s88, s46, s48", "s_addc_u32 s89, s47, 0", f"s_cmp_lt_u32 s48, {LOOK*128}", f"s_cbranch_scc1 L_ck{n}_early"]
        at[1] += [f"s_load_dword s{80+j}, s[88:89], {j*SSTR}" for j in range(8)] + [f"L_ck{n}_early:"]
        if ramp[0]:
            at[3] = [f"s_add_u32 s4, s4, {ramp[1]}", f"s_min_i32 s4, s4, {TH[0]}"]
        if mid:
            at[6] = ["s_memrealtime s[98:99]", "s_lshr_b32 s93, s92, 3", "s_add_u32 s49, s49, s93"]
            at[7] = ["s_waitcnt lgkmcnt(0)", "s_sub_u32 s55, s98, s49"] + level("s55")
            at[8] = [f"s_sub_u32 s{80+j}, s50, s{80+j}" for j in range(8)] + ["s_max_u32 s91, s80, s81", "s_add_u32 s55, s80, s81"]
        else:
            at[7] = ["s_waitcnt lgkmcnt(0)"] + [f"s_sub_u32 s{80+j}, s50, s{80+j}" for j in range(4)]
            at[8] = [f"s_sub_u32 s{80+j}, s50, s{80+j}" for j in range(4, 8)] + ["s_max_u32 s91, s80, s81", "s_add_u32 s55, s80, s81"]
        at[9] = sum(([f"s_max_u32 s91, s91, s{80+j}", f"s_add_u32 s55, s55, s{80+j}"] for j in range(2, 5)), [])
        at[10] = sum(([f"s_max_u32 s91, s91, s{80+j}", f"s_add_u32 s55, s55, s{80+j}"] for j in range(5, 8)), [])
        at[11] = ["s_lshr_b32 s55, s55, 3", "s_sub_u32 s55, s50, s55", "s_lshl_b32 s49, s52, 1", "s_sub_u32 s49, s49, s53",
                  "s_cmp_lt_u32 s91, 2500", "s_cselect_b32 s55, s55, s49"]
        at[12] = ["s_sub_u32 s91, s55, s53", "s_lshl_b32 s91, s91, 1", "s_sub_u32 s49, s55, s57"] + (["s_min_u32 s49, s49, s92"] if tmin else []) + [
                  f"s_cmp_ge_u32 s48, {(LOOK+5)*128}", "s_cselect_b32 s92, s49, s91", f"s_mul_i32 s91, s92, {LOOK+1}"]
        at[13] = ["s_lshr_b32 s91, s91, 2", "s_add_u32 s49, s55, s91", "s_mov_b32 s57, s56", "s_mov_b32 s56, s53",
                  "s_mov_b32 s53, s52", "s_mov_b32 s52, s55"]
        at[14] = ["s_add_u32 s91, s50, 0x40000000", f"s_cmp_lt_u32 s48, {(LOOK+2)*128}", "s_cselect_b32 s49, s91, s49",
                  "s_add_u32 s48, s48, 128", "s_memrealtime s[50:51]"]
        return at

    def emit_atom(at, i, restore=True):
        if i in at:
            for l in at[i]:
                if l.endswith(":"):
                    Lb(l[:-1])
                else:
                    A(l)
            if restore:
                A("s_cmp_lg_u32 s90, 0")

    def cpace(d, i, tag):
        if not ctl:
            A(pace(d, i))
            return
        DL = DLK if (tag == "pk" and DLK) else DLV
        A(f"s_cbranch_vccnz L_{tag}a{i}")
        A(f"s_cbranch_scc1 L_{tag}b{i}")
        A(pace(DL[0], i))
        Lb(f"L_{tag}b{i}")
        A(pace(DL[1], i))
        Lb(f"L_{tag}a{i}")
        if DL[3] != DL[2]:
            A(f"s_cbranch_scc1 L_{tag}c{i}")
            A(pace(DL[2], i))
            Lb(f"L_{tag}c{i}")
        A(pace(DL[3], i))

    def red_a(i):
        j = i & 3
        dst = VA0 if j < 2 else VA1
        bm = "0x3" if (j & 1) == 0 else "0xc"
        p = VP + (i & 1)
        A(f"v_add_f32_dpp v{dst}, v{p}, v{p} row_ror:8 row_mask:0xf bank_mask:{bm}")

    def red_b(which):
        src = VA0 if which == 0 else VA1
        bm = "0x5" if which == 0 else "0xa"
        A(f"v_add_f32_dpp v{VB}, v{src}, v{src} row_half_mirror row_mask:0xf bank_mask:{bm}")

    def red_c():
        A(f"v_add_f32_dpp v{VC}, v{VB}, v{VB} quad_perm:[1,0,3,2] {DPP_ALL}")

    def red_d(k):
        dst = VS if k == 0 else VB
        A(f"v_add_f32_dpp v{dst}, v{VC}, v{VC} quad_perm:[2,3,0,1] {DPP_ALL}")

    def red_e(k):
        if k:
            A(f"v_cndmask_b32 v{VS}, v{VS}, v{VB}, s[{38+2*k}:{39+2*k}]")

    def post_a():
        bfround(VS, VS)
        A(f"v_mul_f32 v{VS}, {f32(128 ** -0.5)}, v{VS}")

    def post_b():
        bfround(VE + 15, VS)

    if ctl:
        A("s_add_u32 s49, s49, 0x40000000")
        A("s_mov_b32 s92, 0")
        A(f"s_mov_b32 s4, {TH[0] - ramp[0]*ramp[1]}")
        A(f"s_mov_b32 s5, {TH[2]}")
    Lb("L_kloop")
    loop_stamp(33)
    next_group()
    A("s_cmp_eq_u32 s34, 1")
    A("s_cselect_b32 s16, s12, s16")
    A("s_cselect_b32 s17, s13, s17")
    decide()
    at = atoms()
    for i in range(16):
        k, j = i >> 2, i & 3
        p = VP + (i & 1)
        R = RING + 4 * i
        A(f"v_dot2_f32_bf16 v{p}, v{R}, v{VQ}, 0")
        A(f"v_dot2_f32_bf16 v{p}, v{R+1}, v{VQ+1}, v{p}")
        red_a((i - 1) & 15)
        A(f"v_dot2_f32_bf16 v{p}, v{R+2}, v{VQ+2}, v{p}")
        if j == 0:
            red_b(0)
        elif j == 1:
            red_b(1)
        elif j == 2:
            red_c()
        else:
            red_d((k - 1) & 3)
        A(f"v_dot2_f32_bf16 v{p}, v{R+3}, v{VQ+3}, v{p}")
        cpace(DK, i, "pk")
        ring_load(i)
        if j == 3:
            red_e((k - 1) & 3)
        if i == 4:
            post_a()
        if i == 5:
            post_b()
        if i < 15:
            A(f"v_mov_b32 v{VE+i}, v{VE+i+1}")
        emit_atom(at, i)
    A("s_sub_u32 s34, s34, 1")
    A("s_cmp_lg_u32 s34, 0")
    A("s_cbranch_scc1 L_kloop")
    stamp(3)

    def sm_a():
        red_a(15)
        red_b(0)
        A("s_nop 0")
        red_b(1)
        A("s_nop 1")
        red_c()
        A("s_nop 1")
        red_d(3)
        red_e(3)
        post_a()
        post_b()
        A(f"v_max3_f32 v{VMAX}, v{VE}, v{VE+1}, v{VE+2}")
        for u in range(3, 15, 2):
            A(f"v_max3_f32 v{VMAX}, v{VMAX}, v{VE+u}, v{VE+u+1}")
        A(f"v_max_f32 v{VMAX}, v{VMAX}, v{VE+15}")
        allreduce_row("v_max_f32", VMAX)
        swap_reduce("v_max_f32", VMAX, VT, 16)
        swap_reduce("v_max_f32", VMAX, VT, 32)
        for u in range(16):
            A(f"v_sub_f32 v{VE+u}, v{VE+u}, v{VMAX}")
        for u in range(16):
            A(f"v_mul_f32 v{VE+u}, {f32(LOG2E)}, v{VE+u}")
        for u in range(16):
            A(f"v_exp_f32 v{VE+u}, v{VE+u}")
        A(f"v_add_f32 v{VS}, v{VE}, v{VE+1}")
        for u in range(2, 16):
            A(f"v_add_f32 v{VS}, v{VS}, v{VE+u}")
        A(f"s_lshl_b32 s3, s28, 9")
        A(f"v_lshl_add_u32 v{VT+2}, v2, 2, v{VLB}")
        A(f"v_add_u32 v{VT+2}, s3, v{VT+2}")
        A(f"ds_write_b32 v{VT+2}, v{VE+14} offset:{O_E}")
        A(f"ds_write_b32 v{VT+2}, v{VE+15} offset:{O_E+256}")
        allreduce_row("v_add_f32", VS)
        swap_reduce("v_add_f32", VS, VT, 16)
        swap_reduce("v_add_f32", VS, VT, 32)
        A(f"s_lshl_b32 s3, s28, 3")
        A(f"v_add_u32 v{VT+2}, s3, v{VLB}")
        A(f"ds_write_b32 v{VT+2}, v{VMAX} offset:{O_ST}")
        A(f"ds_write_b32 v{VT+2}, v{VS} offset:{O_ST+4}")
        A(f"v_mov_b32 v{VT+3}, 1")

    def sm_b():
        softmax_factor(VLB, VT, VS, VMAX)
        for u in range(14):
            A(f"v_mul_f32 v{VE+u}, v{VE+u}, v{VS}")
        for u in range(14):
            A(f"v_cvt_pk_bf16_f32 v{VE+u}, v{VE+u}, v{VE+u}")

    nxt = [0]

    def issue2():
        i = nxt[0]
        if ctl:
            A("s_cmp_lg_u32 s90, 0")
        cpace(DT, i, "pt")
        ring_load(i, RING2)
        emit_atom(at, i, restore=False)
        nxt[0] += 1

    def weave(lines, n):
        step = (len(lines) + n - 1) // n
        for a in range(0, len(lines), step):
            issue2()
            o.extend(lines[a:a + step])

    if stamps:
        A("s_mov_b32 s34, 14")
        loop_stamp(47)
    next_group()
    decide()
    at = atoms()
    weave(capture(sm_a), 6)
    A("s_waitcnt lgkmcnt(0)")
    lds_arrive(VLB, O_CNT + C_SM, VT + 3)
    while nxt[0] < 12:
        issue2()
    lds_spin("L_smwait", VLB, O_CNT + C_SM, VT, 8, sleep=0)
    weave(capture(sm_b), 4)
    while nxt[0] < 16:
        issue2()
    stamp(4)

    def build_a(n, i, vp):
        for r in range(4):
            A(f"v_and_b32_dpp v{VAO+4*(n&1)+r}, v{vp}, v{VM+r} row_newbcast:{cl(i)} {DPP_ALL}")

    def pv_mfma(n, reg):
        A(f"v_mfma_f32_16x16x32_bf16 {vr(VACC,4)}, {vr(VAO+4*(n&1),4)}, {vr(reg,4)}, {vr(VACC,4)}")

    if stamps:
        A("s_mov_b32 s34, 13")
        loop_stamp(47)
    next_group()
    decide()
    at = atoms()
    build_a(0, 0, VE)
    for i in range(16):
        build_a(1, i, VE + 1)
        pv_mfma(0, RING + 4 * i)
        cpace(DV, i, "px")
        ring_load(i)
        if ring3:
            build_a(0, i, VE + 13)
            pv_mfma(1, RING2 + 4 * i)
            A("s_nop 0")
            pv_mfma(0, RING3 + 4 * i)
            build_a(0, (i + 1) & 15, VE if i < 15 else VPC)
        else:
            build_a(0, (i + 1) & 15, VE if i < 15 else VPC)
            pv_mfma(1, RING2 + 4 * i)
        emit_atom(at, i)
    A(f"s_mov_b32 s34, {10 if ring3 else 11}")

    Lb("L_vloop")
    loop_stamp(45 if ring3 else 46)
    next_group()
    decide(True)
    at = atoms()
    for i in range(16):
        pv_mfma(i, RING + 4 * i)
        cpace(DV, i, "pv")
        ring_load(i)
        build_a(i + 1, (i + 1) & 15, VPC if i < 15 else VN)
        if i == 0:
            A(f"v_mov_b32 v{VN}, v{VPC+1}")
        if 1 <= i <= 10:
            A(f"v_mov_b32 v{VPC+i}, v{VPC+i+1}")
        if i == 15:
            A(f"v_mov_b32 v{VPC}, v{VN}")
        emit_atom(at, i)
        if i > 10 and i < 15 and i not in at:
            A("s_nop 0")
        if i < 15 and i not in at:
            A("s_nop 0")
    A("s_sub_u32 s34, s34, 1")
    A("s_cmp_lg_u32 s34, 0")
    A("s_cbranch_scc1 L_vloop")
    loop_stamp(46)
    if ring3 and stamps and stamps != "lite":
        A(f"v_writelane_b32 v{VST}, s70, 45")
    A(f"v_lshl_add_u32 v{VT}, v0, 3, v{VLB}")
    A("s_call_b64 s[62:63], L_sub_pv")
    A("s_nop 6")
    A(f"ds_write_b64 v{VT}, {vr(VACC,2)} offset:{O_OP}")
    A("s_waitcnt lgkmcnt(0)")
    stamp(5)
    A("s_barrier")
    if stamps == "lite":
        A("s_memrealtime s[70:71]")
        A("s_waitcnt lgkmcnt(0)")
        A(f"v_writelane_b32 v{VST}, s70, 5")
    A("s_and_b32 s3, s2, 31")
    A("s_lshl_b32 s33, s28, 5")
    A("s_add_u32 s3, s3, s33")
    A("s_cmp_ge_u32 s3, 18")
    A("s_cbranch_scc1 L_fin")
    A(f"v_lshl_add_u32 v{VT}, v2, 4, v{VLB}")
    A(f"ds_read_b128 {vr(HB2,4)}, v{VT} offset:{O_CX}")
    final_srds(6, True)
    if b4:
        A("s_barrier")
    if f0:
        A(f"s_sleep {f0}")
    if fa:
        A("s_memrealtime s[50:51]")
        A("s_waitcnt lgkmcnt(0)")
        A("s_sub_u32 s3, s49, s50")
        A(f"s_add_u32 s3, s3, {fa[0]}")
        A(f"s_max_i32 s3, s3, {fa[1]}")
        A(f"s_min_i32 s3, s3, {fa[2]}")
        Lb("L_backoff")
        A("s_sleep 1")
        A("s_sub_u32 s3, s3, 4")
        A("s_cbranch_scc0 L_backoff")
    A("s_waitcnt lgkmcnt(0)")
    A("s_call_b64 s[62:63], L_sub_final")
    stamp(14)
    A("s_branch L_fin" if (stamps or fixdur) else "s_endpgm")

    Lb("L_sub_pv")
    build_a(0, 0, VPC)
    for i in range(16):
        if i < 15:
            build_a(i + 1, i + 1, VPC)
        if 15 - i < int((DL[3] if ctl else DV) + 0.5):
            A(f"s_waitcnt vmcnt({15-i})")
        pv_mfma(i, RING + 4 * i)
    A("s_setpc_b64 s[62:63]")

    HC, HG, HLB = 4, 5, 6
    HVB, HVS = 7, 8
    HPM, HPR = 9, 10
    HOP = 11
    HD = 16
    HF2 = 64
    HT = 64
    HA = 88
    XO, XP, XZ, XE = 104, 105, 106, 107
    HF = 112
    ST = 28
    GH, GT = 20, 82

    helper_start = len(o)
    Lb("L_helper")
    if hprio:
        A(f"s_setprio {hprio}")
    A(f"v_and_b32 v{HT}, 31, v2")
    A(f"v_mul_u32_u24 v{HT}, 36, v{HT}")
    A("s_lshr_b32 s30, s2, 5")
    A("s_mul_i32 s68, s30, 1152")
    XR = 52
    srd(8, SX, None, 9216)
    A(f"buffer_load_dwordx4 {vr(XR,4)}, v{HT}, s[8:11], s68 offen")
    A(f"buffer_load_dwordx4 {vr(XR+4,4)}, v{HT}, s[8:11], s68 offen offset:16")
    A(f"buffer_load_dword v{XR+8}, v{HT}, s[8:11], s68 offen offset:32")
    A("s_barrier")
    A("s_sub_u32 s28, s28, 4")
    A("s_and_b32 s29, s2, 31")
    A(f"v_lshrrev_b32 v{HG}, 4, v2")
    HRW, HW1, HXA = HT + 1, HT + 2, HT + 3
    A("s_mul_i32 s3, s28, 144")
    A(f"v_lshl_add_u32 v{HRW}, v{HG}, 2, s3")
    A(f"v_lshlrev_b32 v{HW1}, 13, v{HRW}")
    A(f"v_lshl_add_u32 v{HW1}, v{HC}, 4, v{HW1}")
    A("s_lshl_b32 s3, s29, 8")
    srd(12, SWQ, "s3", 575 * 8192 + 256)

    per = 256 // ncl

    def is_marker(label):
        A("s_add_u32 s3, s29, 3")
        A("s_xor_b32 s3, s3, s30")
        A(f"s_and_b32 s3, s3, {per-1}")
        A(f"s_cbranch_scc1 {label}")

    def marker_index():
        A("s_lshl_b32 s3, s29, 3")
        A("s_add_u32 s3, s3, s30")
        A(f"s_lshr_b32 s3, s3, {per.bit_length()-1}")

    def mark_stores():
        is_marker("L_h_nomark")
        marker_index()
        A(f"s_mul_i32 s3, s3, {per*SLOT2}")
        srd(20, SWS, "s3", 0 if noclear else per * SLOT2)
        for r in range(4):
            A(f"v_mov_b32 v{48+r}, -1")
        A(f"v_subrev_u32 v{HT+5}, 256, v0")
        A(f"v_lshlrev_b32 v{HT+5}, 4, v{HT+5}")
        A("s_mov_b32 s35, 0")
        for k in range((per * SLOT2 + 4095) // 4096):
            A(f"buffer_store_dwordx4 {vr(48,4)}, v{HT+5}, s[20:23], s35 offen sc1")
            A("s_add_u32 s35, s35, 4096")
        Lb("L_h_nomark")

    def mark_report():
        is_marker("L_h_noreport")
        marker_index()
        A(f"s_lshl_b32 s3, s3, {3 if ncl == 32 else 2}")
        A(f"v_mov_b32 v{HT+6}, s3")
        A("s_waitcnt vmcnt(0)")
        A("s_mov_b64 exec, 1")
        A(f"ds_add_rtn_u32 v{HT+5}, v{HLB}, v3 offset:{O_CNT+C_CL}")
        A("s_waitcnt lgkmcnt(0)")
        A(f"v_readfirstlane_b32 s3, v{HT+5}")
        A("s_cmp_lg_u32 s3, 3")
        A("s_cbranch_scc1 L_h_noflag")
        A(f"global_store_dword v{HT+6}, v3, s[{SDBG}:{SDBG+1}] sc1")
        Lb("L_h_noflag")
        A("s_mov_b64 exec, -1")
        Lb("L_h_noreport")

    if clat == "start":
        mark_stores()

    def bump(r):
        A(f"s_add_u32 {r}, {r}, 1")
        A(f"s_cmp_eq_u32 {r}, 9")
        A(f"s_cselect_b32 {r}, 0, {r}")

    A("s_mov_b32 s32, s30" if rot else "s_mov_b32 s32, 0")
    A("s_mov_b32 s33, s32")
    for st in range(2):
        A("s_lshl_b32 s34, s33, 17")
        for j in range(4):
            if 4 * st + j >= NQ:
                A(f"s_waitcnt vmcnt({NQ-1})")
            A(f"buffer_load_dwordx4 {vr(HF+16*st+4*j,4)}, v{HW1}, s[12:15], s34 offen {wpol}")
            A("s_add_u32 s34, s34, 8192")
        bump("s33")
    stamp(16 + 1)
    A("s_waitcnt vmcnt(8)")

    Lb("L_h_ln")
    stamp(1)
    A("s_mov_b32 s94, 0x05040100")
    A("s_mov_b32 s95, 0x07060302")
    XF = HD
    SUM, T1, MEAN = 34, 35, 36
    for d in range(9):
        A(f"v_lshlrev_b32 v{XF+2*d}, 16, v{XR+d}")
        A(f"v_and_b32 v{XF+2*d+1}, 0xffff0000, v{XR+d}")
    A(f"v_add_f32 v{SUM}, v{XF}, v{XF+1}")
    for e in range(2, 18):
        A(f"v_add_f32 v{SUM}, v{SUM}, v{XF+e}")
    allreduce_row("v_add_f32", SUM)
    swap_reduce("v_add_f32", SUM, T1, 16)
    A(f"v_mul_f32 v{MEAN}, {f32(1/576)}, v{SUM}")
    A(f"v_mov_b32 v{SUM}, 0")
    for e in range(18):
        t = 38 + (e & 1)
        A(f"v_sub_f32 v{t}, v{XF+e}, v{MEAN}")
        A(f"v_fmac_f32 v{SUM}, v{t}, v{t}")
    allreduce_row("v_add_f32", SUM)
    swap_reduce("v_add_f32", SUM, T1, 16)
    A(f"v_mul_f32 v{SUM}, {f32(1/576)}, v{SUM}")
    bfround(MEAN, MEAN)
    bfround(SUM, SUM)
    A(f"v_add_f32 v{SUM}, {f32(1e-5)}, v{SUM}")
    bfround(SUM, SUM)
    A(f"v_sqrt_f32 v{SUM}, v{SUM}")
    A("s_nop 0")
    bfround(SUM, SUM)
    A(f"v_rcp_f32 v{SUM}, v{SUM}")
    for e in range(18):
        A(f"v_sub_f32 v{XF+e}, v{XF+e}, v{MEAN}")
    for d in range(9):
        A(f"v_cvt_pk_bf16_f32 v{XR+d}, v{XF+2*d}, v{XF+2*d+1}")
    for d in range(9):
        A(f"v_lshlrev_b32 v{XF+2*d}, 16, v{XR+d}")
        A(f"v_and_b32 v{XF+2*d+1}, 0xffff0000, v{XR+d}")
    for e in range(18):
        A(f"v_mul_f32 v{XF+e}, v{XF+e}, v{SUM}")
    for e in range(18):
        A(f"v_cvt_pk_bf16_f32 v{XF+e}, v{XF+e}, v{XF+e}")
    A(f"v_lshl_add_u32 v{HT}, v{HT}, 1, v{HLB}")
    A(f"v_lshrrev_b32 v{HXA}, 3, v2")
    A(f"v_mov_b32 v3, 1")
    A(f"v_cmp_eq_u32 vcc, s28, v{HXA}")
    A("s_and_saveexec_b64 s[34:35], vcc")
    for d in range(9):
        A(f"ds_write_b64 v{HT}, {vr(XF+2*d,2)} offset:{O_XN+8*d}")
    A("s_mov_b64 exec, -1")
    A(f"v_lshl_add_u32 v{HXA}, v{HRW}, 2, v{HLB}")
    A("s_waitcnt lgkmcnt(0)")
    pv_masks(VM, HC, HT + 4)
    for r in range(4):
        A(f"v_mov_b32 v{VACC+r}, 0")
    stamp(2)
    XV = 48

    def read_x():
        A("s_lshl_b32 s3, s32, 6")
        A(f"v_add_u32 v{HT+4}, s3, v{HXA}")
        A(f"ds_read_b128 {vr(XV,4)}, v{HT+4} offset:{O_XN}")

    def diag(j):
        for r in range(4):
            A(f"v_and_b32 v{VAO+4*(j&1)+r}, v{XV+j}, v{VM+r}")

    A("s_mov_b32 s77, 2")
    Lb("L_h_q")
    for st in range(2):
        read_x()
        bump("s32")
        A("s_lshl_b32 s34, s33, 17")
        A("s_cmp_ge_u32 s77, 9")
        A(f"s_cselect_b32 s34, {OOB}, s34")
        bump("s33")
        A("s_add_u32 s77, s77, 1")
        A("s_waitcnt lgkmcnt(0)")
        for j in range(4):
            diag(j)
            A(f"s_waitcnt vmcnt({min(7, NQ-1)})")
            A("s_nop 0")
            pv_mfma(j, HF + 16 * st + 4 * j)
            A(f"buffer_load_dwordx4 {vr(HF+16*st+4*j,4)}, v{HW1}, s[12:15], s34 offen {wpol}")
            A("s_add_u32 s34, s34, 8192")
        if st == 0:
            A("s_cmp_eq_u32 s77, 11")
            A("s_cbranch_scc1 L_h_q_done")
    A("s_branch L_h_q")
    Lb("L_h_q_done")
    A(f"v_subrev_u32 v{HT+4}, 256, v0")
    A(f"v_lshl_add_u32 v{HT+4}, v{HT+4}, 3, v{HLB}")
    A("s_nop 1")
    A(f"ds_write_b64 v{HT+4}, {vr(VACC,2)} offset:{O_E}")
    A("s_waitcnt lgkmcnt(0)")
    A("s_mov_b64 exec, 1")
    A(f"ds_add_rtn_u32 v{HT+5}, v{HLB}, v3 offset:{O_CNT+C_S1}")
    A("s_mov_b64 exec, -1")
    A(f"v_lshl_add_u32 v{HOP}, v2, 3, v{HLB}")
    A("s_waitcnt lgkmcnt(0)")
    A(f"v_readfirstlane_b32 s3, v{HT+5}")
    stamp(3)
    A("s_cmp_lg_u32 s3, 3")
    A("s_cbranch_scc1 L_h_q_out")
    for k in range(4):
        A(f"ds_read_b64 {vr(XV+2*k,2)}, v{HOP} offset:{O_E+512*k}")
    A(f"v_lshl_add_u32 v{HT+5}, v{HC}, 3, v{HG}")
    A(f"v_lshl_add_u32 v{HT+5}, v{HT+5}, 1, v{HLB}")
    A("s_waitcnt lgkmcnt(0)")
    A(f"v_pk_add_f32 {vr(XV,2)}, {vr(XV,2)}, {vr(XV+2,2)}")
    A(f"v_pk_add_f32 {vr(XV+4,2)}, {vr(XV+4,2)}, {vr(XV+6,2)}")
    A(f"v_pk_add_f32 {vr(XV,2)}, {vr(XV,2)}, {vr(XV+4,2)}")
    A(f"v_cvt_pk_bf16_f32 v{XV}, v{XV}, v{XV+1}")
    A(f"ds_write_b16 v{HT+5}, v{XV} offset:{O_Q}")
    A(f"ds_write_b16_d16_hi v{HT+5}, v{XV} offset:{O_Q+8}")
    A("s_waitcnt lgkmcnt(0)")
    A(f"ds_write_b32 v{HLB}, v3 offset:{O_CNT+C_Q}")
    stamp(6)
    Lb("L_h_q_out")
    if hprio:
        A("s_setprio 0")

    if clat == "q":
        mark_stores()
    if clat != "h":
        mark_report()

    A("s_and_b32 s31, s2, 7")
    A("s_lshl_b32 s31, s31, 2")
    A("s_lshr_b32 s3, s29, 3")
    A("s_add_u32 s31, s31, s3")
    A("s_mul_i32 s3, s31, 288")
    srd(12, SW1, "s3", 575 * 9216 + 288)
    srd(20, SB1, "s3", 288)
    HN1, GB = HT + 5, 60
    A(f"v_mul_u32_u24 v{HW1}, 9216, v{HRW}")
    A(f"v_lshl_add_u32 v{HN1}, v{HC}, 1, v{HW1}")
    A(f"v_lshl_add_u32 v{HW1}, v{HC}, 4, v{HW1}")
    A(f"v_lshl_add_u32 v{HT+6}, v{HC}, 3, v{HG}")
    A(f"v_lshlrev_b32 v{HT+6}, 1, v{HT+6}")
    A(f"v_lshlrev_b32 v{HT+7}, 1, v{HC}")
    A("s_waitcnt vmcnt(0)")
    A(f"buffer_load_ushort v{GB}, v{HT+6}, s[20:23], 0 offen")
    A(f"buffer_load_ushort v{GB+1}, v{HT+6}, s[20:23], 0 offen offset:8")
    A(f"buffer_load_ushort v{GB+2}, v{HT+7}, s[20:23], 0 offen offset:256")
    RA, PA, PB = 52, 56, 58
    for r in range(4):
        A(f"v_mov_b32 v{VACC+r}, 0")
        A(f"v_mov_b32 v{RA+r}, 0")
    A("s_mov_b32 s32, s30" if rot else "s_mov_b32 s32, 0")
    A("s_mov_b32 s77, 9")
    Lb("L_h_h")
    read_x()
    A(f"s_mul_i32 s34, s32, {16*9216}")
    bump("s32")
    for half in range(2):
        for j in (2 * half, 2 * half + 1):
            A(f"buffer_load_dwordx4 {vr(HF+4*j,4)}, v{HW1}, s[12:15], s34 offen {wpol}")
            A(f"buffer_load_ushort v{HF+16+j}, v{HN1}, s[12:15], s34 offen offset:256 {wpol}")
            A("s_add_u32 s34, s34, 9216")
        A("s_waitcnt lgkmcnt(0)")
        diag(2 * half)
        diag(2 * half + 1)
        A(f"v_perm_b32 v{PA+half}, v{XV+2*half+1}, v{XV+2*half}, s94")
        A("s_waitcnt vmcnt(0)")
        A(f"v_lshl_or_b32 v{PB+half}, v{HF+17+2*half}, 16, v{HF+16+2*half}")
        pv_mfma(2 * half, HF + 8 * half)
        pv_mfma(2 * half + 1, HF + 8 * half + 4)
    A(f"v_mfma_f32_16x16x16_bf16 {vr(RA,4)}, {vr(PA,2)}, {vr(PB,2)}, {vr(RA,4)}")
    A("s_sub_u32 s77, s77, 1")
    A("s_cmp_lg_u32 s77, 0")
    A("s_cbranch_scc1 L_h_h")
    A(f"v_lshl_add_u32 v{HT+4}, v0, 3, v{HLB}")
    A("s_lshl_b32 s3, s28, 6")
    A(f"v_lshl_add_u32 v{HT+6}, v{HC}, 2, v{HLB}")
    A(f"v_add_u32 v{HT+6}, s3, v{HT+6}")
    A("s_nop 1")
    A(f"ds_write_b64 v{HT+4}, {vr(VACC,2)} offset:{O_OP}")
    A(f"ds_write_b32 v{HT+6}, v{RA} offset:{O_HS}")
    A("s_waitcnt lgkmcnt(0)")
    lds_arrive(HLB, O_CNT + C_H, 3)
    stamp(4)
    if clat == "h":
        mark_stores()
        mark_report()
    A(f"v_mul_u32_u24 v{HVB}, 1152, v{HG}")
    A(f"v_lshl_add_u32 v{HVS}, v{HC}, 1, v{HVB}")
    A("s_lshl_b32 s3, s28, 5")
    A("s_add_u32 s3, s3, 1024")
    A(f"v_add_u32 v{HVS}, s3, v{HVS}")
    A("s_lshl_b32 s3, s28, 8")
    A(f"v_lshl_add_u32 v{HVB}, v{HC}, 4, v{HVB}")
    A(f"v_add_u32 v{HVB}, s3, v{HVB}")
    A(f"v_lshlrev_b32 v{HPM}, 5, v{HC}")
    A(f"v_lshl_add_u32 v{HPM}, v{HG}, 4, v{HPM}")
    A("s_lshl_b32 s3, s28, 9")
    A(f"v_add_u32 v{HPM}, s3, v{HPM}")
    A(f"v_mov_b32 v{HT}, {OOB}")
    A(f"v_cmp_gt_u32 vcc, 2, v{HG}")
    A("s_lshl_b32 s3, s28, 6")
    A("s_add_u32 s3, s3, 2048")
    A(f"v_cndmask_b32 v{HPM}, v{HT}, v{HPM}, vcc")
    A(f"v_lshl_add_u32 v{HPR}, v{HC}, 2, s3")
    A(f"v_cmp_eq_u32 vcc, 0, v{HG}")
    A(f"v_lshl_add_u32 v{HOP}, v2, 3, v{HLB}")
    A("s_nop 0")
    A(f"v_cndmask_b32 v{HPR}, v{HT}, v{HPR}, vcc")
    A("s_mov_b32 s96, 0xffff0000")
    A("s_mov_b32 s97, 0xffff0000")

    A(f"s_mul_i32 s3, s31, {144*1152}")
    srd(20, SW2, "s3", 144 * 1152)
    HT = 104
    PS = 110
    for e in range(4):
        A(f"s_mov_b32 s33, {(128+4*e)*1152}")
        A(f"buffer_load_dwordx4 {vr(ST+4*e,4)}, v{HVB}, s[20:23], s33 offen {spol}")
        A(f"buffer_load_ushort v{ST+16+e}, v{HVS}, s[20:23], s33 offen {spol}")
    A("s_waitcnt vmcnt(0)")
    for r in range(2):
        for t in range(8):
            lo = ST + 8 * r + (t >> 1)
            A(f"v_perm_b32 v{HF2+2*t+r}, v{lo+4}, v{lo}, s{94+(t&1)}")
        A(f"v_lshl_or_b32 v{HF2+16+r}, v{ST+17+2*r}, 16, v{ST+16+2*r}")
    A("s_call_b64 s[62:63], L_sub_load")
    stamp(7)
    lds_spin("L_h_hwait", HLB, O_CNT + C_H, HT, 4)
    GL = 16
    A(f"v_lshl_add_u32 v{HT}, v{HC}, 2, v{HLB}")
    for k in range(4):
        A(f"ds_read_b64 {vr(GL+4*k,2)}, v{HOP} offset:{O_OP+512*(4+k)}")
        A(f"ds_read_b32 v{GL+4*k+2}, v{HT} offset:{O_HS+64*k}")
    A(f"v_and_b32 v{HT}, 3, v{HC}")
    A(f"v_lshrrev_b32 v{HT+1}, 2, v{HC}")
    A(f"v_lshl_add_u32 v{HT}, v{HT}, 2, v{HT+1}")
    A(f"v_lshl_add_u32 v{HT}, v{HT}, 1, v{HLB}")
    A("s_waitcnt lgkmcnt(0)")
    c1 = -2.0 * LOG2E * 0.7978845608028654
    for r in range(3):
        A(f"v_add_f32 v{GL+r}, v{GL+r}, v{GL+4+r}")
        A(f"v_add_f32 v{GL+8+r}, v{GL+8+r}, v{GL+12+r}")
        A(f"v_add_f32 v{GL+r}, v{GL+r}, v{GL+8+r}")
        bfround(GL + r, GL + r)
        A(f"v_lshlrev_b32 v{GB+r}, 16, v{GB+r}")
        A(f"v_add_f32 v{GL+r}, v{GL+r}, v{GB+r}")
        bfround(GL + r, GL + r)
        A(f"v_mul_f32 v{GB+r}, v{GL+r}, v{GL+r}")
        A(f"v_mov_b32 v{GL+3}, {f32(c1)}")
        A(f"v_fmac_f32 v{GL+3}, {f32(c1*0.044715)}, v{GB+r}")
        A(f"v_mul_f32 v{GB+r}, v{GL+3}, v{GL+r}")
        A(f"v_exp_f32 v{GB+r}, v{GB+r}")
        A("s_nop 0")
        A(f"v_add_f32 v{GB+r}, 1.0, v{GB+r}")
        A(f"v_rcp_f32 v{GB+r}, v{GB+r}")
        A("s_nop 0")
        A(f"v_mul_f32 v{GL+r}, v{GL+r}, v{GB+r}")
        bfround(PS + r if r < 2 else GL + r, GL + r)
    A(f"ds_write_b16_d16_hi v{HT}, v{GL+2} offset:{O_HR}")
    A("s_waitcnt lgkmcnt(0)")
    A(f"v_lshl_add_u32 v{HT}, v{HG}, 3, v{HLB}")
    A(f"ds_read_b64 {vr(HT+2,2)}, v{HT} offset:{O_HR}")
    A("s_lshl_b32 s3, s29, 3")
    A("s_add_u32 s3, s3, s30")
    A(f"s_mul_i32 s3, s3, {SLOT2}")
    srd(24, SWS, "s3", 0)
    A("s_waitcnt lgkmcnt(0)")
    for t in range(9):
        A(f"v_mfma_f32_16x16x16_bf16 {vr(HD+4*t,4)}, {vr(HT+2,2)}, {vr(HF2+2*t,2)}, 0")
    A("s_call_b64 s[62:63], L_sub_gemv")
    OR = HF2
    for r in range(4):
        A(f"v_mov_b32 v{GH+r}, v{OR+4+r}")
    A(f"v_mov_b32 v{GH+4}, v{HD+32}")
    A(f"s_mov_b32 s26, {SLOT2}")
    lds_arrive(HLB, O_CNT + C_SM, 3)
    stamp(8)
    A(f"s_mul_i32 s3, s29, {128*1152}")
    srd(20, SWO, "s3", 128 * 1152)
    A("s_call_b64 s[62:63], L_sub_load")
    stamp(9)

    A("s_cmp_lg_u32 s28, 3")
    A("s_cbranch_scc1 L_h_pvpre")
    A(f"v_and_b32 v{HT+1}, {ncl-1}, v2")
    A(f"v_lshlrev_b32 v{HT+1}, {3 if ncl == 32 else 2}, v{HT+1}")
    A(f"global_load_dword v{HT}, v{HT+1}, s[{SDBG}:{SDBG+1}]")
    Lb("L_h_bpoll")
    A("s_waitcnt vmcnt(0)")
    A(f"v_cmp_ne_u32 vcc, 1, v{HT}")
    A("s_cbranch_vccz L_h_bpoll_ok")
    A("s_sleep 32")
    A(f"global_load_dword v{HT}, v{HT+1}, s[{SDBG}:{SDBG+1}] sc1")
    A("s_sub_u32 s69, s69, 16")
    A("s_cbranch_scc0 L_h_bpoll")
    A("s_mov_b32 s69, 0")
    A("s_waitcnt vmcnt(0)")
    Lb("L_h_bpoll_ok")
    A("s_cmp_ge_u32 s29, 18")
    A("s_cbranch_scc1 L_h_pvpre")
    final_srds(SOUT, False)
    A("s_lshl_b32 s33, s29, 5")
    A(f"v_lshrrev_b32 v{HT}, 3, v2")
    A(f"v_mul_u32_u24 v{HT}, {8*SLOT2}, v{HT}")
    A(f"v_and_b32 v{HT+1}, 7, v2")
    A(f"v_lshl_add_u32 v{HT+1}, v{HT+1}, 2, s33")
    A(f"v_lshl_add_u32 v{GS}, v{HT+1}, 2, v{HT}")
    A(f"v_bfe_u32 v{HT+2}, v2, 4, 1")
    A(f"v_lshrrev_b32 v{HT+3}, 5, v2")
    A(f"v_lshl_add_u32 v{HT+2}, v{HT+2}, 1, v{HT+3}")
    A(f"v_add_lshl_u32 v{HOA}, v{HT+2}, v{HT+1}, 1")
    srd(20, SB2, None, 1152)
    A(f"buffer_load_ushort v{HXV}, v{HOA}, s[8:11], s68 offen")
    A(f"buffer_load_ushort v{HB2}, v{HOA}, s[20:23], 0 offen")
    A("s_waitcnt vmcnt(0)")
    A(f"v_lshlrev_b32 v{HXV}, 16, v{HXV}")
    A(f"v_lshlrev_b32 v{HB2}, 16, v{HB2}")
    A(f"v_mov_b32 v{HT}, {OOB}")
    A(f"v_and_b32 v{HT+1}, 8, v2")
    A(f"v_cmp_eq_u32 vcc, 0, v{HT+1}")
    A("s_nop 1")
    A(f"v_cndmask_b32 v{HOA}, v{HT}, v{HOA}, vcc")
    A(f"v_lshl_add_u32 v{HT}, v2, 4, v{HLB}")
    A(f"ds_write_b128 v{HT}, {vr(HB2,4)} offset:{O_CX}")
    A("s_call_b64 s[62:63], L_sub_final")
    if warm2:
        for r in range(32, 64):
            A(f"v_mov_b32 v{r}, -1")
        A("s_call_b64 s[62:63], L_f_g_again")
    A("s_waitcnt vmcnt(0)")

    Lb("L_h_pvpre")
    PT = 28
    pv_masks(VM, HC, PT)
    for r in range(4):
        A(f"v_mov_b32 v{VACC+r}, 0")
    stamp(10)
    lds_spin("L_h_smwait", HLB, O_CNT + C_SM, PT, 8, sleep=4)
    A("s_lshl_b32 s3, s28, 3")
    A(f"v_add_u32 v{PT}, s3, v{HLB}")
    A(f"ds_read_b32 v{PT+1}, v{PT} offset:{O_ST}")
    A("s_lshl_b32 s3, s28, 9")
    A(f"v_lshl_add_u32 v{PT}, v2, 2, v{HLB}")
    A(f"v_add_u32 v{PT}, s3, v{PT}")
    A(f"ds_read_b32 v{VPC}, v{PT} offset:{O_E}")
    A(f"ds_read_b32 v{VPC+1}, v{PT} offset:{O_E+256}")
    softmax_factor(HLB, RING, PT, PT + 1)
    for u in range(2):
        A(f"v_mul_f32 v{VPC+u}, v{VPC+u}, v{PT}")
        A(f"v_cvt_pk_bf16_f32 v{VPC+u}, v{VPC+u}, v{VPC+u}")
    A("s_lshl_b32 s3, s28, 15")
    A(f"v_lshl_add_u32 v{PT}, v2, 4, s3")
    A("s_mov_b32 s34, 2")
    Lb("L_h_pv")
    for i in range(16):
        if i == 8:
            A("s_waitcnt lgkmcnt(0)")
        A(f"ds_read_b128 {vr(RING+4*i,4)}, v{PT} offset:{i*1024}")
    A("s_waitcnt lgkmcnt(0)")
    A("s_call_b64 s[62:63], L_sub_pv")
    A(f"v_mov_b32 v{VPC}, v{VPC+1}")
    A(f"v_add_u32 v{PT}, 16384, v{PT}")
    A("s_sub_u32 s34, s34, 1")
    A("s_cmp_lg_u32 s34, 0")
    A("s_cbranch_scc1 L_h_pv")
    A(f"v_lshl_add_u32 v{PT}, v0, 3, v{HLB}")
    A("s_nop 1")
    A(f"ds_write_b64 v{PT}, {vr(VACC,2)} offset:{O_OP}")
    for r in range(5):
        A(f"v_mov_b32 v{GT+r}, v{GH+r}")
    A("s_waitcnt lgkmcnt(0)")
    lds_arrive(HLB, O_CNT + C_PV, 3)
    for r in range(36):
        A(f"v_mov_b32 v{HD+r}, 0")
    lds_spin("L_h_pvwait", HLB, O_CNT + C_PV, HT, 4)
    for k in range(4):
        A(f"ds_read_b64 {vr(OR+2*k,2)}, v{HOP} offset:{O_OP+512*(4+k)}")
    A("s_waitcnt lgkmcnt(0)")
    for r in range(2):
        A(f"v_add_f32 v{OR+r}, v{OR+r}, v{OR+2+r}")
        A(f"v_add_f32 v{OR+4+r}, v{OR+4+r}, v{OR+6+r}")
        A(f"v_add_f32 v{PS+r}, v{OR+r}, v{OR+4+r}")
    stamp(11)
    A("s_setprio 2")
    A("s_barrier")
    stamp(12)
    A("s_call_b64 s[62:63], L_sub_gemv")
    stamp(13)
    if b4 == 2:
        A("s_waitcnt vmcnt(0)")
    if b4:
        A("s_barrier")

    Lb("L_fin")
    if fixdur:
        Lb("L_fix")
        A("s_memrealtime s[76:77]")
        A("s_waitcnt lgkmcnt(0)")
        A("s_sub_u32 s76, s76, s74")
        A(f"s_cmp_lt_u32 s76, {fixdur*100}")
        A("s_cbranch_scc1 L_fix")
    if stamps:
        A("s_waitcnt vmcnt(0)")
        stamp(15)
        A(f"v_writelane_b32 v{VST}, s74, 0")
        A("s_getreg_b32 s70, hwreg(HW_REG_XCC_ID)")
        A(f"v_writelane_b32 v{VST}, s70, 16")
        A("s_getreg_b32 s70, hwreg(HW_REG_HW_ID)")
        A(f"v_writelane_b32 v{VST}, s70, 63")
        A(f"s_add_u32 s72, s72, {WS_STAMP}")
        A("s_addc_u32 s73, s73, 0")
        A("s_lshl_b32 s3, s2, 11")
        A("v_lshlrev_b32 v0, 2, v0")
        A("v_add_u32 v0, s3, v0")
        A(f"global_store_dword v0, v{VST}, s[72:73]")
    Lb("L_end")
    A("s_endpgm")

    Lb("L_sub_load")
    if noslab:
        A("s_setpc_b64 s[62:63]")

    def issue_pair(n):
        sl = ST + 10 * (n % NSL)
        A(f"s_mov_b32 s33, {8*n*1152}")
        A(f"s_mov_b32 s34, {(8*n+4)*1152}")
        A(f"buffer_load_dwordx4 {vr(sl,4)}, v{HVB}, s[20:23], s33 offen {spol}")
        A(f"buffer_load_dwordx4 {vr(sl+4,4)}, v{HVB}, s[20:23], s34 offen {spol}")
        A(f"buffer_load_ushort v{sl+8}, v{HVS}, s[20:23], s33 offen {spol}")
        A(f"buffer_load_ushort v{sl+9}, v{HVS}, s[20:23], s34 offen {spol}")

    for n in range(NSL):
        issue_pair(n)
    for n in range(16):
        sg, r = n >> 2, n & 3
        sl = ST + 10 * (n % NSL)
        A(f"s_waitcnt vmcnt({4 * (min(n + NSL, 16) - n - 1)})")
        for t in range(8):
            A(f"v_perm_b32 v{HF+36*sg+4*t+r}, v{sl+4+(t>>1)}, v{sl+(t>>1)}, s{94+(t&1)}")
        A(f"v_lshl_or_b32 v{HF+36*sg+32+r}, v{sl+9}, 16, v{sl+8}")
        if n + NSL < 16:
            if hs:
                A(f"s_sleep {hs}")
            issue_pair(n + NSL)
    A("s_setpc_b64 s[62:63]")

    Lb("L_sub_gemv")
    for k in range(4):
        A(f"ds_read_b64 {vr(OR+2*k,2)}, v{HOP} offset:{O_OP+512*k}")
    if not nog:
        A(f"buffer_store_dwordx4 {vr(GT,4)}, v{HPM}, s[24:27], 0 offen {ypol}")
        A(f"buffer_store_dword v{GT+4}, v{HPR}, s[24:27], 0 offen {ypol}")
    for k in range(4):
        A(f"s_waitcnt lgkmcnt({3-k})")
        src = PS if k == 0 else OR + 2 * k
        A(f"v_add_f32 v{OR}, v{OR}, v{src}")
        A(f"v_add_f32 v{OR+1}, v{OR+1}, v{src+1}")
    A(f"v_cvt_pk_bf16_f32 v{OR}, v{OR}, v{OR+1}")
    A("s_nop 1")
    bc = [f"v_mov_b32_dpp v{HA+n}, v{OR} row_newbcast:{n} {DPP_ALL}" for n in range(16)]
    for n in range(6):
        A(bc.pop(0))
    for sg in range(4):
        order = range(9) if sg < 3 else (8, 0, 4, 1, 5, 2, 6, 3, 7)
        for t in order:
            A(f"v_mfma_f32_16x16x32_bf16 {vr(HD+4*t,4)}, {vr(HA+4*sg,4)}, {vr(HF+36*sg+4*t,4)}, {vr(HD+4*t,4)}")
            if bc:
                A(bc.pop(0))
    A(f"buffer_store_dword v{HD+32}, v{HPR}, s[24:27], 0 offen offset:{SLOT} {ypol}")
    A("s_nop 3")
    for r in range(4):
        A(f"v_cndmask_b32 v{OR+4+r}, v{HD+4*r}, v{HD+16+4*r}, s[96:97]")
    A(f"buffer_store_dwordx4 {vr(OR+4,4)}, v{HPM}, s[24:27], 0 offen offset:{SLOT} {ypol}")
    A("s_setpc_b64 s[62:63]")

    GA, YA, SA = 32, 48, HA
    Lb("L_sub_final")

    def part_load(base, off, k):
        so = "0" if k == 0 else f"s{64+k}"
        A(f"buffer_load_dwordx4 {vr(base+4*k,4)}, v{GS}, s[12:15], {so} offen offset:{off} {lpol}")

    def reload(base, off, tag, done):
        for k in range(4):
            A(f"v_max3_u32 v{SA+8+k}, v{base+4*k}, v{base+4*k+1}, v{base+4*k+2}")
        for k in range(4):
            A(f"v_max_u32 v{SA+8+k}, v{SA+8+k}, v{base+4*k+3}")
        for k in range(4):
            A(f"v_cmp_eq_u32 s[{80+2*k}:{81+2*k}], -1, v{SA+8+k}")
        A("s_or_b64 s[88:89], s[80:81], s[82:83]")
        A("s_or_b64 s[90:91], s[84:85], s[86:87]")
        A("s_or_b64 s[88:89], s[88:89], s[90:91]")
        A(f"s_cbranch_scc0 {done}")
        for k in range(4):
            A(f"s_mov_b64 exec, s[{80+2*k}:{81+2*k}]")
            A(f"s_cbranch_execz L_f{tag}{k}")
            part_load(base, off, k)
            Lb(f"L_f{tag}{k}")
        A("s_mov_b64 exec, -1")

    def total(base):
        for r in (0, 2):
            A(f"v_pk_add_f32 {vr(SA+r,2)}, {vr(base+r,2)}, {vr(base+4+r,2)}")
            A(f"v_pk_add_f32 {vr(SA+4+r,2)}, {vr(base+8+r,2)}, {vr(base+12+r,2)}")
        for r in (0, 2):
            A(f"v_pk_add_f32 {vr(SA+r,2)}, {vr(SA+r,2)}, {vr(SA+4+r,2)}")
        A("s_nop 0")
        A(f"v_permlane32_swap_b32 v{SA}, v{SA+1}")
        A(f"v_permlane32_swap_b32 v{SA+2}, v{SA+3}")
        A(f"v_add_f32 v{SA}, v{SA}, v{SA+1}")
        A(f"v_add_f32 v{SA+2}, v{SA+2}, v{SA+3}")
        A("s_nop 1")
        A(f"v_permlane16_swap_b32 v{SA}, v{SA+2}")
        A(f"v_add_f32 v{SA}, v{SA}, v{SA+2}")
        A("s_nop 1")
        A(f"v_add_f32_dpp v{SA}, v{SA}, v{SA} row_ror:8 {DPP_ALL}")
        A(f"v_cmp_u_f32 vcc, v{SA}, v{SA}")
        bfround(SA, SA)

    for base, off in ((GA, 0), (YA, SLOT)):
        for k in range(4):
            part_load(base, off, k)
    A("s_waitcnt vmcnt(4)")
    Lb("L_f_g")
    total(GA)
    A("s_cbranch_vccnz L_f_g_again")
    Lb("L_f_gate")
    stamp(11)
    A(f"v_add_f32 v{HT+1}, v{SA}, v{HB2}")
    bfround(HT + 1, HT + 1)
    A(f"v_mul_f32 v{HT}, {f32(-LOG2E)}, v{HT+1}")
    A(f"v_exp_f32 v{HT}, v{HT}")
    A("s_nop 0")
    A(f"v_add_f32 v{HT}, 1.0, v{HT}")
    A(f"v_rcp_f32 v{HT}, v{HT}")
    A("s_nop 0")
    A(f"v_mul_f32 v{HT+1}, v{HT+1}, v{HT}")
    bfround(HT + 1, HT + 1)
    Lb("L_f_y")
    A("s_waitcnt vmcnt(0)")
    total(YA)
    A("s_cbranch_vccnz L_f_y_again")
    Lb("L_f_out")
    stamp(12)
    A(f"v_mul_f32 v{HT}, v{SA}, v{HT+1}")
    bfround(HT, HT)
    A(f"v_add_f32 v{HT}, v{HT}, v{HXV}")
    A(f"v_cvt_pk_bf16_f32 v{HT}, v{HT}, v{HT}")
    A(f"buffer_store_short v{HT}, v{HOA}, s[16:19], s68 offen {outpol}")
    A("s_setpc_b64 s[62:63]")
    Lb("L_f_y_again")
    reload(YA, SLOT, "y", "L_f_out")
    A("s_sub_u32 s69, s69, 4")
    A("s_cbranch_scc0 L_f_y")
    A("s_mov_b32 s69, 0")
    A("s_setpc_b64 s[62:63]")
    Lb("L_f_g_again")
    reload(GA, 0, "g", "L_f_gate")
    A("s_waitcnt vmcnt(0)")
    A("s_sub_u32 s69, s69, 4")
    A("s_cbranch_scc0 L_f_g")
    A("s_mov_b32 s69, 0")
    A("s_setpc_b64 s[62:63]")

    o[:] = o[:head_end] + o[helper_start:] + o[head_end:helper_start]
    o.append('.section .rodata,"a"')
    o.append(".p2align 6")
    o.append(f".amdhsa_kernel {NAME}_kernel")
    o.append("  .amdhsa_next_free_vgpr 256")
    o.append("  .amdhsa_next_free_sgpr 100")
    o.append("  .amdhsa_accum_offset 256")
    o.append("  .amdhsa_group_segment_fixed_size 0")
    o.append("  .amdhsa_kernarg_size 104")
    o.append("  .amdhsa_user_sgpr_count 2")
    o.append("  .amdhsa_user_sgpr_kernarg_segment_ptr 1")
    o.append("  .amdhsa_system_sgpr_workgroup_id_x 1")
    o.append("  .amdhsa_float_denorm_mode_32 3")
    o.append(".end_amdhsa_kernel")
    return "\n".join(o) + "\n"


if __name__ == "__main__":
    cfg = json.loads(sys.argv[2]) if len(sys.argv) > 2 else {}
    open(sys.argv[1], "w").write(gen(**cfg))
```

```python
import struct, sys, json

NAME = "recurrent_scan__mha_block_cached__dense_activation_gelu__decode"
HEADER = open("header.txt").read()

WS_G = 0x000000
SLOT = 2304
SLOT2 = 2 * SLOT
WS_S = 0x200000
WS_STAMP = 0x20000000

L_V = 0x00000
L_B = 0x20000
O_OP = 0x0000
O_E = 0x1000
O_ST = 0x1800
O_CNT = 0x1840
O_Q = 0x1880
O_HR = 0x1980
O_XN = 0x19C0
O_CX = 0x2300
O_HS = 0x2700
LDS_BYTES = L_B + 0x2800
C_CL, C_S1, C_Q, C_H, C_SM, C_PV = 0, 4, 8, 12, 16, 20

LOG2E = 1.4426950408889634
OOB = "0x10000000"


def f32(x):
    return "0x%08x" % struct.unpack("<I", struct.pack("<f", x))[0]


def vr(a, n=1):
    return f"v{a}" if n == 1 else f"v[{a}:{a+n-1}]"


DPP_ALL = "row_mask:0xf bank_mask:0xf"


def cl(i):
    return ((i & 1) << 3) | (((i >> 1) & 1) << 2) | (i >> 2)


def gen(D=5, D0=5.5, DK=0, DV=0, DT=0, stamps=False, hprio=1, kvpol="nt", wpol="", spol="",
        NSL=1, xown=False, pf=2, xs0=0, xs1=0, fixdur=0,
        ctl=True, DL=(4, 5, 6, 8), TH=(-25, 20, 60), LOOK=1, SSTR=40*128,
        fs=0, fslow=0, fthr=16, outpol="sc0 sc1", fwait=True, ypol="sc1", lpol="sc1", wb=(16, 13), tb=(14, 19), gb=(15, 17, 18, 12), mid=True, ramp=(0, 0), nop1=False, noclear=False, fakew=False, nonarrow=False, f0=0, nog=False, fa=(175, 5, 150), b4=1, warm2=True, DLK=(4, 5.5, 7, 7), noslab=False, hs=0, NQ=4, ring3=True, rot=True, ncl=64, clat="start", srot=4, slew=6, first=0, cpf=1, prior=868, wstart=5, gx=(), st0=False, smf=True, pf1=False, order="vwrp", N0=4):
    o = []
    cur = [o]
    A = lambda s: cur[0].append("  " + s)
    Lb = lambda s: cur[0].append(s + ":")

    def capture(fn):
        tmp = []
        cur[0] = tmp
        fn()
        cur[0] = o
        return tmp

    VST = 1
    DLV = DL
    assert sorted(list(wb) + list(tb) + list(gb)) == list(range(12, 20))
    dep = lambda v, pos: sum(((v >> k) & 1) << p for k, p in enumerate(pos))
    TOFF = [dep(k, tb) for k in range(4)]
    D0 = D0 or D; DK = DK or D; DV = DV or D; DT = DT or DV
    pace = lambda d, i: f"s_waitcnt vmcnt({int(d + (0.5 if i & 1 else 0)) - 1})"

    def stamp(i):
        if stamps and (stamps != "lite" or i in (0, 15)):
            A("s_memrealtime s[70:71]")
            A("s_waitcnt lgkmcnt(0)")
            A(f"v_writelane_b32 v{VST}, s70, {i}")

    def bfround(dst, src):
        A(f"v_cvt_pk_bf16_f32 v{dst}, v{src}, v{src}")
        A(f"v_and_b32 v{dst}, 0xffff0000, v{dst}")

    def allreduce_row(op, v):
        for sh in (8, 4, 2, 1):
            A("s_nop 1")
            A(f"{op}_dpp v{v}, v{v}, v{v} row_ror:{sh} {DPP_ALL}")

    def swap_reduce(op, v, t, which):
        A(f"v_mov_b32 v{t}, v{v}")
        A("s_nop 1")
        A(f"v_permlane{which}_swap_b32 v{t}, v{v}")
        A("s_nop 1")
        A(f"{op} v{v}, v{v}, v{t}")

    def lds_spin(label, vaddr, off, vtmp, target, sleep=1):
        Lb(label)
        A(f"ds_read_b32 v{vtmp}, v{vaddr} offset:{off}")
        A("s_waitcnt lgkmcnt(0)")
        A(f"v_readfirstlane_b32 s3, v{vtmp}")
        A(f"s_cmp_ge_u32 s3, {target}")
        A(f"s_cbranch_scc1 {label}_ok")
        if sleep:
            A(f"s_sleep {sleep}")
        A("s_sub_u32 s69, s69, 1")
        A(f"s_cbranch_scc0 {label}")
        A("s_mov_b32 s69, 0")
        Lb(label + "_ok")

    def lds_arrive(vaddr, off, vone):
        A("s_mov_b64 exec, 1")
        A(f"ds_add_u32 v{vaddr}, v{vone} offset:{off}")
        A("s_mov_b64 exec, -1")

    def pv_masks(vm, vc, t0):
        A(f"v_and_b32 v{t0}, 4, v{vc}")
        A(f"v_lshlrev_b32 v{t0}, 2, v{t0}")
        A(f"v_mov_b32 v{t0+1}, 0xffff")
        A(f"v_lshlrev_b32 v{t0}, v{t0}, v{t0+1}")
        A(f"v_and_b32 v{t0+1}, 3, v{vc}")
        A(f"v_lshrrev_b32 v{vm}, 3, v{vc}")
        A(f"v_lshl_add_u32 v{t0+1}, v{t0+1}, 1, v{vm}")
        for r in range(4):
            A(f"v_cmp_eq_u32 vcc, {r}, v{t0+1}")
            A("s_nop 1")
            A(f"v_cndmask_b32 v{vm+r}, 0, v{t0}, vcc")

    def softmax_factor(vbase, vst, vf, vown):
        A(f"ds_read_b128 {vr(vst,4)}, v{vbase} offset:{O_ST}")
        A(f"ds_read_b128 {vr(vst+4,4)}, v{vbase} offset:{O_ST+16}")
        A("s_waitcnt lgkmcnt(0)")
        m, t = vst + 8, vst + 9
        A(f"v_max3_f32 v{m}, v{vst}, v{vst+2}, v{vst+4}")
        A(f"v_max_f32 v{m}, v{m}, v{vst+6}")
        for k in range(4):
            A(f"v_sub_f32 v{vst+2*k}, v{vst+2*k}, v{m}")
        A(f"v_sub_f32 v{t}, v{vown}, v{m}")
        for k in range(4):
            A(f"v_mul_f32 v{vst+2*k}, {f32(LOG2E)}, v{vst+2*k}")
        A(f"v_mul_f32 v{t}, {f32(LOG2E)}, v{t}")
        for k in range(4):
            A(f"v_exp_f32 v{vst+2*k}, v{vst+2*k}")
        A(f"v_exp_f32 v{t}, v{t}")
        A(f"v_mul_f32 v{m}, v{vst}, v{vst+1}")
        for k in range(1, 4):
            A(f"v_fmac_f32 v{m}, v{vst+2*k}, v{vst+2*k+1}")
        A(f"v_rcp_f32 v{m}, v{m}")
        A("s_nop 0")
        A(f"v_mul_f32 v{vf}, v{t}, v{m}")

    o.append(HEADER.rstrip())
    o.append(f"; @launch grid=(256,1,1) block=(512,1,1) lds={LDS_BYTES}")
    o.append('.amdgcn_target "amdgcn-amd-amdhsa--gfx950"')
    o.append(".text")
    o.append(f".globl {NAME}_kernel")
    o.append(".p2align 8")
    o.append(f".type {NAME}_kernel,@function")
    Lb(f"{NAME}_kernel")
    A("s_cmp_ge_u32 s2, 256")
    A("s_cbranch_scc1 L_end")
    if fixdur or stamps or st0:
        A("s_memrealtime s[74:75]")
    SX, SK, SV, SWQ, SWO, SW1, SB1, SW2, SB2, SOUT, SDBG, SWS = 36, 38, 40, 42, 44, 48, 50, 52, 54, 56, 58, 60
    A("s_load_dwordx16 s[36:51], s[0:1], 0")
    A("s_load_dwordx8 s[52:59], s[0:1], 64")
    A("s_load_dwordx2 s[60:61], s[0:1], 96")
    A("v_lshrrev_b32 v1, 6, v0")
    A("v_and_b32 v2, 63, v0")
    A("v_readfirstlane_b32 s28, v1")
    A(f"v_mov_b32 v6, {L_B}")
    A("v_mov_b32 v8, 0")
    A("v_mov_b32 v9, 0")
    A("v_lshl_add_u32 v7, v0, 3, v6")
    A(f"ds_write_b64 v7, v[8:9] offset:{O_OP}")
    A("v_and_b32 v4, 15, v2")
    A("v_lshl_add_u32 v7, v4, 2, v6")
    A(f"ds_write_b32 v7, v8 offset:{O_CNT}")
    A("v_lshlrev_b32 v3, 4, v2")
    A("v_and_b32 v7, 1, v1")
    A(f"v_lshl_add_u32 v3, v7, {wb[0]}, v3")
    A("v_bfe_u32 v7, v1, 1, 1")
    A(f"v_lshl_add_u32 v3, v7, {wb[1]}, v3")
    for k, p in gx:
        assert p in gb
        A(f"s_bfe_u32 s3, s2, {k | (1 << 16)}")
        A(f"s_lshl_b32 s3, s3, {p}")
        A("v_xor_b32 v3, s3, v3")
    A("s_lshl_b32 s3, s2, 20")
    A("s_mov_b32 s18, 0x100000")
    A("s_mov_b32 s19, 0x20000")
    A("s_mov_b32 s69, 0x200000")
    A(f"s_mov_b32 s33, {TOFF[1]}")
    if stamps:
        A(f"v_mov_b32 v{VST}, 0")
    A("s_cmp_ge_u32 s28, 4")
    A("s_waitcnt lgkmcnt(0)")
    if stamps:
        A("s_mov_b64 s[72:73], s[60:61]")
    A("s_cbranch_scc1 L_helper")

    HB2, HXV, HOA, GS = 12, 13, 14, 15

    def srd(n, base, off_s, size):
        if off_s is None:
            A(f"s_mov_b32 s{n}, s{base}")
            A(f"s_mov_b32 s{n+1}, s{base+1}")
        else:
            A(f"s_add_u32 s{n}, s{base}, {off_s}")
            A(f"s_addc_u32 s{n+1}, s{base+1}, 0")
        A(f"s_mov_b32 s{n+2}, {size}")
        A(f"s_mov_b32 s{n+3}, 0x20000")

    def final_srds(out_ptr, live):
        A("s_lshr_b32 s68, s2, 5")
        A(f"s_mul_i32 s3, s68, {SLOT2}")
        srd(12, SWS, "s3", 249 * SLOT2 if live else 0)
        srd(16, out_ptr, None, 9216 if live else 0)
        for k in (1, 2, 3):
            A(f"s_mov_b32 s{64+k}, {64*k*SLOT2}")
        A("s_mul_i32 s68, s68, 1152")

    VQ, VP, VA0, VA1, VB, VC, VS, VMAX = 4, 8, 10, 11, 12, 13, 14, 15
    VE, VM, VAO, VACC = 16, 32, 36, 44
    RING, RING2, VT, VLB = 48, 112, 176, 188
    VPC, VN = VE + 2, VE + 1
    def ring_load(i, ring=RING):
        so = "0" if i < 4 else f"s{36+i//4}"
        A(f"buffer_load_dwordx4 {vr(ring+4*i,4)}, v3, s[16:19], {so} offen offset:{(i%4)*1024} {kvpol}")

    VB0 = 189

    def next_group():
        A("s_add_u32 s29, s29, 1")
        runs = []
        for k, p in enumerate(gb):
            if runs and p == runs[-1][1] + runs[-1][2]:
                runs[-1][2] += 1
            else:
                runs.append([k, p, 1])
        for n, (k, p, w) in enumerate(runs):
            d = "s35" if n == 0 else "s3"
            A(f"s_bfe_u32 {d}, s29, {k | (w << 16)}")
            A(f"s_lshl_b32 {d}, {d}, {p}")
            if n:
                A("s_or_b32 s35, s35, s3")
        A(f"v_xor_b32 v3, s35, v{VB0}")

    A(f"s_add_u32 s16, s{SK}, s3")
    A(f"s_addc_u32 s17, s{SK+1}, 0")
    for i in range(int(D0)):
        A(f"buffer_load_dwordx4 {vr(RING+4*i,4)}, v3, s[16:19], {'0' if i < 4 else 's33'} offen offset:{(i%4)*1024} {kvpol}")
    stamp(6)
    A("s_barrier")
    A("s_branch L_streamer")
    head_end = len(o)
    Lb("L_streamer")
    stamp(7)
    A(f"s_add_u32 s12, s{SV}, s3")
    A(f"s_addc_u32 s13, s{SV+1}, 0")
    A("s_mov_b32 s14, 0x100000")
    A("s_mov_b32 s15, 0x20000")
    for k in (1, 2, 3):
        A(f"s_mov_b32 s{36+k}, {TOFF[k]}")
    A(f"v_mov_b32 v{VLB}, {L_B}")
    A(f"v_mov_b32 v{VB0}, v3")
    A(f"s_mov_b64 s[6:7], s[{SOUT}:{SOUT+1}]")
    if pf:
        A("s_and_b32 s33, s2, 31")
        A("s_lshr_b32 s34, s2, 5")
        A(f"s_mul_i32 s3, s33, {128*1152}")
        A(f"s_mul_i32 s35, s34, {16*1152}")
        A("s_add_u32 s3, s3, s35")
        srd(8, SWO, "s3", 16 * 1152)
        A("s_and_b32 s3, s2, 7")
        A("s_lshl_b32 s3, s3, 2")
        A("s_lshr_b32 s33, s33, 3")
        A("s_add_u32 s3, s3, s33")
        A(f"s_mul_i32 s3, s3, {144*1152}")
        A(f"s_mul_i32 s35, s34, {18*1152}")
        A("s_add_u32 s3, s3, s35")
        srd(24, SW2, "s3", 18 * 1152)
    if pf1:
        A("s_and_b32 s3, s2, 7")
        A("s_mul_i32 s3, s3, 1152")
        A("s_lshr_b32 s33, s2, 3")
        A(f"s_mul_i32 s33, s33, {18*9216}")
        A("s_add_u32 s3, s3, s33")
        srd(64, SW1, "s3", 17 * 9216 + 1152)
    A("s_mov_b32 s29, 0")
    for k in (1, 2, 3):
        A(f"s_mov_b32 s{38+2*k}, 0x{(0x11111111 << k) & 0xffffffff:08x}")
        A(f"s_mov_b32 s{39+2*k}, 0x{(0x11111111 << k) & 0xffffffff:08x}")
    if ctl:
        A("s_lshr_b32 s3, s2, 5")
        A("s_and_b32 s54, s2, 31")
        if srot == 16:
            A("s_lshr_b32 s35, s54, 3")
            A("s_lshl_b32 s35, s35, 2")
            A("s_add_u32 s35, s35, s28")
            A("s_lshl_b32 s35, s35, 7")
            A("s_and_b32 s54, s54, 7")
        else:
            A("s_lshl_b32 s35, s28, 7")
        A("s_cmp_eq_u32 s54, s3")
        A("s_cselect_b32 s54, s35, -1")
        A(f"s_mul_i32 s3, s3, {SSTR}")
        A(f"s_add_u32 s3, s3, {WS_S}")
        A(f"s_add_u32 s20, s{SWS}, s3")
        A(f"s_addc_u32 s21, s{SWS+1}, 0")
        A(f"s_movk_i32 s22, {40*128}")
        A("s_mov_b32 s23, 0x20000")
        A(f"s_add_u32 s46, s{SWS}, {WS_S - LOOK*128}")
        A(f"s_addc_u32 s47, s{SWS+1}, 0")
        A("s_mov_b32 s48, 0")
    A(f"v_and_b32 v{VT+2}, 15, v2")
    A(f"v_lshl_add_u32 v{VT+3}, v{VT+2}, 4, v{VLB}")
    pv_masks(VM, VT + 2, VT)
    for r in range(4):
        A(f"v_mov_b32 v{VACC+r}, 0")
    for i in range(int(D0), 16):
        A(pace(D0, i))
        ring_load(i)
        if i in (int(D0), 2 * int(D0), 15):
            stamp({int(D0): 8, 2 * int(D0): 9, 15: 10}[i])
    RING3 = 190

    def pre_v():
        A(f"v_xor_b32 v{VT+4}, {dep(14, gb)}, v3")
        A("s_lshl_b32 s33, s28, 15")
        A("s_mov_b32 s35, 2")
        Lb("L_vdma")
        for i in range(16):
            if i % 4 == 0:
                A("s_mov_b32 m0, s33")
                A("s_add_u32 s33, s33, 4096")
            A(pace(D0, i))
            A(f"buffer_load_dwordx4 v{VT+4}, s[12:15], {'0' if i < 4 else 's%d' % (36+i//4)} offen offset:{(i%4)*1024} {kvpol} lds")
        A(f"v_xor_b32 v{VT+4}, {dep(1, gb)}, v{VT+4}")
        A("s_sub_u32 s35, s35, 1")
        A("s_cmp_lg_u32 s35, 0")
        A("s_cbranch_scc1 L_vdma")

    def pre_r():
        if ring3:
            A(f"v_xor_b32 v{VT+4}, {dep(13, gb)}, v3")
            for i in range(16):
                A(pace(D0, i))
                A(f"buffer_load_dwordx4 {vr(RING3+4*i,4)}, v{VT+4}, s[12:15], {'0' if i < 4 else 's%d' % (36+i//4)} offen offset:{(i%4)*1024} {kvpol}")

    def pre_p():
        if pf:
            A(f"v_lshlrev_b32 v{VT+4}, 4, v0")
            for n, (sr, cnt) in enumerate(((24, 6), (8, 5))):
                for k in range(cnt):
                    A(f"s_movk_i32 s3, {4096*k}")
                    A(pace(D0, k))
                    A(f"buffer_load_dwordx4 {vr(RING2+4*(6*n+k),4)}, v{VT+4}, s[{sr}:{sr+3}], s3 offen")

    def pre_w():
        if pf1:
            for k in range(6):
                A(f"v_add_u32 v{VT+4}, {256*k}, v0")
                A(f"v_mul_u32_u24 v{VT+5}, 58255, v{VT+4}")
                A(f"v_lshrrev_b32 v{VT+5}, 22, v{VT+5}")
                A(f"v_mul_u32_u24 v{VT+5}, {9216-1152}, v{VT+5}")
                A(f"v_lshl_add_u32 v{VT+4}, v{VT+4}, 4, v{VT+5}")
                A(pace(D0, k))
                A(f"buffer_load_dwordx4 {vr(RING2+44+4*(k%5),4)}, v{VT+4}, s[64:67], 0 offen")

    for ch in order:
        {"v": pre_v, "r": pre_r, "p": pre_p, "w": pre_w}[ch]()
    stamp(1)
    lds_spin("L_qwait", VLB, O_CNT + C_Q, VT, 1, sleep=0)
    A(f"ds_read_b128 {vr(VQ,4)}, v{VT+3} offset:{O_Q}")
    A("s_mov_b32 s34, 16")
    if ctl:
        A("s_memrealtime s[50:51]")
    stamp(2)
    A("s_waitcnt lgkmcnt(0)")
    if ctl:
        for r in (49, 52, 53, 56, 57):
            A(f"s_mov_b32 s{r}, s50")

    def loop_stamp(base):
        if stamps and stamps != "lite":
            A("s_memrealtime s[70:71]")
            A(f"s_sub_u32 m0, {base}, s34")
            A("s_waitcnt lgkmcnt(0)")
            A(f"v_writelane_b32 v{VST}, s70, m0")

    ckn = [0]

    def level(lag):
        return [f"s_add_u32 s93, {lag}, 1500", "s_cmp_lt_u32 s93, 3000", f"s_cselect_b32 {lag}, {lag}, {TH[0]}",
                f"s_cmp_ge_i32 {lag}, {TH[1]}", "s_cselect_b64 vcc, -1, 0", "s_cselect_b32 s93, s5, s4",
                f"s_cmp_ge_i32 {lag}, s93", "s_cselect_b32 s90, 1, 0"]

    def decide(last=False):
        if not ctl:
            return
        A("s_waitcnt lgkmcnt(0)")
        A("s_sub_u32 s55, s50, s49")
        for l in level("s55"):
            A(l)

    def atoms():
        if not ctl:
            return {}
        ckn[0] += 1
        n = ckn[0]
        at = {}
        at[0] = [f"s_and_b32 s93, s48, {(srot-1)*128}", "s_cmp_lg_u32 s54, s93", f"s_cbranch_scc1 L_ck{n}_nopub", f"v_mov_b32 v{VT+11}, s50", "s_mov_b64 exec, 1",
                 f"buffer_store_dword v{VT+11}, off, s[20:23], s48 sc1", "s_mov_b64 exec, -1", f"L_ck{n}_nopub:"]
        at[1] = ["s_add_u32 s88, s46, s48", "s_addc_u32 s89, s47, 0", f"s_cmp_lt_u32 s48, {LOOK*128}", f"s_cbranch_scc1 L_ck{n}_early"]
        at[1] += [f"s_load_dword s{80+j}, s[88:89], {j*SSTR}" for j in range(8)] + [f"L_ck{n}_early:"]
        if ramp[0]:
            at[3] = [f"s_add_u32 s4, s4, {ramp[1]}", f"s_min_i32 s4, s4, {TH[0]}"]
        if mid:
            at[6] = ["s_memrealtime s[98:99]", "s_lshr_b32 s93, s92, 3", "s_add_u32 s49, s49, s93"]
            at[7] = ["s_waitcnt lgkmcnt(0)", "s_sub_u32 s55, s98, s49"] + level("s55")
            at[8] = [f"s_sub_u32 s{80+j}, s50, s{80+j}" for j in range(8)] + ["s_max_u32 s91, s80, s81", "s_add_u32 s55, s80, s81"]
        else:
            at[7] = ["s_waitcnt lgkmcnt(0)"] + [f"s_sub_u32 s{80+j}, s50, s{80+j}" for j in range(4)]
            at[8] = [f"s_sub_u32 s{80+j}, s50, s{80+j}" for j in range(4, 8)] + ["s_max_u32 s91, s80, s81", "s_add_u32 s55, s80, s81"]
        at[9] = sum(([f"s_max_u32 s91, s91, s{80+j}", f"s_add_u32 s55, s55, s{80+j}"] for j in range(2, 5)), [])
        at[10] = sum(([f"s_max_u32 s91, s91, s{80+j}", f"s_add_u32 s55, s55, s{80+j}"] for j in range(5, 8)), [])
        if prior:
            at[11] = ["s_lshr_b32 s55, s55, 3", "s_sub_u32 s55, s50, s55", "s_lshr_b32 s49, s92, 2", "s_add_u32 s49, s49, s52",
                      "s_cmp_lt_u32 s91, 2500", "s_cselect_b32 s55, s55, s49"]
            at[12] = ["s_sub_u32 s91, s55, s57", f"s_add_u32 s49, s92, {slew}", "s_min_u32 s91, s91, s49",
                      f"s_sub_u32 s49, s92, {slew}", "s_max_u32 s91, s91, s49",
                      f"s_cmp_ge_u32 s48, {(LOOK+wstart)*128}", "s_cselect_b32 s92, s91, s92", f"s_mul_i32 s91, s92, {LOOK+1}"]
        else:
            at[11] = ["s_lshr_b32 s55, s55, 3", "s_sub_u32 s55, s50, s55", "s_lshl_b32 s49, s52, 1", "s_sub_u32 s49, s49, s53",
                      "s_cmp_lt_u32 s91, 2500", "s_cselect_b32 s55, s55, s49"]
            at[12] = ["s_sub_u32 s91, s55, s53", "s_lshl_b32 s91, s91, 1", "s_sub_u32 s49, s55, s57",
                      f"s_cmp_ge_u32 s48, {(LOOK+5)*128}", "s_cselect_b32 s91, s49, s91"]
            if slew:
                at[12] += [f"s_add_u32 s49, s92, {slew}", "s_min_u32 s49, s49, s91", f"s_cmp_gt_u32 s48, {(LOOK+5)*128}",
                           "s_cselect_b32 s91, s49, s91"]
            at[12] += ["s_mov_b32 s92, s91", f"s_mul_i32 s91, s91, {LOOK+1}"]
        at[13] = ["s_lshr_b32 s91, s91, 2", "s_add_u32 s49, s55, s91", "s_mov_b32 s57, s56", "s_mov_b32 s56, s53",
                  "s_mov_b32 s53, s52", "s_mov_b32 s52, s55"]
        at[14] = ["s_add_u32 s91, s50, 0x40000000", f"s_cmp_lt_u32 s48, {(LOOK+first)*128}", "s_cselect_b32 s49, s91, s49",
                  "s_add_u32 s48, s48, 128", "s_memrealtime s[50:51]"]
        return at

    def emit_atom(at, i, restore=True):
        if i in at:
            for l in at[i]:
                if l.endswith(":"):
                    Lb(l[:-1])
                else:
                    A(l)
            if restore:
                A("s_cmp_lg_u32 s90, 0")

    def cpace(d, i, tag):
        if not ctl:
            A(pace(d, i))
            return
        DL = DLK if (tag == "pk" and DLK) else DLV
        A(f"s_cbranch_vccnz L_{tag}a{i}")
        A(f"s_cbranch_scc1 L_{tag}b{i}")
        A(pace(DL[0], i))
        Lb(f"L_{tag}b{i}")
        A(pace(DL[1], i))
        Lb(f"L_{tag}a{i}")
        if DL[3] != DL[2]:
            A(f"s_cbranch_scc1 L_{tag}c{i}")
            A(pace(DL[2], i))
            Lb(f"L_{tag}c{i}")
        A(pace(DL[3], i))

    def red_a(i):
        j = i & 3
        dst = VA0 if j < 2 else VA1
        bm = "0x3" if (j & 1) == 0 else "0xc"
        p = VP + (i & 1)
        A(f"v_add_f32_dpp v{dst}, v{p}, v{p} row_ror:8 row_mask:0xf bank_mask:{bm}")

    def red_b(which):
        src = VA0 if which == 0 else VA1
        bm = "0x5" if which == 0 else "0xa"
        A(f"v_add_f32_dpp v{VB}, v{src}, v{src} row_half_mirror row_mask:0xf bank_mask:{bm}")

    def red_c():
        A(f"v_add_f32_dpp v{VC}, v{VB}, v{VB} quad_perm:[1,0,3,2] {DPP_ALL}")

    def red_d(k):
        dst = VS if k == 0 else VB
        A(f"v_add_f32_dpp v{dst}, v{VC}, v{VC} quad_perm:[2,3,0,1] {DPP_ALL}")

    def red_e(k):
        if k:
            A(f"v_cndmask_b32 v{VS}, v{VS}, v{VB}, s[{38+2*k}:{39+2*k}]")

    def post_a():
        bfround(VS, VS)
        A(f"v_mul_f32 v{VS}, {f32(128 ** -0.5)}, v{VS}")

    def post_b():
        bfround(VE + 15, VS)

    if ctl:
        A("s_add_u32 s49, s49, 0x40000000")
        A(f"s_mov_b32 s92, {prior}")
        A(f"s_mov_b32 s4, {TH[0] - ramp[0]*ramp[1]}")
        A(f"s_mov_b32 s5, {TH[2]}")
    Lb("L_kloop")
    loop_stamp(33)
    next_group()
    A("s_cmp_eq_u32 s34, 1")
    A("s_cselect_b32 s16, s12, s16")
    A("s_cselect_b32 s17, s13, s17")
    decide()
    at = atoms()
    for i in range(16):
        k, j = i >> 2, i & 3
        p = VP + (i & 1)
        R = RING + 4 * i
        A(f"v_dot2_f32_bf16 v{p}, v{R}, v{VQ}, 0")
        A(f"v_dot2_f32_bf16 v{p}, v{R+1}, v{VQ+1}, v{p}")
        red_a((i - 1) & 15)
        A(f"v_dot2_f32_bf16 v{p}, v{R+2}, v{VQ+2}, v{p}")
        if j == 0:
            red_b(0)
        elif j == 1:
            red_b(1)
        elif j == 2:
            red_c()
        else:
            red_d((k - 1) & 3)
        A(f"v_dot2_f32_bf16 v{p}, v{R+3}, v{VQ+3}, v{p}")
        cpace(DK, i, "pk")
        ring_load(i)
        if j == 3:
            red_e((k - 1) & 3)
        if i == 4:
            post_a()
        if i == 5:
            post_b()
        if i < 15:
            A(f"v_mov_b32 v{VE+i}, v{VE+i+1}")
        emit_atom(at, i)
    A("s_sub_u32 s34, s34, 1")
    A("s_cmp_lg_u32 s34, 0")
    A("s_cbranch_scc1 L_kloop")
    stamp(3)

    def sm_a():
        red_a(15)
        red_b(0)
        A("s_nop 0")
        red_b(1)
        A("s_nop 1")
        red_c()
        A("s_nop 1")
        red_d(3)
        red_e(3)
        post_a()
        post_b()
        A(f"v_max3_f32 v{VMAX}, v{VE}, v{VE+1}, v{VE+2}")
        for u in range(3, 15, 2):
            A(f"v_max3_f32 v{VMAX}, v{VMAX}, v{VE+u}, v{VE+u+1}")
        A(f"v_max_f32 v{VMAX}, v{VMAX}, v{VE+15}")
        allreduce_row("v_max_f32", VMAX)
        swap_reduce("v_max_f32", VMAX, VT, 16)
        swap_reduce("v_max_f32", VMAX, VT, 32)
        for u in range(16):
            A(f"v_sub_f32 v{VE+u}, v{VE+u}, v{VMAX}")
        for u in range(16):
            A(f"v_mul_f32 v{VE+u}, {f32(LOG2E)}, v{VE+u}")
        for u in range(16):
            A(f"v_exp_f32 v{VE+u}, v{VE+u}")
        A(f"v_add_f32 v{VS}, v{VE}, v{VE+1}")
        for u in range(2, 16):
            A(f"v_add_f32 v{VS}, v{VS}, v{VE+u}")
        A(f"s_lshl_b32 s3, s28, 9")
        A(f"v_lshl_add_u32 v{VT+2}, v2, 2, v{VLB}")
        A(f"v_add_u32 v{VT+2}, s3, v{VT+2}")
        A(f"ds_write_b32 v{VT+2}, v{VE+14} offset:{O_E}")
        A(f"ds_write_b32 v{VT+2}, v{VE+15} offset:{O_E+256}")
        allreduce_row("v_add_f32", VS)
        swap_reduce("v_add_f32", VS, VT, 16)
        swap_reduce("v_add_f32", VS, VT, 32)
        A(f"s_lshl_b32 s3, s28, 3")
        A(f"v_add_u32 v{VT+2}, s3, v{VLB}")
        A(f"ds_write_b32 v{VT+2}, v{VMAX} offset:{O_ST}")
        A(f"ds_write_b32 v{VT+2}, v{VS} offset:{O_ST+4}")
        A(f"v_mov_b32 v{VT+3}, 1")

    def sm_b():
        softmax_factor(VLB, VT, VS, VMAX)
        for u in range(14):
            A(f"v_mul_f32 v{VE+u}, v{VE+u}, v{VS}")
        for u in range(14):
            A(f"v_cvt_pk_bf16_f32 v{VE+u}, v{VE+u}, v{VE+u}")

    nxt = [0]

    def issue2():
        i = nxt[0]
        if ctl:
            A("s_cmp_lg_u32 s90, 0")
        cpace(DT, i, "pt")
        ring_load(i, RING2)
        emit_atom(at, i, restore=False)
        nxt[0] += 1

    def weave(lines, n):
        step = (len(lines) + n - 1) // n
        for a in range(0, len(lines), step):
            issue2()
            o.extend(lines[a:a + step])

    if stamps:
        A("s_mov_b32 s34, 14")
        loop_stamp(47)
    next_group()
    decide()
    at = atoms()
    weave(capture(sm_a), 6)
    A("s_waitcnt lgkmcnt(0)")
    lds_arrive(VLB, O_CNT + C_SM, VT + 3)
    while nxt[0] < 12:
        issue2()
    lds_spin("L_smwait", VLB, O_CNT + C_SM, VT, 8, sleep=0)
    weave(capture(sm_b), 4)
    while nxt[0] < 16:
        issue2()
    stamp(4)

    def build_a(n, i, vp):
        for r in range(4):
            A(f"v_and_b32_dpp v{VAO+4*(n&1)+r}, v{vp}, v{VM+r} row_newbcast:{cl(i)} {DPP_ALL}")

    def pv_mfma(n, reg):
        A(f"v_mfma_f32_16x16x32_bf16 {vr(VACC,4)}, {vr(VAO+4*(n&1),4)}, {vr(reg,4)}, {vr(VACC,4)}")

    if stamps:
        A("s_mov_b32 s34, 13")
        loop_stamp(47)
    next_group()
    decide()
    at = atoms()
    build_a(0, 0, VE)
    for i in range(16):
        build_a(1, i, VE + 1)
        pv_mfma(0, RING + 4 * i)
        cpace(DV, i, "px")
        ring_load(i)
        if ring3:
            build_a(0, i, VE + 13)
            pv_mfma(1, RING2 + 4 * i)
            A("s_nop 0")
            pv_mfma(0, RING3 + 4 * i)
            build_a(0, (i + 1) & 15, VE if i < 15 else VPC)
        else:
            build_a(0, (i + 1) & 15, VE if i < 15 else VPC)
            pv_mfma(1, RING2 + 4 * i)
        emit_atom(at, i)
    A(f"s_mov_b32 s34, {10 if ring3 else 11}")

    Lb("L_vloop")
    loop_stamp(45 if ring3 else 46)
    next_group()
    decide(True)
    at = atoms()
    for i in range(16):
        pv_mfma(i, RING + 4 * i)
        cpace(DV, i, "pv")
        ring_load(i)
        build_a(i + 1, (i + 1) & 15, VPC if i < 15 else VN)
        if i == 0:
            A(f"v_mov_b32 v{VN}, v{VPC+1}")
        if 1 <= i <= 10:
            A(f"v_mov_b32 v{VPC+i}, v{VPC+i+1}")
        if i == 15:
            A(f"v_mov_b32 v{VPC}, v{VN}")
        emit_atom(at, i)
        if i > 10 and i < 15 and i not in at:
            A("s_nop 0")
        if i < 15 and i not in at:
            A("s_nop 0")
    A("s_sub_u32 s34, s34, 1")
    A("s_cmp_lg_u32 s34, 0")
    A("s_cbranch_scc1 L_vloop")
    loop_stamp(46)
    if ring3 and stamps and stamps != "lite":
        A(f"v_writelane_b32 v{VST}, s70, 45")
    A(f"v_lshl_add_u32 v{VT}, v0, 3, v{VLB}")
    A("s_call_b64 s[62:63], L_sub_pv")
    A("s_nop 6")
    A(f"ds_write_b64 v{VT}, {vr(VACC,2)} offset:{O_OP}")
    A("s_waitcnt lgkmcnt(0)")
    stamp(5)
    A("s_barrier")
    if stamps == "lite":
        A("s_memrealtime s[70:71]")
        A("s_waitcnt lgkmcnt(0)")
        A(f"v_writelane_b32 v{VST}, s70, 5")
    A("s_and_b32 s3, s2, 31")
    A("s_lshl_b32 s33, s28, 5")
    A("s_add_u32 s3, s3, s33")
    A("s_cmp_ge_u32 s3, 18")
    A("s_cbranch_scc1 L_fin")
    A(f"v_lshl_add_u32 v{VT}, v2, 4, v{VLB}")
    A(f"ds_read_b128 {vr(HB2,4)}, v{VT} offset:{O_CX}")
    final_srds(6, True)
    if b4:
        A("s_barrier")
    if f0:
        A(f"s_sleep {f0}")
    if fa:
        A("s_memrealtime s[50:51]")
        A("s_waitcnt lgkmcnt(0)")
        A("s_sub_u32 s3, s49, s50")
        A(f"s_add_u32 s3, s3, {fa[0]}")
        A(f"s_max_i32 s3, s3, {fa[1]}")
        A(f"s_min_i32 s3, s3, {fa[2]}")
        Lb("L_backoff")
        A("s_sleep 1")
        A("s_sub_u32 s3, s3, 4")
        A("s_cbranch_scc0 L_backoff")
    A("s_waitcnt lgkmcnt(0)")
    A("s_call_b64 s[62:63], L_sub_final")
    stamp(14)
    A("s_branch L_fin" if (stamps or fixdur) else "s_endpgm")

    Lb("L_sub_pv")
    build_a(0, 0, VPC)
    for i in range(16):
        if i < 15:
            build_a(i + 1, i + 1, VPC)
        if 15 - i < int((DL[3] if ctl else DV) + 0.5):
            A(f"s_waitcnt vmcnt({15-i})")
        pv_mfma(i, RING + 4 * i)
    A("s_setpc_b64 s[62:63]")

    HC, HG, HLB = 4, 5, 6
    HVB, HVS = 7, 8
    HPM, HPR = 9, 10
    HOP = 11
    HD = 16
    HF2 = 64
    HT = 64
    HA = 88
    XO, XP, XZ, XE = 104, 105, 106, 107
    HF = 112
    ST = 28
    GH, GT = 20, 82

    helper_start = len(o)
    Lb("L_helper")
    if hprio:
        A(f"s_setprio {hprio}")
    A(f"v_and_b32 v{HT}, 31, v2")
    A(f"v_mul_u32_u24 v{HT}, 36, v{HT}")
    A("s_lshr_b32 s30, s2, 5")
    A("s_mul_i32 s68, s30, 1152")
    XR = 52
    srd(8, SX, None, 9216)
    A(f"buffer_load_dwordx4 {vr(XR,4)}, v{HT}, s[8:11], s68 offen")
    A(f"buffer_load_dwordx4 {vr(XR+4,4)}, v{HT}, s[8:11], s68 offen offset:16")
    A(f"buffer_load_dword v{XR+8}, v{HT}, s[8:11], s68 offen offset:32")
    A("s_barrier")
    A("s_sub_u32 s28, s28, 4")
    if cpf:
        A("s_getpc_b64 s[34:35]")
        Lb("L_pc")
        A("s_lshr_b32 s3, s2, 3")
        A("s_lshl_b32 s3, s3, 10")
        A(f"v_subrev_u32 v{HT+8}, 256, v0")
        A(f"v_lshl_add_u32 v{HT+8}, v{HT+8}, 2, s3")
        A(f"v_min_u32 v{HT+8}, L_code_end-L_pc-4, v{HT+8}")
        A(f"v_mov_b32 v{HT+9}, s35")
        A(f"v_add_co_u32 v{HT+8}, vcc, s34, v{HT+8}")
        A("s_nop 1")
        A(f"v_addc_co_u32 v{HT+9}, vcc, 0, v{HT+9}, vcc")
        A(f"global_load_dword v{HT+10}, {vr(HT+8,2)}, off")
    A("s_and_b32 s29, s2, 31")
    A(f"v_lshrrev_b32 v{HG}, 4, v2")
    HRW, HW1, HXA = HT + 1, HT + 2, HT + 3
    A("s_mul_i32 s3, s28, 144")
    A(f"v_lshl_add_u32 v{HRW}, v{HG}, 2, s3")
    A(f"v_lshlrev_b32 v{HW1}, 13, v{HRW}")
    A(f"v_lshl_add_u32 v{HW1}, v{HC}, 4, v{HW1}")
    A("s_lshl_b32 s3, s29, 8")
    srd(12, SWQ, "s3", 575 * 8192 + 256)

    per = 256 // ncl

    def is_marker(label):
        A("s_add_u32 s3, s29, 3")
        A("s_xor_b32 s3, s3, s30")
        A(f"s_and_b32 s3, s3, {per-1}")
        A(f"s_cbranch_scc1 {label}")

    def marker_index():
        A("s_lshl_b32 s3, s29, 3")
        A("s_add_u32 s3, s3, s30")
        A(f"s_lshr_b32 s3, s3, {per.bit_length()-1}")

    def mark_stores():
        is_marker("L_h_nomark")
        marker_index()
        A(f"s_mul_i32 s3, s3, {per*SLOT2}")
        srd(20, SWS, "s3", 0 if noclear else per * SLOT2)
        for r in range(4):
            A(f"v_mov_b32 v{48+r}, -1")
        A(f"v_subrev_u32 v{HT+5}, 256, v0")
        A(f"v_lshlrev_b32 v{HT+5}, 4, v{HT+5}")
        A("s_mov_b32 s35, 0")
        for k in range((per * SLOT2 + 4095) // 4096):
            A(f"buffer_store_dwordx4 {vr(48,4)}, v{HT+5}, s[20:23], s35 offen sc1")
            A("s_add_u32 s35, s35, 4096")
        Lb("L_h_nomark")

    def mark_report():
        is_marker("L_h_noreport")
        marker_index()
        A(f"s_lshl_b32 s3, s3, {3 if ncl == 32 else 2}")
        A(f"v_mov_b32 v{HT+6}, s3")
        A("s_waitcnt vmcnt(0)")
        A("s_mov_b64 exec, 1")
        A(f"ds_add_rtn_u32 v{HT+5}, v{HLB}, v3 offset:{O_CNT+C_CL}")
        A("s_waitcnt lgkmcnt(0)")
        A(f"v_readfirstlane_b32 s3, v{HT+5}")
        A("s_cmp_lg_u32 s3, 3")
        A("s_cbranch_scc1 L_h_noflag")
        A(f"global_store_dword v{HT+6}, v3, s[{SDBG}:{SDBG+1}] sc1")
        Lb("L_h_noflag")
        A("s_mov_b64 exec, -1")
        Lb("L_h_noreport")

    if clat == "start":
        mark_stores()

    def bump(r):
        A(f"s_add_u32 {r}, {r}, 1")
        A(f"s_cmp_eq_u32 {r}, 9")
        A(f"s_cselect_b32 {r}, 0, {r}")

    A("s_mov_b32 s32, s30" if rot else "s_mov_b32 s32, 0")
    A("s_mov_b32 s33, s32")
    def q_first(n):
        st, j = n >> 2, n & 3
        if j == 0:
            A("s_lshl_b32 s34, s33, 17")
        if n >= N0:
            A(pace(NQ, n))
        A(f"buffer_load_dwordx4 {vr(HF+16*st+4*j,4)}, v{HW1}, s[12:15], s34 offen {wpol}")
        A("s_add_u32 s34, s34, 8192")
        if j == 3:
            bump("s33")

    for n in range(N0):
        q_first(n)
    stamp(16 + 1)
    A(f"s_waitcnt vmcnt({N0})")
    ln_start = len(o)

    Lb("L_h_ln")
    stamp(1)
    A("s_mov_b32 s94, 0x05040100")
    A("s_mov_b32 s95, 0x07060302")
    XF = HD
    SUM, T1, MEAN = 34, 35, 36
    for d in range(9):
        A(f"v_lshlrev_b32 v{XF+2*d}, 16, v{XR+d}")
        A(f"v_and_b32 v{XF+2*d+1}, 0xffff0000, v{XR+d}")
    A(f"v_add_f32 v{SUM}, v{XF}, v{XF+1}")
    for e in range(2, 18):
        A(f"v_add_f32 v{SUM}, v{SUM}, v{XF+e}")
    allreduce_row("v_add_f32", SUM)
    swap_reduce("v_add_f32", SUM, T1, 16)
    A(f"v_mul_f32 v{MEAN}, {f32(1/576)}, v{SUM}")
    A(f"v_mov_b32 v{SUM}, 0")
    for e in range(18):
        t = 38 + (e & 1)
        A(f"v_sub_f32 v{t}, v{XF+e}, v{MEAN}")
        A(f"v_fmac_f32 v{SUM}, v{t}, v{t}")
    allreduce_row("v_add_f32", SUM)
    swap_reduce("v_add_f32", SUM, T1, 16)
    A(f"v_mul_f32 v{SUM}, {f32(1/576)}, v{SUM}")
    bfround(MEAN, MEAN)
    bfround(SUM, SUM)
    A(f"v_add_f32 v{SUM}, {f32(1e-5)}, v{SUM}")
    bfround(SUM, SUM)
    A(f"v_sqrt_f32 v{SUM}, v{SUM}")
    A("s_nop 0")
    bfround(SUM, SUM)
    A(f"v_rcp_f32 v{SUM}, v{SUM}")
    for e in range(18):
        A(f"v_sub_f32 v{XF+e}, v{XF+e}, v{MEAN}")
    for d in range(9):
        A(f"v_cvt_pk_bf16_f32 v{XR+d}, v{XF+2*d}, v{XF+2*d+1}")
    for d in range(9):
        A(f"v_lshlrev_b32 v{XF+2*d}, 16, v{XR+d}")
        A(f"v_and_b32 v{XF+2*d+1}, 0xffff0000, v{XR+d}")
    for e in range(18):
        A(f"v_mul_f32 v{XF+e}, v{XF+e}, v{SUM}")
    for e in range(18):
        A(f"v_cvt_pk_bf16_f32 v{XF+e}, v{XF+e}, v{XF+e}")
    ln_code = o[ln_start:]
    del o[ln_start:]
    rest = list(range(N0, 8))
    step = (len(ln_code) + len(rest) - 1) // max(len(rest), 1)
    for n in rest:
        o.extend(ln_code[:step]); ln_code = ln_code[step:]
        q_first(n)
    o.extend(ln_code)
    A(f"v_lshl_add_u32 v{HT}, v{HT}, 1, v{HLB}")
    A(f"v_lshrrev_b32 v{HXA}, 3, v2")
    A(f"v_mov_b32 v3, 1")
    A(f"v_cmp_eq_u32 vcc, s28, v{HXA}")
    A("s_and_saveexec_b64 s[34:35], vcc")
    for d in range(9):
        A(f"ds_write_b64 v{HT}, {vr(XF+2*d,2)} offset:{O_XN+8*d}")
    A("s_mov_b64 exec, -1")
    A(f"v_lshl_add_u32 v{HXA}, v{HRW}, 2, v{HLB}")
    A("s_waitcnt lgkmcnt(0)")
    pv_masks(VM, HC, HT + 4)
    for r in range(4):
        A(f"v_mov_b32 v{VACC+r}, 0")
    stamp(2)
    XV = 48

    def read_x():
        A("s_lshl_b32 s3, s32, 6")
        A(f"v_add_u32 v{HT+4}, s3, v{HXA}")
        A(f"ds_read_b128 {vr(XV,4)}, v{HT+4} offset:{O_XN}")

    def diag(j):
        for r in range(4):
            A(f"v_and_b32 v{VAO+4*(j&1)+r}, v{XV+j}, v{VM+r}")

    A("s_mov_b32 s77, 2")
    Lb("L_h_q")
    for st in range(2):
        read_x()
        bump("s32")
        A("s_lshl_b32 s34, s33, 17")
        A("s_cmp_ge_u32 s77, 9")
        A(f"s_cselect_b32 s34, {OOB}, s34")
        bump("s33")
        A("s_add_u32 s77, s77, 1")
        A("s_waitcnt lgkmcnt(0)")
        for j in range(4):
            diag(j)
            A(pace(min(8, NQ), j))
            A("s_nop 0")
            pv_mfma(j, HF + 16 * st + 4 * j)
            A(f"buffer_load_dwordx4 {vr(HF+16*st+4*j,4)}, v{HW1}, s[12:15], s34 offen {wpol}")
            A("s_add_u32 s34, s34, 8192")
        if st == 0:
            A("s_cmp_eq_u32 s77, 11")
            A("s_cbranch_scc1 L_h_q_done")
    A("s_branch L_h_q")
    Lb("L_h_q_done")
    A(f"v_subrev_u32 v{HT+4}, 256, v0")
    A(f"v_lshl_add_u32 v{HT+4}, v{HT+4}, 3, v{HLB}")
    A("s_nop 1")
    A(f"ds_write_b64 v{HT+4}, {vr(VACC,2)} offset:{O_E}")
    A("s_waitcnt lgkmcnt(0)")
    A("s_mov_b64 exec, 1")
    A(f"ds_add_rtn_u32 v{HT+5}, v{HLB}, v3 offset:{O_CNT+C_S1}")
    A("s_mov_b64 exec, -1")
    A(f"v_lshl_add_u32 v{HOP}, v2, 3, v{HLB}")
    A("s_waitcnt lgkmcnt(0)")
    A(f"v_readfirstlane_b32 s3, v{HT+5}")
    stamp(3)
    A("s_cmp_lg_u32 s3, 3")
    A("s_cbranch_scc1 L_h_q_out")
    for k in range(4):
        A(f"ds_read_b64 {vr(XV+2*k,2)}, v{HOP} offset:{O_E+512*k}")
    A(f"v_lshl_add_u32 v{HT+5}, v{HC}, 3, v{HG}")
    A(f"v_lshl_add_u32 v{HT+5}, v{HT+5}, 1, v{HLB}")
    A("s_waitcnt lgkmcnt(0)")
    A(f"v_pk_add_f32 {vr(XV,2)}, {vr(XV,2)}, {vr(XV+2,2)}")
    A(f"v_pk_add_f32 {vr(XV+4,2)}, {vr(XV+4,2)}, {vr(XV+6,2)}")
    A(f"v_pk_add_f32 {vr(XV,2)}, {vr(XV,2)}, {vr(XV+4,2)}")
    A(f"v_cvt_pk_bf16_f32 v{XV}, v{XV}, v{XV+1}")
    A(f"ds_write_b16 v{HT+5}, v{XV} offset:{O_Q}")
    A(f"ds_write_b16_d16_hi v{HT+5}, v{XV} offset:{O_Q+8}")
    A("s_waitcnt lgkmcnt(0)")
    A(f"ds_write_b32 v{HLB}, v3 offset:{O_CNT+C_Q}")
    stamp(6)
    Lb("L_h_q_out")
    if hprio:
        A("s_setprio 0")

    if st0:
        A("s_cmp_lg_u32 s28, 3")
        A("s_cbranch_scc1 L_nost0")
        A("s_lshl_b32 s3, s2, 7")
        A(f"s_add_u32 s3, s3, {WS_STAMP}")
        A(f"v_mov_b32 v{HT+8}, s3")
        A(f"v_mov_b32 v{HT+9}, s74")
        A("s_mov_b64 exec, 1")
        A(f"global_store_dword v{HT+8}, v{HT+9}, s[{SWS}:{SWS+1}] sc1")
        A("s_mov_b64 exec, -1")
        Lb("L_nost0")
    if clat == "q":
        mark_stores()
    if clat != "h":
        mark_report()

    A("s_and_b32 s31, s2, 7")
    A("s_lshl_b32 s31, s31, 2")
    A("s_lshr_b32 s3, s29, 3")
    A("s_add_u32 s31, s31, s3")
    A("s_mul_i32 s3, s31, 288")
    srd(12, SW1, "s3", 575 * 9216 + 288)
    srd(20, SB1, "s3", 288)
    HN1, GB = HT + 5, 60
    A(f"v_mul_u32_u24 v{HW1}, 9216, v{HRW}")
    A(f"v_lshl_add_u32 v{HN1}, v{HC}, 1, v{HW1}")
    A(f"v_lshl_add_u32 v{HW1}, v{HC}, 4, v{HW1}")
    if smf:
        A(f"v_and_b32 v{HT+6}, 8, v2")
        A(f"v_bfe_u32 v{HT+7}, v2, 5, 1")
        A(f"v_lshl_add_u32 v{HT+6}, v{HT+7}, 2, v{HT+6}")
        A(f"v_and_b32 v{HT+7}, 1, v2")
        A(f"v_lshl_add_u32 v{HT+6}, v{HT+7}, 1, v{HT+6}")
        A(f"v_bfe_u32 v{HT+7}, v2, 2, 1")
        A(f"v_add_u32 v{HT+6}, v{HT+6}, v{HT+7}")
        A(f"v_bfe_u32 v{HT+7}, v2, 4, 1")
        A(f"v_bfe_u32 v{HT+8}, v2, 1, 1")
        A(f"v_lshl_add_u32 v{HT+7}, v{HT+7}, 1, v{HT+8}")
        A(f"v_lshl_add_u32 v{HOP}, v{HT+7}, 4, v{HT+6}")
        A(f"v_lshl_add_u32 v{HOP}, v{HOP}, 3, v{HLB}")
        A(f"v_lshl_add_u32 v{HT+6}, v{HT+6}, 3, v{HT+7}")
    else:
        A(f"v_lshl_add_u32 v{HT+6}, v{HC}, 3, v{HG}")
    A(f"v_lshlrev_b32 v{HT+6}, 1, v{HT+6}")
    A(f"v_lshlrev_b32 v{HT+7}, 1, v{HC}")
    A("s_waitcnt vmcnt(0)")
    A(f"buffer_load_ushort v{GB}, v{HT+6}, s[20:23], 0 offen")
    A(f"buffer_load_ushort v{GB+1}, v{HT+6}, s[20:23], 0 offen offset:8")
    A(f"buffer_load_ushort v{GB+2}, v{HT+7}, s[20:23], 0 offen offset:256")
    RA, PA, PB = 52, 56, 58
    for r in range(4):
        A(f"v_mov_b32 v{VACC+r}, 0")
        A(f"v_mov_b32 v{RA+r}, 0")
    A("s_mov_b32 s32, s30" if rot else "s_mov_b32 s32, 0")
    A("s_mov_b32 s77, 9")
    Lb("L_h_h")
    read_x()
    A(f"s_mul_i32 s34, s32, {16*9216}")
    bump("s32")
    for half in range(2):
        for j in (2 * half, 2 * half + 1):
            A(f"buffer_load_dwordx4 {vr(HF+4*j,4)}, v{HW1}, s[12:15], s34 offen {wpol}")
            A(f"buffer_load_ushort v{HF+16+j}, v{HN1}, s[12:15], s34 offen offset:256 {wpol}")
            A("s_add_u32 s34, s34, 9216")
        A("s_waitcnt lgkmcnt(0)")
        diag(2 * half)
        diag(2 * half + 1)
        A(f"v_perm_b32 v{PA+half}, v{XV+2*half+1}, v{XV+2*half}, s94")
        A("s_waitcnt vmcnt(0)")
        A(f"v_lshl_or_b32 v{PB+half}, v{HF+17+2*half}, 16, v{HF+16+2*half}")
        pv_mfma(2 * half, HF + 8 * half)
        pv_mfma(2 * half + 1, HF + 8 * half + 4)
    A(f"v_mfma_f32_16x16x16_bf16 {vr(RA,4)}, {vr(PA,2)}, {vr(PB,2)}, {vr(RA,4)}")
    A("s_sub_u32 s77, s77, 1")
    A("s_cmp_lg_u32 s77, 0")
    A("s_cbranch_scc1 L_h_h")
    A(f"v_lshl_add_u32 v{HT+4}, v0, 3, v{HLB}")
    A("s_lshl_b32 s3, s28, 6")
    A(f"v_lshl_add_u32 v{HT+6}, v{HC}, 2, v{HLB}")
    A(f"v_add_u32 v{HT+6}, s3, v{HT+6}")
    A("s_nop 1")
    A(f"ds_write_b64 v{HT+4}, {vr(VACC,2)} offset:{O_OP}")
    A(f"ds_write_b32 v{HT+6}, v{RA} offset:{O_HS}")
    A("s_waitcnt lgkmcnt(0)")
    lds_arrive(HLB, O_CNT + C_H, 3)
    stamp(4)
    if clat == "h":
        mark_stores()
        mark_report()
    A(f"v_mul_u32_u24 v{HVB}, 1152, v{HG}")
    A(f"v_lshl_add_u32 v{HVS}, v{HC}, 1, v{HVB}")
    A("s_lshl_b32 s3, s28, 5")
    A("s_add_u32 s3, s3, 1024")
    A(f"v_add_u32 v{HVS}, s3, v{HVS}")
    A("s_lshl_b32 s3, s28, 8")
    A(f"v_lshl_add_u32 v{HVB}, v{HC}, 4, v{HVB}")
    A(f"v_add_u32 v{HVB}, s3, v{HVB}")
    A(f"v_lshlrev_b32 v{HPM}, 5, v{HC}")
    A(f"v_lshl_add_u32 v{HPM}, v{HG}, 4, v{HPM}")
    A("s_lshl_b32 s3, s28, 9")
    A(f"v_add_u32 v{HPM}, s3, v{HPM}")
    A(f"v_mov_b32 v{HT}, {OOB}")
    A(f"v_cmp_gt_u32 vcc, 2, v{HG}")
    A("s_lshl_b32 s3, s28, 6")
    A("s_add_u32 s3, s3, 2048")
    A(f"v_cndmask_b32 v{HPM}, v{HT}, v{HPM}, vcc")
    A(f"v_lshl_add_u32 v{HPR}, v{HC}, 2, s3")
    A(f"v_cmp_eq_u32 vcc, 0, v{HG}")
    A("s_nop 1")
    A(f"v_cndmask_b32 v{HPR}, v{HT}, v{HPR}, vcc")
    A(f"s_mov_b32 s96, {'0xf0f0f0f0' if smf else '0xffff0000'}")
    A("s_mov_b32 s97, s96")

    A(f"s_mul_i32 s3, s31, {144*1152}")
    srd(20, SW2, "s3", 144 * 1152)
    HT = 104
    PS = 110
    for e in range(4):
        A(f"s_mov_b32 s33, {(128+4*e)*1152}")
        A(f"buffer_load_dwordx4 {vr(ST+4*e,4)}, v{HVB}, s[20:23], s33 offen {spol}")
        A(f"buffer_load_ushort v{ST+16+e}, v{HVS}, s[20:23], s33 offen {spol}")
    A("s_waitcnt vmcnt(0)")
    for r in range(2):
        for t in range(8):
            lo = ST + 8 * r + (t >> 1)
            A(f"v_perm_b32 v{HF2+2*t+r}, v{lo+4}, v{lo}, s{94+(t&1)}")
        A(f"v_lshl_or_b32 v{HF2+16+r}, v{ST+17+2*r}, 16, v{ST+16+2*r}")
    A("s_call_b64 s[62:63], L_sub_load")
    stamp(7)
    lds_spin("L_h_hwait", HLB, O_CNT + C_H, HT, 4)
    GL = 16
    A(f"v_lshl_add_u32 v{HT}, v{HC}, 2, v{HLB}")
    for k in range(4):
        A(f"ds_read_b64 {vr(GL+4*k,2)}, v{HOP} offset:{O_OP+512*(4+k)}")
        A(f"ds_read_b32 v{GL+4*k+2}, v{HT} offset:{O_HS+64*k}")
    A(f"v_and_b32 v{HT}, 3, v{HC}")
    A(f"v_lshrrev_b32 v{HT+1}, 2, v{HC}")
    A(f"v_lshl_add_u32 v{HT}, v{HT}, 2, v{HT+1}")
    A(f"v_lshl_add_u32 v{HT}, v{HT}, 1, v{HLB}")
    A("s_waitcnt lgkmcnt(0)")
    c1 = -2.0 * LOG2E * 0.7978845608028654
    for r in range(3):
        A(f"v_add_f32 v{GL+r}, v{GL+r}, v{GL+4+r}")
        A(f"v_add_f32 v{GL+8+r}, v{GL+8+r}, v{GL+12+r}")
        A(f"v_add_f32 v{GL+r}, v{GL+r}, v{GL+8+r}")
        bfround(GL + r, GL + r)
        A(f"v_lshlrev_b32 v{GB+r}, 16, v{GB+r}")
        A(f"v_add_f32 v{GL+r}, v{GL+r}, v{GB+r}")
        bfround(GL + r, GL + r)
        A(f"v_mul_f32 v{GB+r}, v{GL+r}, v{GL+r}")
        A(f"v_mov_b32 v{GL+3}, {f32(c1)}")
        A(f"v_fmac_f32 v{GL+3}, {f32(c1*0.044715)}, v{GB+r}")
        A(f"v_mul_f32 v{GB+r}, v{GL+3}, v{GL+r}")
        A(f"v_exp_f32 v{GB+r}, v{GB+r}")
        A("s_nop 0")
        A(f"v_add_f32 v{GB+r}, 1.0, v{GB+r}")
        A(f"v_rcp_f32 v{GB+r}, v{GB+r}")
        A("s_nop 0")
        A(f"v_mul_f32 v{GL+r}, v{GL+r}, v{GB+r}")
        bfround(PS + r if r < 2 else GL + r, GL + r)
    A(f"ds_write_b16_d16_hi v{HT}, v{GL+2} offset:{O_HR}")
    A("s_waitcnt lgkmcnt(0)")
    A(f"v_lshl_add_u32 v{HT}, v{HG}, 3, v{HLB}")
    A(f"ds_read_b64 {vr(HT+2,2)}, v{HT} offset:{O_HR}")
    A("s_lshl_b32 s3, s29, 3")
    A("s_add_u32 s3, s3, s30")
    A(f"s_mul_i32 s3, s3, {SLOT2}")
    srd(24, SWS, "s3", 0)
    A("s_waitcnt lgkmcnt(0)")
    IDX = HA + 8

    def set_idx():
        A(f"v_mov_b32 v{IDX}, 0x4444")
        A(f"v_mov_b32 v{IDX+1}, 0xeeee")
        A(f"v_cndmask_b32 v{IDX}, v{IDX}, v{IDX+1}, s[96:97]")
    if smf:
        for r in range(2):
            A(f"v_cndmask_b32 v{HT+2+r}, v{HT+2+r}, 0, s[96:97]")
        set_idx()
    for t in range(9):
        A(f"v_mfma_f32_16x16x16_bf16 {vr(HD+4*t,4)}, {vr(HT+2,2)}, {vr(HF2+2*t,2)}, 0")
    A("s_call_b64 s[62:63], L_sub_gemv")
    OR = HF2
    for r in range(4):
        A(f"v_mov_b32 v{GH+r}, v{OR+4+r}")
    A(f"v_mov_b32 v{GH+4}, v{HD+32}")
    A(f"s_mov_b32 s26, {SLOT2}")
    lds_arrive(HLB, O_CNT + C_SM, 3)
    stamp(8)
    A(f"s_mul_i32 s3, s29, {128*1152}")
    srd(20, SWO, "s3", 128 * 1152)
    A("s_call_b64 s[62:63], L_sub_load")
    stamp(9)

    A("s_cmp_lg_u32 s28, 3")
    A("s_cbranch_scc1 L_h_pvpre")
    A(f"v_and_b32 v{HT+1}, {ncl-1}, v2")
    A(f"v_lshlrev_b32 v{HT+1}, {3 if ncl == 32 else 2}, v{HT+1}")
    A(f"global_load_dword v{HT}, v{HT+1}, s[{SDBG}:{SDBG+1}]")
    Lb("L_h_bpoll")
    A("s_waitcnt vmcnt(0)")
    A(f"v_cmp_ne_u32 vcc, 1, v{HT}")
    A("s_cbranch_vccz L_h_bpoll_ok")
    A("s_sleep 32")
    A(f"global_load_dword v{HT}, v{HT+1}, s[{SDBG}:{SDBG+1}] sc1")
    A("s_sub_u32 s69, s69, 16")
    A("s_cbranch_scc0 L_h_bpoll")
    A("s_mov_b32 s69, 0")
    A("s_waitcnt vmcnt(0)")
    Lb("L_h_bpoll_ok")
    A("s_cmp_ge_u32 s29, 18")
    A("s_cbranch_scc1 L_h_pvpre")
    final_srds(SOUT, False)
    A("s_lshl_b32 s33, s29, 5")
    A(f"v_lshrrev_b32 v{HT}, 3, v2")
    A(f"v_mul_u32_u24 v{HT}, {8*SLOT2}, v{HT}")
    A(f"v_and_b32 v{HT+1}, 7, v2")
    A(f"v_lshl_add_u32 v{HT+1}, v{HT+1}, 2, s33")
    A(f"v_lshl_add_u32 v{GS}, v{HT+1}, 2, v{HT}")
    A(f"v_bfe_u32 v{HT+2}, v2, 4, 1")
    A(f"v_lshrrev_b32 v{HT+3}, 5, v2")
    A(f"v_lshl_add_u32 v{HT+2}, v{HT+2}, 1, v{HT+3}")
    A(f"v_add_lshl_u32 v{HOA}, v{HT+2}, v{HT+1}, 1")
    srd(20, SB2, None, 1152)
    A(f"buffer_load_ushort v{HXV}, v{HOA}, s[8:11], s68 offen")
    A(f"buffer_load_ushort v{HB2}, v{HOA}, s[20:23], 0 offen")
    A("s_waitcnt vmcnt(0)")
    A(f"v_lshlrev_b32 v{HXV}, 16, v{HXV}")
    A(f"v_lshlrev_b32 v{HB2}, 16, v{HB2}")
    A(f"v_mov_b32 v{HT}, {OOB}")
    A(f"v_and_b32 v{HT+1}, 8, v2")
    A(f"v_cmp_eq_u32 vcc, 0, v{HT+1}")
    A("s_nop 1")
    A(f"v_cndmask_b32 v{HOA}, v{HT}, v{HOA}, vcc")
    A(f"v_lshl_add_u32 v{HT}, v2, 4, v{HLB}")
    A(f"ds_write_b128 v{HT}, {vr(HB2,4)} offset:{O_CX}")
    A("s_call_b64 s[62:63], L_sub_final")
    if warm2:
        for r in range(32, 64):
            A(f"v_mov_b32 v{r}, -1")
        A("s_call_b64 s[62:63], L_f_g_again")
    A("s_waitcnt vmcnt(0)")

    Lb("L_h_pvpre")
    PT = 28
    pv_masks(VM, HC, PT)
    for r in range(4):
        A(f"v_mov_b32 v{VACC+r}, 0")
    stamp(10)
    lds_spin("L_h_smwait", HLB, O_CNT + C_SM, PT, 8, sleep=4)
    A("s_lshl_b32 s3, s28, 3")
    A(f"v_add_u32 v{PT}, s3, v{HLB}")
    A(f"ds_read_b32 v{PT+1}, v{PT} offset:{O_ST}")
    A("s_lshl_b32 s3, s28, 9")
    A(f"v_lshl_add_u32 v{PT}, v2, 2, v{HLB}")
    A(f"v_add_u32 v{PT}, s3, v{PT}")
    A(f"ds_read_b32 v{VPC}, v{PT} offset:{O_E}")
    A(f"ds_read_b32 v{VPC+1}, v{PT} offset:{O_E+256}")
    softmax_factor(HLB, RING, PT, PT + 1)
    for u in range(2):
        A(f"v_mul_f32 v{VPC+u}, v{VPC+u}, v{PT}")
        A(f"v_cvt_pk_bf16_f32 v{VPC+u}, v{VPC+u}, v{VPC+u}")
    A("s_lshl_b32 s3, s28, 15")
    A(f"v_lshl_add_u32 v{PT}, v2, 4, s3")
    A("s_mov_b32 s34, 2")
    Lb("L_h_pv")
    for i in range(16):
        if i == 8:
            A("s_waitcnt lgkmcnt(0)")
        A(f"ds_read_b128 {vr(RING+4*i,4)}, v{PT} offset:{i*1024}")
    A("s_waitcnt lgkmcnt(0)")
    A("s_call_b64 s[62:63], L_sub_pv")
    A(f"v_mov_b32 v{VPC}, v{VPC+1}")
    A(f"v_add_u32 v{PT}, 16384, v{PT}")
    A("s_sub_u32 s34, s34, 1")
    A("s_cmp_lg_u32 s34, 0")
    A("s_cbranch_scc1 L_h_pv")
    A(f"v_lshl_add_u32 v{PT}, v0, 3, v{HLB}")
    A("s_nop 1")
    A(f"ds_write_b64 v{PT}, {vr(VACC,2)} offset:{O_OP}")
    for r in range(5):
        A(f"v_mov_b32 v{GT+r}, v{GH+r}")
    A("s_waitcnt lgkmcnt(0)")
    lds_arrive(HLB, O_CNT + C_PV, 3)
    for r in range(36):
        A(f"v_mov_b32 v{HD+r}, 0")
    lds_spin("L_h_pvwait", HLB, O_CNT + C_PV, HT, 4)
    for k in range(4):
        A(f"ds_read_b64 {vr(OR+2*k,2)}, v{HOP} offset:{O_OP+512*(4+k)}")
    A("s_waitcnt lgkmcnt(0)")
    for r in range(2):
        A(f"v_add_f32 v{OR+r}, v{OR+r}, v{OR+2+r}")
        A(f"v_add_f32 v{OR+4+r}, v{OR+4+r}, v{OR+6+r}")
        A(f"v_add_f32 v{PS+r}, v{OR+r}, v{OR+4+r}")
    if smf:
        set_idx()
    stamp(11)
    A("s_setprio 2")
    A("s_barrier")
    stamp(12)
    A("s_call_b64 s[62:63], L_sub_gemv")
    stamp(13)
    if b4 == 2:
        A("s_waitcnt vmcnt(0)")
    if b4:
        A("s_barrier")

    Lb("L_fin")
    if fixdur:
        Lb("L_fix")
        A("s_memrealtime s[76:77]")
        A("s_waitcnt lgkmcnt(0)")
        A("s_sub_u32 s76, s76, s74")
        A(f"s_cmp_lt_u32 s76, {fixdur*100}")
        A("s_cbranch_scc1 L_fix")
    if stamps:
        A("s_waitcnt vmcnt(0)")
        stamp(15)
        A(f"v_writelane_b32 v{VST}, s74, 0")
        A("s_getreg_b32 s70, hwreg(HW_REG_XCC_ID)")
        A(f"v_writelane_b32 v{VST}, s70, 16")
        A("s_getreg_b32 s70, hwreg(HW_REG_HW_ID)")
        A(f"v_writelane_b32 v{VST}, s70, 63")
        A(f"s_add_u32 s72, s72, {WS_STAMP}")
        A("s_addc_u32 s73, s73, 0")
        A("s_lshl_b32 s3, s2, 11")
        A("v_lshlrev_b32 v0, 2, v0")
        A("v_add_u32 v0, s3, v0")
        A(f"global_store_dword v0, v{VST}, s[72:73]")
    Lb("L_end")
    A("s_endpgm")

    Lb("L_sub_load")
    if noslab:
        A("s_setpc_b64 s[62:63]")

    freg = (lambda sg, t: HF + 72 * (sg >> 1) + 8 * t + 4 * (sg & 1)) if smf else (lambda sg, t: HF + 36 * sg + 4 * t)

    def issue_pair(n):
        sl = ST + 10 * (n % NSL)
        A(f"s_mov_b32 s33, {8*n*1152}")
        A(f"s_mov_b32 s34, {(8*n+4)*1152}")
        A(f"buffer_load_dwordx4 {vr(sl,4)}, v{HVB}, s[20:23], s33 offen {spol}")
        A(f"buffer_load_dwordx4 {vr(sl+4,4)}, v{HVB}, s[20:23], s34 offen {spol}")
        A(f"buffer_load_ushort v{sl+8}, v{HVS}, s[20:23], s33 offen {spol}")
        A(f"buffer_load_ushort v{sl+9}, v{HVS}, s[20:23], s34 offen {spol}")

    for n in range(NSL):
        issue_pair(n)
    for n in range(16):
        sg, r = n >> 2, n & 3
        sl = ST + 10 * (n % NSL)
        A(f"s_waitcnt vmcnt({4 * (min(n + NSL, 16) - n - 1)})")
        for t in range(8):
            A(f"v_perm_b32 v{freg(sg,t)+r}, v{sl+4+(t>>1)}, v{sl+(t>>1)}, s{94+(t&1)}")
        A(f"v_lshl_or_b32 v{freg(sg,8)+r}, v{sl+9}, 16, v{sl+8}")
        if n + NSL < 16:
            if hs:
                A(f"s_sleep {hs}")
            issue_pair(n + NSL)
    A("s_setpc_b64 s[62:63]")

    Lb("L_sub_gemv")
    for k in range(4):
        A(f"ds_read_b64 {vr(OR+2*k,2)}, v{HOP} offset:{O_OP+512*k}")
    if not nog:
        A(f"buffer_store_dwordx4 {vr(GT,4)}, v{HPM}, s[24:27], 0 offen {ypol}")
        A(f"buffer_store_dword v{GT+4}, v{HPR}, s[24:27], 0 offen {ypol}")
    if smf:
        A("s_waitcnt lgkmcnt(2)")
        A(f"v_pk_add_f32 {vr(OR,2)}, {vr(OR,2)}, {vr(PS,2)}")
        A(f"v_pk_add_f32 {vr(OR,2)}, {vr(OR,2)}, {vr(OR+2,2)}")
        A("s_waitcnt lgkmcnt(0)")
        A(f"v_pk_add_f32 {vr(OR,2)}, {vr(OR,2)}, {vr(OR+4,2)}")
        A(f"v_pk_add_f32 {vr(OR,2)}, {vr(OR,2)}, {vr(OR+6,2)}")
        A(f"v_cvt_pk_bf16_f32 v{HA}, v{OR}, v{OR+1}")
        A("s_nop 1")
        bc = [f"v_mov_b32_dpp v{HA+n}, v{HA} row_shl:{8*(n>>2)+(n&3)} {DPP_ALL}" for n in range(1, 8)]
        for n in range(5):
            A(bc.pop(0))
        tail = []
        for S in range(2):
            order = range(9) if S == 0 else (8, 0, 4, 1, 5, 2, 6, 3, 7)
            for t in order:
                A(f"v_smfmac_f32_16x16x64_bf16 {vr(HD+4*t,4)}, {vr(HA+4*S,4)}, {vr(freg(2*S,t),8)}, v{IDX}")
                if bc:
                    A(bc.pop(0))
        A("s_nop 3")
        A(f"v_permlane16_swap_b32 v{HD+32}, v{HD+33}")
        A(f"v_add_f32 v{HD+32}, v{HD+32}, v{HD+33}")
        A(f"buffer_store_dword v{HD+32}, v{HPR}, s[24:27], 0 offen offset:{SLOT} {ypol}")
        for r in range(4):
            A(f"v_permlane16_swap_b32 v{HD+4*r}, v{HD+16+4*r}")
            A(f"v_add_f32 v{OR+4+r}, v{HD+4*r}, v{HD+16+4*r}")
    else:
        for k in range(4):
            A(f"s_waitcnt lgkmcnt({3-k})")
            src = PS if k == 0 else OR + 2 * k
            A(f"v_add_f32 v{OR}, v{OR}, v{src}")
            A(f"v_add_f32 v{OR+1}, v{OR+1}, v{src+1}")
        A(f"v_cvt_pk_bf16_f32 v{OR}, v{OR}, v{OR+1}")
        A("s_nop 1")
        bc = [f"v_mov_b32_dpp v{HA+n}, v{OR} row_newbcast:{n} {DPP_ALL}" for n in range(16)]
        for n in range(6):
            A(bc.pop(0))
        for sg in range(4):
            order = range(9) if sg < 3 else (8, 0, 4, 1, 5, 2, 6, 3, 7)
            for t in order:
                A(f"v_mfma_f32_16x16x32_bf16 {vr(HD+4*t,4)}, {vr(HA+4*sg,4)}, {vr(HF+36*sg+4*t,4)}, {vr(HD+4*t,4)}")
                if bc:
                    A(bc.pop(0))
        A(f"buffer_store_dword v{HD+32}, v{HPR}, s[24:27], 0 offen offset:{SLOT} {ypol}")
        A("s_nop 3")
        for r in range(4):
            A(f"v_cndmask_b32 v{OR+4+r}, v{HD+4*r}, v{HD+16+4*r}, s[96:97]")
    A(f"buffer_store_dwordx4 {vr(OR+4,4)}, v{HPM}, s[24:27], 0 offen offset:{SLOT} {ypol}")
    A("s_setpc_b64 s[62:63]")

    GA, YA, SA = 32, 48, HA
    Lb("L_sub_final")

    def part_load(base, off, k):
        so = "0" if k == 0 else f"s{64+k}"
        A(f"buffer_load_dwordx4 {vr(base+4*k,4)}, v{GS}, s[12:15], {so} offen offset:{off} {lpol}")

    def reload(base, off, tag, done):
        for k in range(4):
            A(f"v_max3_u32 v{SA+8+k}, v{base+4*k}, v{base+4*k+1}, v{base+4*k+2}")
        for k in range(4):
            A(f"v_max_u32 v{SA+8+k}, v{SA+8+k}, v{base+4*k+3}")
        for k in range(4):
            A(f"v_cmp_eq_u32 s[{80+2*k}:{81+2*k}], -1, v{SA+8+k}")
        A("s_or_b64 s[88:89], s[80:81], s[82:83]")
        A("s_or_b64 s[90:91], s[84:85], s[86:87]")
        A("s_or_b64 s[88:89], s[88:89], s[90:91]")
        A(f"s_cbranch_scc0 {done}")
        for k in range(4):
            A(f"s_mov_b64 exec, s[{80+2*k}:{81+2*k}]")
            A(f"s_cbranch_execz L_f{tag}{k}")
            part_load(base, off, k)
            Lb(f"L_f{tag}{k}")
        A("s_mov_b64 exec, -1")

    def total(base):
        for r in (0, 2):
            A(f"v_pk_add_f32 {vr(SA+r,2)}, {vr(base+r,2)}, {vr(base+4+r,2)}")
            A(f"v_pk_add_f32 {vr(SA+4+r,2)}, {vr(base+8+r,2)}, {vr(base+12+r,2)}")
        for r in (0, 2):
            A(f"v_pk_add_f32 {vr(SA+r,2)}, {vr(SA+r,2)}, {vr(SA+4+r,2)}")
        A("s_nop 0")
        A(f"v_permlane32_swap_b32 v{SA}, v{SA+1}")
        A(f"v_permlane32_swap_b32 v{SA+2}, v{SA+3}")
        A(f"v_add_f32 v{SA}, v{SA}, v{SA+1}")
        A(f"v_add_f32 v{SA+2}, v{SA+2}, v{SA+3}")
        A("s_nop 1")
        A(f"v_permlane16_swap_b32 v{SA}, v{SA+2}")
        A(f"v_add_f32 v{SA}, v{SA}, v{SA+2}")
        A("s_nop 1")
        A(f"v_add_f32_dpp v{SA}, v{SA}, v{SA} row_ror:8 {DPP_ALL}")
        A(f"v_cmp_u_f32 vcc, v{SA}, v{SA}")
        bfround(SA, SA)

    for base, off in ((GA, 0), (YA, SLOT)):
        for k in range(4):
            part_load(base, off, k)
    A("s_waitcnt vmcnt(4)")
    Lb("L_f_g")
    total(GA)
    A("s_cbranch_vccnz L_f_g_again")
    Lb("L_f_gate")
    stamp(11)
    A(f"v_add_f32 v{HT+1}, v{SA}, v{HB2}")
    bfround(HT + 1, HT + 1)
    A(f"v_mul_f32 v{HT}, {f32(-LOG2E)}, v{HT+1}")
    A(f"v_exp_f32 v{HT}, v{HT}")
    A("s_nop 0")
    A(f"v_add_f32 v{HT}, 1.0, v{HT}")
    A(f"v_rcp_f32 v{HT}, v{HT}")
    A("s_nop 0")
    A(f"v_mul_f32 v{HT+1}, v{HT+1}, v{HT}")
    bfround(HT + 1, HT + 1)
    Lb("L_f_y")
    A("s_waitcnt vmcnt(0)")
    total(YA)
    A("s_cbranch_vccnz L_f_y_again")
    Lb("L_f_out")
    stamp(12)
    A(f"v_mul_f32 v{HT}, v{SA}, v{HT+1}")
    bfround(HT, HT)
    A(f"v_add_f32 v{HT}, v{HT}, v{HXV}")
    A(f"v_cvt_pk_bf16_f32 v{HT}, v{HT}, v{HT}")
    A(f"buffer_store_short v{HT}, v{HOA}, s[16:19], s68 offen {outpol}")
    A("s_setpc_b64 s[62:63]")
    Lb("L_f_y_again")
    reload(YA, SLOT, "y", "L_f_out")
    A("s_sub_u32 s69, s69, 4")
    A("s_cbranch_scc0 L_f_y")
    A("s_mov_b32 s69, 0")
    A("s_setpc_b64 s[62:63]")
    Lb("L_f_g_again")
    reload(GA, 0, "g", "L_f_gate")
    A("s_waitcnt vmcnt(0)")
    A("s_sub_u32 s69, s69, 4")
    A("s_cbranch_scc0 L_f_g")
    A("s_mov_b32 s69, 0")
    A("s_setpc_b64 s[62:63]")

    o[:] = o[:head_end] + o[helper_start:] + o[head_end:helper_start]
    o.append("L_code_end:")
    o.append('.section .rodata,"a"')
    o.append(".p2align 6")
    o.append(f".amdhsa_kernel {NAME}_kernel")
    o.append("  .amdhsa_next_free_vgpr 256")
    o.append("  .amdhsa_next_free_sgpr 100")
    o.append("  .amdhsa_accum_offset 256")
    o.append("  .amdhsa_group_segment_fixed_size 0")
    o.append("  .amdhsa_kernarg_size 104")
    o.append("  .amdhsa_user_sgpr_count 2")
    o.append("  .amdhsa_user_sgpr_kernarg_segment_ptr 1")
    o.append("  .amdhsa_system_sgpr_workgroup_id_x 1")
    o.append("  .amdhsa_float_denorm_mode_32 3")
    o.append(".end_amdhsa_kernel")
    return "\n".join(o) + "\n"


if __name__ == "__main__":
    cfg = json.loads(sys.argv[2]) if len(sys.argv) > 2 else {}
    open(sys.argv[1], "w").write(gen(**cfg))
```

```python
import struct, sys, json

NAME = "recurrent_scan__mha_block_cached__dense_activation_gelu__decode"
HEADER = open("header.txt").read()

WS_G = 0x000000
SLOT = 2304
SLOT2 = 2 * SLOT
WS_S = 0x200000
WS_STAMP = 0x20000000

L_V = 0x00000
L_B = 0x20000
O_OP = 0x0000
O_E = 0x1000
O_ST = 0x1800
O_CNT = 0x1840
O_Q = 0x1880
O_HR = 0x1980
O_XN = 0x19C0
O_CX = 0x2300
O_HS = 0x2700
LDS_BYTES = L_B + 0x2800
C_CL, C_S1, C_Q, C_H, C_SM, C_PV = 0, 4, 8, 12, 16, 20

LOG2E = 1.4426950408889634
OOB = "0x10000000"


def f32(x):
    return "0x%08x" % struct.unpack("<I", struct.pack("<f", x))[0]


def vr(a, n=1):
    return f"v{a}" if n == 1 else f"v[{a}:{a+n-1}]"


DPP_ALL = "row_mask:0xf bank_mask:0xf"


def cl(i):
    return ((i & 1) << 3) | (((i >> 1) & 1) << 2) | (i >> 2)


def gen(D=5, D0=5.5, DK=0, DV=0, DT=0, stamps=False, hprio=1, kvpol="nt", wpol="", spol="",
        NSL=1, xown=False, pf=2, xs0=0, xs1=0, fixdur=0,
        ctl=True, DL=(4, 5, 6, 8), TH=(-25, 20, 60), LOOK=1, SSTR=40*128,
        fs=0, fslow=0, fthr=16, outpol="sc0 sc1", fwait=True, ypol="sc1", lpol="sc1", wb=(16, 13), tb=(14, 19), gb=(15, 17, 18, 12), mid=True, ramp=(0, 0), nop1=False, noclear=False, fakew=False, nonarrow=False, f0=0, nog=False, fa=(175, 5, 150), b4=1, warm2=True, DLK=(4, 5.5, 7, 7), noslab=False, hs=0, NQ=4, ring3=True, rot=True, ncl=64, clat="start", srot=4, slew=6, first=0, cpf=1, prior=868, wstart=5, gx=(), st0=False, smf=True, pf1=False, order="vwrp", N0=4, probe=0):
    o = []
    cur = [o]
    A = lambda s: cur[0].append("  " + s)
    Lb = lambda s: cur[0].append(s + ":")

    def capture(fn):
        tmp = []
        cur[0] = tmp
        fn()
        cur[0] = o
        return tmp

    VST = 1
    DLV = DL
    assert sorted(list(wb) + list(tb) + list(gb)) == list(range(12, 20))
    dep = lambda v, pos: sum(((v >> k) & 1) << p for k, p in enumerate(pos))
    TOFF = [dep(k, tb) for k in range(4)]
    D0 = D0 or D; DK = DK or D; DV = DV or D; DT = DT or DV
    pace = lambda d, i: f"s_waitcnt vmcnt({int(d + (0.5 if i & 1 else 0)) - 1})"

    def stamp(i):
        if stamps and (stamps != "lite" or i in (0, 15)):
            A("s_memrealtime s[70:71]")
            A("s_waitcnt lgkmcnt(0)")
            A(f"v_writelane_b32 v{VST}, s70, {i}")

    def bfround(dst, src):
        A(f"v_cvt_pk_bf16_f32 v{dst}, v{src}, v{src}")
        A(f"v_and_b32 v{dst}, 0xffff0000, v{dst}")

    def allreduce_row(op, v):
        for sh in (8, 4, 2, 1):
            A("s_nop 1")
            A(f"{op}_dpp v{v}, v{v}, v{v} row_ror:{sh} {DPP_ALL}")

    def swap_reduce(op, v, t, which):
        A(f"v_mov_b32 v{t}, v{v}")
        A("s_nop 1")
        A(f"v_permlane{which}_swap_b32 v{t}, v{v}")
        A("s_nop 1")
        A(f"{op} v{v}, v{v}, v{t}")

    def lds_spin(label, vaddr, off, vtmp, target, sleep=1):
        Lb(label)
        A(f"ds_read_b32 v{vtmp}, v{vaddr} offset:{off}")
        A("s_waitcnt lgkmcnt(0)")
        A(f"v_readfirstlane_b32 s3, v{vtmp}")
        A(f"s_cmp_ge_u32 s3, {target}")
        A(f"s_cbranch_scc1 {label}_ok")
        if sleep:
            A(f"s_sleep {sleep}")
        A("s_sub_u32 s69, s69, 1")
        A(f"s_cbranch_scc0 {label}")
        A("s_mov_b32 s69, 0")
        Lb(label + "_ok")

    def lds_arrive(vaddr, off, vone):
        A("s_mov_b64 exec, 1")
        A(f"ds_add_u32 v{vaddr}, v{vone} offset:{off}")
        A("s_mov_b64 exec, -1")

    def pv_masks(vm, vc, t0):
        A(f"v_and_b32 v{t0}, 4, v{vc}")
        A(f"v_lshlrev_b32 v{t0}, 2, v{t0}")
        A(f"v_mov_b32 v{t0+1}, 0xffff")
        A(f"v_lshlrev_b32 v{t0}, v{t0}, v{t0+1}")
        A(f"v_and_b32 v{t0+1}, 3, v{vc}")
        A(f"v_lshrrev_b32 v{vm}, 3, v{vc}")
        A(f"v_lshl_add_u32 v{t0+1}, v{t0+1}, 1, v{vm}")
        for r in range(4):
            A(f"v_cmp_eq_u32 vcc, {r}, v{t0+1}")
            A("s_nop 1")
            A(f"v_cndmask_b32 v{vm+r}, 0, v{t0}, vcc")

    def softmax_factor(vbase, vst, vf, vown):
        A(f"ds_read_b128 {vr(vst,4)}, v{vbase} offset:{O_ST}")
        A(f"ds_read_b128 {vr(vst+4,4)}, v{vbase} offset:{O_ST+16}")
        A("s_waitcnt lgkmcnt(0)")
        m, t = vst + 8, vst + 9
        A(f"v_max3_f32 v{m}, v{vst}, v{vst+2}, v{vst+4}")
        A(f"v_max_f32 v{m}, v{m}, v{vst+6}")
        for k in range(4):
            A(f"v_sub_f32 v{vst+2*k}, v{vst+2*k}, v{m}")
        A(f"v_sub_f32 v{t}, v{vown}, v{m}")
        for k in range(4):
            A(f"v_mul_f32 v{vst+2*k}, {f32(LOG2E)}, v{vst+2*k}")
        A(f"v_mul_f32 v{t}, {f32(LOG2E)}, v{t}")
        for k in range(4):
            A(f"v_exp_f32 v{vst+2*k}, v{vst+2*k}")
        A(f"v_exp_f32 v{t}, v{t}")
        A(f"v_mul_f32 v{m}, v{vst}, v{vst+1}")
        for k in range(1, 4):
            A(f"v_fmac_f32 v{m}, v{vst+2*k}, v{vst+2*k+1}")
        A(f"v_rcp_f32 v{m}, v{m}")
        A("s_nop 0")
        A(f"v_mul_f32 v{vf}, v{t}, v{m}")

    o.append(HEADER.rstrip())
    o.append(f"; @launch grid=(256,1,1) block=(512,1,1) lds={LDS_BYTES}")
    o.append('.amdgcn_target "amdgcn-amd-amdhsa--gfx950"')
    o.append(".text")
    o.append(f".globl {NAME}_kernel")
    o.append(".p2align 8")
    o.append(f".type {NAME}_kernel,@function")
    Lb(f"{NAME}_kernel")
    A("s_cmp_ge_u32 s2, 256")
    A("s_cbranch_scc1 L_end")
    if fixdur or stamps or st0:
        A("s_memrealtime s[74:75]")
    SX, SK, SV, SWQ, SWO, SW1, SB1, SW2, SB2, SOUT, SDBG, SWS = 36, 38, 40, 42, 44, 48, 50, 52, 54, 56, 58, 60
    A("s_load_dwordx16 s[36:51], s[0:1], 0")
    A("s_load_dwordx8 s[52:59], s[0:1], 64")
    A("s_load_dwordx2 s[60:61], s[0:1], 96")
    A("v_lshrrev_b32 v1, 6, v0")
    A("v_and_b32 v2, 63, v0")
    A("v_readfirstlane_b32 s28, v1")
    A(f"v_mov_b32 v6, {L_B}")
    A("v_mov_b32 v8, 0")
    A("v_mov_b32 v9, 0")
    A("v_lshl_add_u32 v7, v0, 3, v6")
    A(f"ds_write_b64 v7, v[8:9] offset:{O_OP}")
    A("v_and_b32 v4, 15, v2")
    A("v_lshl_add_u32 v7, v4, 2, v6")
    A(f"ds_write_b32 v7, v8 offset:{O_CNT}")
    A("v_lshlrev_b32 v3, 4, v2")
    A("v_and_b32 v7, 1, v1")
    A(f"v_lshl_add_u32 v3, v7, {wb[0]}, v3")
    A("v_bfe_u32 v7, v1, 1, 1")
    A(f"v_lshl_add_u32 v3, v7, {wb[1]}, v3")
    for k, p in gx:
        assert p in gb
        A(f"s_bfe_u32 s3, s2, {k | (1 << 16)}")
        A(f"s_lshl_b32 s3, s3, {p}")
        A("v_xor_b32 v3, s3, v3")
    A("s_lshl_b32 s3, s2, 20")
    A("s_mov_b32 s18, 0x100000")
    A("s_mov_b32 s19, 0x20000")
    A("s_mov_b32 s69, 0x200000")
    A(f"s_mov_b32 s33, {TOFF[1]}")
    if stamps:
        A(f"v_mov_b32 v{VST}, 0")
    A("s_cmp_ge_u32 s28, 4")
    A("s_waitcnt lgkmcnt(0)")
    if stamps:
        A("s_mov_b64 s[72:73], s[60:61]")
    A("s_cbranch_scc1 L_helper")

    HB2, HXV, HOA, GS = 12, 13, 14, 15

    def srd(n, base, off_s, size):
        if off_s is None:
            A(f"s_mov_b32 s{n}, s{base}")
            A(f"s_mov_b32 s{n+1}, s{base+1}")
        else:
            A(f"s_add_u32 s{n}, s{base}, {off_s}")
            A(f"s_addc_u32 s{n+1}, s{base+1}, 0")
        A(f"s_mov_b32 s{n+2}, {size}")
        A(f"s_mov_b32 s{n+3}, 0x20000")

    def final_srds(out_ptr, live):
        A("s_lshr_b32 s68, s2, 5")
        A(f"s_mul_i32 s3, s68, {SLOT2}")
        srd(12, SWS, "s3", 249 * SLOT2 if live else 0)
        srd(16, out_ptr, None, 9216 if live else 0)
        for k in (1, 2, 3):
            A(f"s_mov_b32 s{64+k}, {64*k*SLOT2}")
        A("s_mul_i32 s68, s68, 1152")

    VQ, VP, VA0, VA1, VB, VC, VS, VMAX = 4, 8, 10, 11, 12, 13, 14, 15
    VE, VM, VAO, VACC = 16, 32, 36, 44
    RING, RING2, VT, VLB = 48, 112, 176, 188
    VPC, VN = VE + 2, VE + 1
    def ring_load(i, ring=RING):
        so = "0" if i < 4 else f"s{36+i//4}"
        A(f"buffer_load_dwordx4 {vr(ring+4*i,4)}, v3, s[16:19], {so} offen offset:{(i%4)*1024} {kvpol}")

    VB0 = 189

    def next_group():
        A("s_add_u32 s29, s29, 1")
        runs = []
        for k, p in enumerate(gb):
            if runs and p == runs[-1][1] + runs[-1][2]:
                runs[-1][2] += 1
            else:
                runs.append([k, p, 1])
        for n, (k, p, w) in enumerate(runs):
            d = "s35" if n == 0 else "s3"
            A(f"s_bfe_u32 {d}, s29, {k | (w << 16)}")
            A(f"s_lshl_b32 {d}, {d}, {p}")
            if n:
                A("s_or_b32 s35, s35, s3")
        A(f"v_xor_b32 v3, s35, v{VB0}")

    A(f"s_add_u32 s16, s{SK}, s3")
    A(f"s_addc_u32 s17, s{SK+1}, 0")
    for i in range(int(D0)):
        A(f"buffer_load_dwordx4 {vr(RING+4*i,4)}, v3, s[16:19], {'0' if i < 4 else 's33'} offen offset:{(i%4)*1024} {kvpol}")
    stamp(6)
    A("s_barrier")
    A("s_branch L_streamer")
    head_end = len(o)
    Lb("L_streamer")
    stamp(7)
    A(f"s_add_u32 s12, s{SV}, s3")
    A(f"s_addc_u32 s13, s{SV+1}, 0")
    A("s_mov_b32 s14, 0x100000")
    A("s_mov_b32 s15, 0x20000")
    for k in (1, 2, 3):
        A(f"s_mov_b32 s{36+k}, {TOFF[k]}")
    A(f"v_mov_b32 v{VLB}, {L_B}")
    A(f"v_mov_b32 v{VB0}, v3")
    A(f"s_mov_b64 s[6:7], s[{SOUT}:{SOUT+1}]")
    if pf:
        A("s_and_b32 s33, s2, 31")
        A("s_lshr_b32 s34, s2, 5")
        A(f"s_mul_i32 s3, s33, {128*1152}")
        A(f"s_mul_i32 s35, s34, {16*1152}")
        A("s_add_u32 s3, s3, s35")
        srd(8, SWO, "s3", 16 * 1152)
        A("s_and_b32 s3, s2, 7")
        A("s_lshl_b32 s3, s3, 2")
        A("s_lshr_b32 s33, s33, 3")
        A("s_add_u32 s3, s3, s33")
        A(f"s_mul_i32 s3, s3, {144*1152}")
        A(f"s_mul_i32 s35, s34, {18*1152}")
        A("s_add_u32 s3, s3, s35")
        srd(24, SW2, "s3", 18 * 1152)
    if pf1:
        A("s_and_b32 s3, s2, 7")
        A("s_mul_i32 s3, s3, 1152")
        A("s_lshr_b32 s33, s2, 3")
        A(f"s_mul_i32 s33, s33, {18*9216}")
        A("s_add_u32 s3, s3, s33")
        srd(64, SW1, "s3", 17 * 9216 + 1152)
    A("s_mov_b32 s29, 0")
    for k in (1, 2, 3):
        A(f"s_mov_b32 s{38+2*k}, 0x{(0x11111111 << k) & 0xffffffff:08x}")
        A(f"s_mov_b32 s{39+2*k}, 0x{(0x11111111 << k) & 0xffffffff:08x}")
    if ctl:
        A("s_lshr_b32 s3, s2, 5")
        A("s_and_b32 s54, s2, 31")
        if srot == 16:
            A("s_lshr_b32 s35, s54, 3")
            A("s_lshl_b32 s35, s35, 2")
            A("s_add_u32 s35, s35, s28")
            A("s_lshl_b32 s35, s35, 7")
            A("s_and_b32 s54, s54, 7")
        else:
            A("s_lshl_b32 s35, s28, 7")
        A("s_cmp_eq_u32 s54, s3")
        A("s_cselect_b32 s54, s35, -1")
        A(f"s_mul_i32 s3, s3, {SSTR}")
        A(f"s_add_u32 s3, s3, {WS_S}")
        A(f"s_add_u32 s20, s{SWS}, s3")
        A(f"s_addc_u32 s21, s{SWS+1}, 0")
        A(f"s_movk_i32 s22, {40*128}")
        A("s_mov_b32 s23, 0x20000")
        A(f"s_add_u32 s46, s{SWS}, {WS_S - LOOK*128}")
        A(f"s_addc_u32 s47, s{SWS+1}, 0")
        A("s_mov_b32 s48, 0")
    A(f"v_and_b32 v{VT+2}, 15, v2")
    A(f"v_lshl_add_u32 v{VT+3}, v{VT+2}, 4, v{VLB}")
    pv_masks(VM, VT + 2, VT)
    for r in range(4):
        A(f"v_mov_b32 v{VACC+r}, 0")
    for i in range(int(D0), 16):
        A(pace(D0, i))
        ring_load(i)
        if i in (int(D0), 2 * int(D0), 15):
            stamp({int(D0): 8, 2 * int(D0): 9, 15: 10}[i])
    RING3 = 190

    def pre_v():
        A(f"v_xor_b32 v{VT+4}, {dep(14, gb)}, v3")
        A("s_lshl_b32 s33, s28, 15")
        A("s_mov_b32 s35, 2")
        Lb("L_vdma")
        for i in range(16):
            if i % 4 == 0:
                A("s_mov_b32 m0, s33")
                A("s_add_u32 s33, s33, 4096")
            A(pace(D0, i))
            A(f"buffer_load_dwordx4 v{VT+4}, s[12:15], {'0' if i < 4 else 's%d' % (36+i//4)} offen offset:{(i%4)*1024} {kvpol} lds")
        A(f"v_xor_b32 v{VT+4}, {dep(1, gb)}, v{VT+4}")
        A("s_sub_u32 s35, s35, 1")
        A("s_cmp_lg_u32 s35, 0")
        A("s_cbranch_scc1 L_vdma")

    def pre_r():
        if ring3:
            A(f"v_xor_b32 v{VT+4}, {dep(13, gb)}, v3")
            for i in range(16):
                A(pace(D0, i))
                A(f"buffer_load_dwordx4 {vr(RING3+4*i,4)}, v{VT+4}, s[12:15], {'0' if i < 4 else 's%d' % (36+i//4)} offen offset:{(i%4)*1024} {kvpol}")

    def pre_p():
        if pf:
            A(f"v_lshlrev_b32 v{VT+4}, 4, v0")
            for n, (sr, cnt) in enumerate(((24, 6), (8, 5))):
                for k in range(cnt):
                    A(f"s_movk_i32 s3, {4096*k}")
                    A(pace(D0, k))
                    A(f"buffer_load_dwordx4 {vr(RING2+4*(6*n+k),4)}, v{VT+4}, s[{sr}:{sr+3}], s3 offen")

    def pre_w():
        if pf1:
            for k in range(6):
                A(f"v_add_u32 v{VT+4}, {256*k}, v0")
                A(f"v_mul_u32_u24 v{VT+5}, 58255, v{VT+4}")
                A(f"v_lshrrev_b32 v{VT+5}, 22, v{VT+5}")
                A(f"v_mul_u32_u24 v{VT+5}, {9216-1152}, v{VT+5}")
                A(f"v_lshl_add_u32 v{VT+4}, v{VT+4}, 4, v{VT+5}")
                A(pace(D0, k))
                A(f"buffer_load_dwordx4 {vr(RING2+44+4*(k%5),4)}, v{VT+4}, s[64:67], 0 offen")

    for ch in order:
        {"v": pre_v, "r": pre_r, "p": pre_p, "w": pre_w}[ch]()
    stamp(1)
    lds_spin("L_qwait", VLB, O_CNT + C_Q, VT, 1, sleep=0)
    A(f"ds_read_b128 {vr(VQ,4)}, v{VT+3} offset:{O_Q}")
    A("s_mov_b32 s34, 16")
    if ctl:
        A("s_memrealtime s[50:51]")
    stamp(2)
    A("s_waitcnt lgkmcnt(0)")
    if ctl:
        for r in (49, 52, 53, 56, 57):
            A(f"s_mov_b32 s{r}, s50")

    def loop_stamp(base):
        if stamps and stamps != "lite":
            A("s_memrealtime s[70:71]")
            A(f"s_sub_u32 m0, {base}, s34")
            A("s_waitcnt lgkmcnt(0)")
            A(f"v_writelane_b32 v{VST}, s70, m0")

    ckn = [0]

    def level(lag):
        return [f"s_add_u32 s93, {lag}, 1500", "s_cmp_lt_u32 s93, 3000", f"s_cselect_b32 {lag}, {lag}, {TH[0]}",
                f"s_cmp_ge_i32 {lag}, {TH[1]}", "s_cselect_b64 vcc, -1, 0", "s_cselect_b32 s93, s5, s4",
                f"s_cmp_ge_i32 {lag}, s93", "s_cselect_b32 s90, 1, 0"]

    def decide(last=False):
        if not ctl:
            return
        A("s_waitcnt lgkmcnt(0)")
        A("s_sub_u32 s55, s50, s49")
        for l in level("s55"):
            A(l)

    def atoms():
        if not ctl:
            return {}
        ckn[0] += 1
        n = ckn[0]
        at = {}
        at[0] = [f"s_and_b32 s93, s48, {(srot-1)*128}", "s_cmp_lg_u32 s54, s93", f"s_cbranch_scc1 L_ck{n}_nopub", f"v_mov_b32 v{VT+11}, s50", "s_mov_b64 exec, 1",
                 f"buffer_store_dword v{VT+11}, off, s[20:23], s48 sc1", "s_mov_b64 exec, -1", f"L_ck{n}_nopub:"]
        at[1] = ["s_add_u32 s88, s46, s48", "s_addc_u32 s89, s47, 0", f"s_cmp_lt_u32 s48, {LOOK*128}", f"s_cbranch_scc1 L_ck{n}_early"]
        at[1] += [f"s_load_dword s{80+j}, s[88:89], {j*SSTR}" for j in range(8)] + [f"L_ck{n}_early:"]
        if ramp[0]:
            at[3] = [f"s_add_u32 s4, s4, {ramp[1]}", f"s_min_i32 s4, s4, {TH[0]}"]
        if mid:
            at[6] = ["s_memrealtime s[98:99]", "s_lshr_b32 s93, s92, 3", "s_add_u32 s49, s49, s93"]
            at[7] = ["s_waitcnt lgkmcnt(0)", "s_sub_u32 s55, s98, s49"] + level("s55")
            at[8] = [f"s_sub_u32 s{80+j}, s50, s{80+j}" for j in range(8)] + ["s_max_u32 s91, s80, s81", "s_add_u32 s55, s80, s81"]
        else:
            at[7] = ["s_waitcnt lgkmcnt(0)"] + [f"s_sub_u32 s{80+j}, s50, s{80+j}" for j in range(4)]
            at[8] = [f"s_sub_u32 s{80+j}, s50, s{80+j}" for j in range(4, 8)] + ["s_max_u32 s91, s80, s81", "s_add_u32 s55, s80, s81"]
        at[9] = sum(([f"s_max_u32 s91, s91, s{80+j}", f"s_add_u32 s55, s55, s{80+j}"] for j in range(2, 5)), [])
        at[10] = sum(([f"s_max_u32 s91, s91, s{80+j}", f"s_add_u32 s55, s55, s{80+j}"] for j in range(5, 8)), [])
        if prior:
            at[11] = ["s_lshr_b32 s55, s55, 3", "s_sub_u32 s55, s50, s55", "s_lshr_b32 s49, s92, 2", "s_add_u32 s49, s49, s52",
                      "s_cmp_lt_u32 s91, 2500", "s_cselect_b32 s55, s55, s49"]
            at[12] = ["s_sub_u32 s91, s55, s57", f"s_add_u32 s49, s92, {slew}", "s_min_u32 s91, s91, s49",
                      f"s_sub_u32 s49, s92, {slew}", "s_max_u32 s91, s91, s49",
                      f"s_cmp_ge_u32 s48, {(LOOK+wstart)*128}", "s_cselect_b32 s92, s91, s92", f"s_mul_i32 s91, s92, {LOOK+1}"]
        else:
            at[11] = ["s_lshr_b32 s55, s55, 3", "s_sub_u32 s55, s50, s55", "s_lshl_b32 s49, s52, 1", "s_sub_u32 s49, s49, s53",
                      "s_cmp_lt_u32 s91, 2500", "s_cselect_b32 s55, s55, s49"]
            at[12] = ["s_sub_u32 s91, s55, s53", "s_lshl_b32 s91, s91, 1", "s_sub_u32 s49, s55, s57",
                      f"s_cmp_ge_u32 s48, {(LOOK+5)*128}", "s_cselect_b32 s91, s49, s91"]
            if slew:
                at[12] += [f"s_add_u32 s49, s92, {slew}", "s_min_u32 s49, s49, s91", f"s_cmp_gt_u32 s48, {(LOOK+5)*128}",
                           "s_cselect_b32 s91, s49, s91"]
            at[12] += ["s_mov_b32 s92, s91", f"s_mul_i32 s91, s91, {LOOK+1}"]
        at[13] = ["s_lshr_b32 s91, s91, 2", "s_add_u32 s49, s55, s91", "s_mov_b32 s57, s56", "s_mov_b32 s56, s53",
                  "s_mov_b32 s53, s52", "s_mov_b32 s52, s55"]
        at[14] = ["s_add_u32 s91, s50, 0x40000000", f"s_cmp_lt_u32 s48, {(LOOK+first)*128}", "s_cselect_b32 s49, s91, s49",
                  "s_add_u32 s48, s48, 128", "s_memrealtime s[50:51]"]
        return at

    def emit_atom(at, i, restore=True):
        if i in at:
            for l in at[i]:
                if l.endswith(":"):
                    Lb(l[:-1])
                else:
                    A(l)
            if restore:
                A("s_cmp_lg_u32 s90, 0")

    def cpace(d, i, tag):
        if not ctl:
            A(pace(d, i))
            return
        DL = DLK if (tag == "pk" and DLK) else DLV
        A(f"s_cbranch_vccnz L_{tag}a{i}")
        A(f"s_cbranch_scc1 L_{tag}b{i}")
        A(pace(DL[0], i))
        Lb(f"L_{tag}b{i}")
        A(pace(DL[1], i))
        Lb(f"L_{tag}a{i}")
        if DL[3] != DL[2]:
            A(f"s_cbranch_scc1 L_{tag}c{i}")
            A(pace(DL[2], i))
            Lb(f"L_{tag}c{i}")
        A(pace(DL[3], i))

    def red_a(i):
        j = i & 3
        dst = VA0 if j < 2 else VA1
        bm = "0x3" if (j & 1) == 0 else "0xc"
        p = VP + (i & 1)
        A(f"v_add_f32_dpp v{dst}, v{p}, v{p} row_ror:8 row_mask:0xf bank_mask:{bm}")

    def red_b(which):
        src = VA0 if which == 0 else VA1
        bm = "0x5" if which == 0 else "0xa"
        A(f"v_add_f32_dpp v{VB}, v{src}, v{src} row_half_mirror row_mask:0xf bank_mask:{bm}")

    def red_c():
        A(f"v_add_f32_dpp v{VC}, v{VB}, v{VB} quad_perm:[1,0,3,2] {DPP_ALL}")

    def red_d(k):
        dst = VS if k == 0 else VB
        A(f"v_add_f32_dpp v{dst}, v{VC}, v{VC} quad_perm:[2,3,0,1] {DPP_ALL}")

    def red_e(k):
        if k:
            A(f"v_cndmask_b32 v{VS}, v{VS}, v{VB}, s[{38+2*k}:{39+2*k}]")

    def post_a():
        if probe < 1:
            bfround(VS, VS)
        A(f"v_mul_f32 v{VS}, {f32(128 ** -0.5)}, v{VS}")

    def post_b():
        if probe < 2:
            bfround(VE + 15, VS)
        else:
            A(f"v_mov_b32 v{VE+15}, v{VS}")

    if ctl:
        A("s_add_u32 s49, s49, 0x40000000")
        A(f"s_mov_b32 s92, {prior}")
        A(f"s_mov_b32 s4, {TH[0] - ramp[0]*ramp[1]}")
        A(f"s_mov_b32 s5, {TH[2]}")
    Lb("L_kloop")
    loop_stamp(33)
    next_group()
    A("s_cmp_eq_u32 s34, 1")
    A("s_cselect_b32 s16, s12, s16")
    A("s_cselect_b32 s17, s13, s17")
    decide()
    at = atoms()
    for i in range(16):
        k, j = i >> 2, i & 3
        p = VP + (i & 1)
        R = RING + 4 * i
        A(f"v_dot2_f32_bf16 v{p}, v{R}, v{VQ}, 0")
        A(f"v_dot2_f32_bf16 v{p}, v{R+1}, v{VQ+1}, v{p}")
        red_a((i - 1) & 15)
        A(f"v_dot2_f32_bf16 v{p}, v{R+2}, v{VQ+2}, v{p}")
        if j == 0:
            red_b(0)
        elif j == 1:
            red_b(1)
        elif j == 2:
            red_c()
        else:
            red_d((k - 1) & 3)
        A(f"v_dot2_f32_bf16 v{p}, v{R+3}, v{VQ+3}, v{p}")
        cpace(DK, i, "pk")
        ring_load(i)
        if j == 3:
            red_e((k - 1) & 3)
        if i == 4:
            post_a()
        if i == 5:
            post_b()
        if i < 15:
            A(f"v_mov_b32 v{VE+i}, v{VE+i+1}")
        emit_atom(at, i)
    A("s_sub_u32 s34, s34, 1")
    A("s_cmp_lg_u32 s34, 0")
    A("s_cbranch_scc1 L_kloop")
    stamp(3)

    def sm_a():
        red_a(15)
        red_b(0)
        A("s_nop 0")
        red_b(1)
        A("s_nop 1")
        red_c()
        A("s_nop 1")
        red_d(3)
        red_e(3)
        post_a()
        post_b()
        A(f"v_max3_f32 v{VMAX}, v{VE}, v{VE+1}, v{VE+2}")
        for u in range(3, 15, 2):
            A(f"v_max3_f32 v{VMAX}, v{VMAX}, v{VE+u}, v{VE+u+1}")
        A(f"v_max_f32 v{VMAX}, v{VMAX}, v{VE+15}")
        allreduce_row("v_max_f32", VMAX)
        swap_reduce("v_max_f32", VMAX, VT, 16)
        swap_reduce("v_max_f32", VMAX, VT, 32)
        for u in range(16):
            A(f"v_sub_f32 v{VE+u}, v{VE+u}, v{VMAX}")
        for u in range(16):
            A(f"v_mul_f32 v{VE+u}, {f32(LOG2E)}, v{VE+u}")
        for u in range(16):
            A(f"v_exp_f32 v{VE+u}, v{VE+u}")
        A(f"v_add_f32 v{VS}, v{VE}, v{VE+1}")
        for u in range(2, 16):
            A(f"v_add_f32 v{VS}, v{VS}, v{VE+u}")
        A(f"s_lshl_b32 s3, s28, 9")
        A(f"v_lshl_add_u32 v{VT+2}, v2, 2, v{VLB}")
        A(f"v_add_u32 v{VT+2}, s3, v{VT+2}")
        A(f"ds_write_b32 v{VT+2}, v{VE+14} offset:{O_E}")
        A(f"ds_write_b32 v{VT+2}, v{VE+15} offset:{O_E+256}")
        allreduce_row("v_add_f32", VS)
        swap_reduce("v_add_f32", VS, VT, 16)
        swap_reduce("v_add_f32", VS, VT, 32)
        A(f"s_lshl_b32 s3, s28, 3")
        A(f"v_add_u32 v{VT+2}, s3, v{VLB}")
        A(f"ds_write_b32 v{VT+2}, v{VMAX} offset:{O_ST}")
        A(f"ds_write_b32 v{VT+2}, v{VS} offset:{O_ST+4}")
        A(f"v_mov_b32 v{VT+3}, 1")

    def sm_b():
        softmax_factor(VLB, VT, VS, VMAX)
        for u in range(14):
            A(f"v_mul_f32 v{VE+u}, v{VE+u}, v{VS}")
        for u in range(14):
            A(f"v_cvt_pk_bf16_f32 v{VE+u}, v{VE+u}, v{VE+u}")

    nxt = [0]

    def issue2():
        i = nxt[0]
        if ctl:
            A("s_cmp_lg_u32 s90, 0")
        cpace(DT, i, "pt")
        ring_load(i, RING2)
        emit_atom(at, i, restore=False)
        nxt[0] += 1

    def weave(lines, n):
        step = (len(lines) + n - 1) // n
        for a in range(0, len(lines), step):
            issue2()
            o.extend(lines[a:a + step])

    if stamps:
        A("s_mov_b32 s34, 14")
        loop_stamp(47)
    next_group()
    decide()
    at = atoms()
    weave(capture(sm_a), 6)
    A("s_waitcnt lgkmcnt(0)")
    lds_arrive(VLB, O_CNT + C_SM, VT + 3)
    while nxt[0] < 12:
        issue2()
    lds_spin("L_smwait", VLB, O_CNT + C_SM, VT, 8, sleep=0)
    weave(capture(sm_b), 4)
    while nxt[0] < 16:
        issue2()
    stamp(4)

    def build_a(n, i, vp):
        for r in range(4):
            A(f"v_and_b32_dpp v{VAO+4*(n&1)+r}, v{vp}, v{VM+r} row_newbcast:{cl(i)} {DPP_ALL}")

    def pv_mfma(n, reg):
        A(f"v_mfma_f32_16x16x32_bf16 {vr(VACC,4)}, {vr(VAO+4*(n&1),4)}, {vr(reg,4)}, {vr(VACC,4)}")

    if stamps:
        A("s_mov_b32 s34, 13")
        loop_stamp(47)
    next_group()
    decide()
    at = atoms()
    build_a(0, 0, VE)
    for i in range(16):
        build_a(1, i, VE + 1)
        pv_mfma(0, RING + 4 * i)
        cpace(DV, i, "px")
        ring_load(i)
        if ring3:
            build_a(0, i, VE + 13)
            pv_mfma(1, RING2 + 4 * i)
            A("s_nop 0")
            pv_mfma(0, RING3 + 4 * i)
            build_a(0, (i + 1) & 15, VE if i < 15 else VPC)
        else:
            build_a(0, (i + 1) & 15, VE if i < 15 else VPC)
            pv_mfma(1, RING2 + 4 * i)
        emit_atom(at, i)
    A(f"s_mov_b32 s34, {10 if ring3 else 11}")

    Lb("L_vloop")
    loop_stamp(45 if ring3 else 46)
    next_group()
    decide(True)
    at = atoms()
    for i in range(16):
        pv_mfma(i, RING + 4 * i)
        cpace(DV, i, "pv")
        ring_load(i)
        build_a(i + 1, (i + 1) & 15, VPC if i < 15 else VN)
        if i == 0:
            A(f"v_mov_b32 v{VN}, v{VPC+1}")
        if 1 <= i <= 10:
            A(f"v_mov_b32 v{VPC+i}, v{VPC+i+1}")
        if i == 15:
            A(f"v_mov_b32 v{VPC}, v{VN}")
        emit_atom(at, i)
        if i > 10 and i < 15 and i not in at:
            A("s_nop 0")
        if i < 15 and i not in at:
            A("s_nop 0")
    A("s_sub_u32 s34, s34, 1")
    A("s_cmp_lg_u32 s34, 0")
    A("s_cbranch_scc1 L_vloop")
    loop_stamp(46)
    if ring3 and stamps and stamps != "lite":
        A(f"v_writelane_b32 v{VST}, s70, 45")
    A(f"v_lshl_add_u32 v{VT}, v0, 3, v{VLB}")
    A("s_call_b64 s[62:63], L_sub_pv")
    A("s_nop 6")
    A(f"ds_write_b64 v{VT}, {vr(VACC,2)} offset:{O_OP}")
    A("s_waitcnt lgkmcnt(0)")
    stamp(5)
    A("s_barrier")
    if stamps == "lite":
        A("s_memrealtime s[70:71]")
        A("s_waitcnt lgkmcnt(0)")
        A(f"v_writelane_b32 v{VST}, s70, 5")
    A("s_and_b32 s3, s2, 31")
    A("s_lshl_b32 s33, s28, 5")
    A("s_add_u32 s3, s3, s33")
    A("s_cmp_ge_u32 s3, 18")
    A("s_cbranch_scc1 L_fin")
    A(f"v_lshl_add_u32 v{VT}, v2, 4, v{VLB}")
    A(f"ds_read_b128 {vr(HB2,4)}, v{VT} offset:{O_CX}")
    final_srds(6, True)
    if b4:
        A("s_barrier")
    if f0:
        A(f"s_sleep {f0}")
    if fa:
        A("s_memrealtime s[50:51]")
        A("s_waitcnt lgkmcnt(0)")
        A("s_sub_u32 s3, s49, s50")
        A(f"s_add_u32 s3, s3, {fa[0]}")
        A(f"s_max_i32 s3, s3, {fa[1]}")
        A(f"s_min_i32 s3, s3, {fa[2]}")
        Lb("L_backoff")
        A("s_sleep 1")
        A("s_sub_u32 s3, s3, 4")
        A("s_cbranch_scc0 L_backoff")
    A("s_waitcnt lgkmcnt(0)")
    A("s_call_b64 s[62:63], L_sub_final")
    stamp(14)
    A("s_branch L_fin" if (stamps or fixdur) else "s_endpgm")

    Lb("L_sub_pv")
    build_a(0, 0, VPC)
    for i in range(16):
        if i < 15:
            build_a(i + 1, i + 1, VPC)
        if 15 - i < int((DL[3] if ctl else DV) + 0.5):
            A(f"s_waitcnt vmcnt({15-i})")
        pv_mfma(i, RING + 4 * i)
    A("s_setpc_b64 s[62:63]")

    HC, HG, HLB = 4, 5, 6
    HVB, HVS = 7, 8
    HPM, HPR = 9, 10
    HOP = 11
    HD = 16
    HF2 = 64
    HT = 64
    HA = 88
    XO, XP, XZ, XE = 104, 105, 106, 107
    HF = 112
    ST = 28
    GH, GT = 20, 82

    helper_start = len(o)
    Lb("L_helper")
    if hprio:
        A(f"s_setprio {hprio}")
    A(f"v_and_b32 v{HT}, 31, v2")
    A(f"v_mul_u32_u24 v{HT}, 36, v{HT}")
    A("s_lshr_b32 s30, s2, 5")
    A("s_mul_i32 s68, s30, 1152")
    XR = 52
    srd(8, SX, None, 9216)
    A(f"buffer_load_dwordx4 {vr(XR,4)}, v{HT}, s[8:11], s68 offen")
    A(f"buffer_load_dwordx4 {vr(XR+4,4)}, v{HT}, s[8:11], s68 offen offset:16")
    A(f"buffer_load_dword v{XR+8}, v{HT}, s[8:11], s68 offen offset:32")
    A("s_barrier")
    A("s_sub_u32 s28, s28, 4")
    if cpf:
        A("s_getpc_b64 s[34:35]")
        Lb("L_pc")
        A("s_lshr_b32 s3, s2, 3")
        A("s_lshl_b32 s3, s3, 10")
        A(f"v_subrev_u32 v{HT+8}, 256, v0")
        A(f"v_lshl_add_u32 v{HT+8}, v{HT+8}, 2, s3")
        A(f"v_min_u32 v{HT+8}, L_code_end-L_pc-4, v{HT+8}")
        A(f"v_mov_b32 v{HT+9}, s35")
        A(f"v_add_co_u32 v{HT+8}, vcc, s34, v{HT+8}")
        A("s_nop 1")
        A(f"v_addc_co_u32 v{HT+9}, vcc, 0, v{HT+9}, vcc")
        A(f"global_load_dword v{HT+10}, {vr(HT+8,2)}, off")
    A("s_and_b32 s29, s2, 31")
    A(f"v_lshrrev_b32 v{HG}, 4, v2")
    HRW, HW1, HXA = HT + 1, HT + 2, HT + 3
    A("s_mul_i32 s3, s28, 144")
    A(f"v_lshl_add_u32 v{HRW}, v{HG}, 2, s3")
    A(f"v_lshlrev_b32 v{HW1}, 13, v{HRW}")
    A(f"v_lshl_add_u32 v{HW1}, v{HC}, 4, v{HW1}")
    A("s_lshl_b32 s3, s29, 8")
    srd(12, SWQ, "s3", 575 * 8192 + 256)

    per = 256 // ncl

    def is_marker(label):
        A("s_add_u32 s3, s29, 3")
        A("s_xor_b32 s3, s3, s30")
        A(f"s_and_b32 s3, s3, {per-1}")
        A(f"s_cbranch_scc1 {label}")

    def marker_index():
        A("s_lshl_b32 s3, s29, 3")
        A("s_add_u32 s3, s3, s30")
        A(f"s_lshr_b32 s3, s3, {per.bit_length()-1}")

    def mark_stores():
        is_marker("L_h_nomark")
        marker_index()
        A(f"s_mul_i32 s3, s3, {per*SLOT2}")
        srd(20, SWS, "s3", 0 if noclear else per * SLOT2)
        for r in range(4):
            A(f"v_mov_b32 v{48+r}, -1")
        A(f"v_subrev_u32 v{HT+5}, 256, v0")
        A(f"v_lshlrev_b32 v{HT+5}, 4, v{HT+5}")
        A("s_mov_b32 s35, 0")
        for k in range((per * SLOT2 + 4095) // 4096):
            A(f"buffer_store_dwordx4 {vr(48,4)}, v{HT+5}, s[20:23], s35 offen sc1")
            A("s_add_u32 s35, s35, 4096")
        Lb("L_h_nomark")

    def mark_report():
        is_marker("L_h_noreport")
        marker_index()
        A(f"s_lshl_b32 s3, s3, {3 if ncl == 32 else 2}")
        A(f"v_mov_b32 v{HT+6}, s3")
        A("s_waitcnt vmcnt(0)")
        A("s_mov_b64 exec, 1")
        A(f"ds_add_rtn_u32 v{HT+5}, v{HLB}, v3 offset:{O_CNT+C_CL}")
        A("s_waitcnt lgkmcnt(0)")
        A(f"v_readfirstlane_b32 s3, v{HT+5}")
        A("s_cmp_lg_u32 s3, 3")
        A("s_cbranch_scc1 L_h_noflag")
        A(f"global_store_dword v{HT+6}, v3, s[{SDBG}:{SDBG+1}] sc1")
        Lb("L_h_noflag")
        A("s_mov_b64 exec, -1")
        Lb("L_h_noreport")

    if clat == "start":
        mark_stores()

    def bump(r):
        A(f"s_add_u32 {r}, {r}, 1")
        A(f"s_cmp_eq_u32 {r}, 9")
        A(f"s_cselect_b32 {r}, 0, {r}")

    A("s_mov_b32 s32, s30" if rot else "s_mov_b32 s32, 0")
    A("s_mov_b32 s33, s32")
    def q_first(n):
        st, j = n >> 2, n & 3
        if j == 0:
            A("s_lshl_b32 s34, s33, 17")
        if n >= N0:
            A(pace(NQ, n))
        A(f"buffer_load_dwordx4 {vr(HF+16*st+4*j,4)}, v{HW1}, s[12:15], s34 offen {wpol}")
        A("s_add_u32 s34, s34, 8192")
        if j == 3:
            bump("s33")

    for n in range(N0):
        q_first(n)
    stamp(16 + 1)
    A(f"s_waitcnt vmcnt({N0})")
    ln_start = len(o)

    Lb("L_h_ln")
    stamp(1)
    A("s_mov_b32 s94, 0x05040100")
    A("s_mov_b32 s95, 0x07060302")
    XF = HD
    SUM, T1, MEAN = 34, 35, 36
    for d in range(9):
        A(f"v_lshlrev_b32 v{XF+2*d}, 16, v{XR+d}")
        A(f"v_and_b32 v{XF+2*d+1}, 0xffff0000, v{XR+d}")
    A(f"v_add_f32 v{SUM}, v{XF}, v{XF+1}")
    for e in range(2, 18):
        A(f"v_add_f32 v{SUM}, v{SUM}, v{XF+e}")
    allreduce_row("v_add_f32", SUM)
    swap_reduce("v_add_f32", SUM, T1, 16)
    A(f"v_mul_f32 v{MEAN}, {f32(1/576)}, v{SUM}")
    A(f"v_mov_b32 v{SUM}, 0")
    for e in range(18):
        t = 38 + (e & 1)
        A(f"v_sub_f32 v{t}, v{XF+e}, v{MEAN}")
        A(f"v_fmac_f32 v{SUM}, v{t}, v{t}")
    allreduce_row("v_add_f32", SUM)
    swap_reduce("v_add_f32", SUM, T1, 16)
    A(f"v_mul_f32 v{SUM}, {f32(1/576)}, v{SUM}")
    bfround(MEAN, MEAN)
    bfround(SUM, SUM)
    A(f"v_add_f32 v{SUM}, {f32(1e-5)}, v{SUM}")
    bfround(SUM, SUM)
    A(f"v_sqrt_f32 v{SUM}, v{SUM}")
    A("s_nop 0")
    bfround(SUM, SUM)
    A(f"v_rcp_f32 v{SUM}, v{SUM}")
    for e in range(18):
        A(f"v_sub_f32 v{XF+e}, v{XF+e}, v{MEAN}")
    for d in range(9):
        A(f"v_cvt_pk_bf16_f32 v{XR+d}, v{XF+2*d}, v{XF+2*d+1}")
    for d in range(9):
        A(f"v_lshlrev_b32 v{XF+2*d}, 16, v{XR+d}")
        A(f"v_and_b32 v{XF+2*d+1}, 0xffff0000, v{XR+d}")
    for e in range(18):
        A(f"v_mul_f32 v{XF+e}, v{XF+e}, v{SUM}")
    for e in range(18):
        A(f"v_cvt_pk_bf16_f32 v{XF+e}, v{XF+e}, v{XF+e}")
    ln_code = o[ln_start:]
    del o[ln_start:]
    rest = list(range(N0, 8))
    step = (len(ln_code) + len(rest) - 1) // max(len(rest), 1)
    for n in rest:
        o.extend(ln_code[:step]); ln_code = ln_code[step:]
        q_first(n)
    o.extend(ln_code)
    A(f"v_lshl_add_u32 v{HT}, v{HT}, 1, v{HLB}")
    A(f"v_lshrrev_b32 v{HXA}, 3, v2")
    A(f"v_mov_b32 v3, 1")
    A(f"v_cmp_eq_u32 vcc, s28, v{HXA}")
    A("s_and_saveexec_b64 s[34:35], vcc")
    for d in range(9):
        A(f"ds_write_b64 v{HT}, {vr(XF+2*d,2)} offset:{O_XN+8*d}")
    A("s_mov_b64 exec, -1")
    A(f"v_lshl_add_u32 v{HXA}, v{HRW}, 2, v{HLB}")
    A("s_waitcnt lgkmcnt(0)")
    pv_masks(VM, HC, HT + 4)
    for r in range(4):
        A(f"v_mov_b32 v{VACC+r}, 0")
    stamp(2)
    XV = 48

    def read_x():
        A("s_lshl_b32 s3, s32, 6")
        A(f"v_add_u32 v{HT+4}, s3, v{HXA}")
        A(f"ds_read_b128 {vr(XV,4)}, v{HT+4} offset:{O_XN}")

    def diag(j):
        for r in range(4):
            A(f"v_and_b32 v{VAO+4*(j&1)+r}, v{XV+j}, v{VM+r}")

    A("s_mov_b32 s77, 2")
    Lb("L_h_q")
    for st in range(2):
        read_x()
        bump("s32")
        A("s_lshl_b32 s34, s33, 17")
        A("s_cmp_ge_u32 s77, 9")
        A(f"s_cselect_b32 s34, {OOB}, s34")
        bump("s33")
        A("s_add_u32 s77, s77, 1")
        A("s_waitcnt lgkmcnt(0)")
        for j in range(4):
            diag(j)
            A(pace(min(8, NQ), j))
            A("s_nop 0")
            pv_mfma(j, HF + 16 * st + 4 * j)
            A(f"buffer_load_dwordx4 {vr(HF+16*st+4*j,4)}, v{HW1}, s[12:15], s34 offen {wpol}")
            A("s_add_u32 s34, s34, 8192")
        if st == 0:
            A("s_cmp_eq_u32 s77, 11")
            A("s_cbranch_scc1 L_h_q_done")
    A("s_branch L_h_q")
    Lb("L_h_q_done")
    A(f"v_subrev_u32 v{HT+4}, 256, v0")
    A(f"v_lshl_add_u32 v{HT+4}, v{HT+4}, 3, v{HLB}")
    A("s_nop 1")
    A(f"ds_write_b64 v{HT+4}, {vr(VACC,2)} offset:{O_E}")
    A("s_waitcnt lgkmcnt(0)")
    A("s_mov_b64 exec, 1")
    A(f"ds_add_rtn_u32 v{HT+5}, v{HLB}, v3 offset:{O_CNT+C_S1}")
    A("s_mov_b64 exec, -1")
    A(f"v_lshl_add_u32 v{HOP}, v2, 3, v{HLB}")
    A("s_waitcnt lgkmcnt(0)")
    A(f"v_readfirstlane_b32 s3, v{HT+5}")
    stamp(3)
    A("s_cmp_lg_u32 s3, 3")
    A("s_cbranch_scc1 L_h_q_out")
    for k in range(4):
        A(f"ds_read_b64 {vr(XV+2*k,2)}, v{HOP} offset:{O_E+512*k}")
    A(f"v_lshl_add_u32 v{HT+5}, v{HC}, 3, v{HG}")
    A(f"v_lshl_add_u32 v{HT+5}, v{HT+5}, 1, v{HLB}")
    A("s_waitcnt lgkmcnt(0)")
    A(f"v_pk_add_f32 {vr(XV,2)}, {vr(XV,2)}, {vr(XV+2,2)}")
    A(f"v_pk_add_f32 {vr(XV+4,2)}, {vr(XV+4,2)}, {vr(XV+6,2)}")
    A(f"v_pk_add_f32 {vr(XV,2)}, {vr(XV,2)}, {vr(XV+4,2)}")
    A(f"v_cvt_pk_bf16_f32 v{XV}, v{XV}, v{XV+1}")
    A(f"ds_write_b16 v{HT+5}, v{XV} offset:{O_Q}")
    A(f"ds_write_b16_d16_hi v{HT+5}, v{XV} offset:{O_Q+8}")
    A("s_waitcnt lgkmcnt(0)")
    A(f"ds_write_b32 v{HLB}, v3 offset:{O_CNT+C_Q}")
    stamp(6)
    Lb("L_h_q_out")
    if hprio:
        A("s_setprio 0")

    if st0:
        A("s_cmp_lg_u32 s28, 3")
        A("s_cbranch_scc1 L_nost0")
        A("s_lshl_b32 s3, s2, 7")
        A(f"s_add_u32 s3, s3, {WS_STAMP}")
        A(f"v_mov_b32 v{HT+8}, s3")
        A(f"v_mov_b32 v{HT+9}, s74")
        A("s_mov_b64 exec, 1")
        A(f"global_store_dword v{HT+8}, v{HT+9}, s[{SWS}:{SWS+1}] sc1")
        A("s_mov_b64 exec, -1")
        Lb("L_nost0")
    if clat == "q":
        mark_stores()
    if clat != "h":
        mark_report()

    A("s_and_b32 s31, s2, 7")
    A("s_lshl_b32 s31, s31, 2")
    A("s_lshr_b32 s3, s29, 3")
    A("s_add_u32 s31, s31, s3")
    A("s_mul_i32 s3, s31, 288")
    srd(12, SW1, "s3", 575 * 9216 + 288)
    srd(20, SB1, "s3", 288)
    HN1, GB = HT + 5, 60
    A(f"v_mul_u32_u24 v{HW1}, 9216, v{HRW}")
    A(f"v_lshl_add_u32 v{HN1}, v{HC}, 1, v{HW1}")
    A(f"v_lshl_add_u32 v{HW1}, v{HC}, 4, v{HW1}")
    if smf:
        A(f"v_and_b32 v{HT+6}, 8, v2")
        A(f"v_bfe_u32 v{HT+7}, v2, 5, 1")
        A(f"v_lshl_add_u32 v{HT+6}, v{HT+7}, 2, v{HT+6}")
        A(f"v_and_b32 v{HT+7}, 1, v2")
        A(f"v_lshl_add_u32 v{HT+6}, v{HT+7}, 1, v{HT+6}")
        A(f"v_bfe_u32 v{HT+7}, v2, 2, 1")
        A(f"v_add_u32 v{HT+6}, v{HT+6}, v{HT+7}")
        A(f"v_bfe_u32 v{HT+7}, v2, 4, 1")
        A(f"v_bfe_u32 v{HT+8}, v2, 1, 1")
        A(f"v_lshl_add_u32 v{HT+7}, v{HT+7}, 1, v{HT+8}")
        A(f"v_lshl_add_u32 v{HOP}, v{HT+7}, 4, v{HT+6}")
        A(f"v_lshl_add_u32 v{HOP}, v{HOP}, 3, v{HLB}")
        A(f"v_lshl_add_u32 v{HT+6}, v{HT+6}, 3, v{HT+7}")
    else:
        A(f"v_lshl_add_u32 v{HT+6}, v{HC}, 3, v{HG}")
    A(f"v_lshlrev_b32 v{HT+6}, 1, v{HT+6}")
    A(f"v_lshlrev_b32 v{HT+7}, 1, v{HC}")
    A("s_waitcnt vmcnt(0)")
    A(f"buffer_load_ushort v{GB}, v{HT+6}, s[20:23], 0 offen")
    A(f"buffer_load_ushort v{GB+1}, v{HT+6}, s[20:23], 0 offen offset:8")
    A(f"buffer_load_ushort v{GB+2}, v{HT+7}, s[20:23], 0 offen offset:256")
    RA, PA, PB = 52, 56, 58
    for r in range(4):
        A(f"v_mov_b32 v{VACC+r}, 0")
        A(f"v_mov_b32 v{RA+r}, 0")
    A("s_mov_b32 s32, s30" if rot else "s_mov_b32 s32, 0")
    A("s_mov_b32 s77, 9")
    Lb("L_h_h")
    read_x()
    A(f"s_mul_i32 s34, s32, {16*9216}")
    bump("s32")
    for half in range(2):
        for j in (2 * half, 2 * half + 1):
            A(f"buffer_load_dwordx4 {vr(HF+4*j,4)}, v{HW1}, s[12:15], s34 offen {wpol}")
            A(f"buffer_load_ushort v{HF+16+j}, v{HN1}, s[12:15], s34 offen offset:256 {wpol}")
            A("s_add_u32 s34, s34, 9216")
        A("s_waitcnt lgkmcnt(0)")
        diag(2 * half)
        diag(2 * half + 1)
        A(f"v_perm_b32 v{PA+half}, v{XV+2*half+1}, v{XV+2*half}, s94")
        A("s_waitcnt vmcnt(0)")
        A(f"v_lshl_or_b32 v{PB+half}, v{HF+17+2*half}, 16, v{HF+16+2*half}")
        pv_mfma(2 * half, HF + 8 * half)
        pv_mfma(2 * half + 1, HF + 8 * half + 4)
    A(f"v_mfma_f32_16x16x16_bf16 {vr(RA,4)}, {vr(PA,2)}, {vr(PB,2)}, {vr(RA,4)}")
    A("s_sub_u32 s77, s77, 1")
    A("s_cmp_lg_u32 s77, 0")
    A("s_cbranch_scc1 L_h_h")
    A(f"v_lshl_add_u32 v{HT+4}, v0, 3, v{HLB}")
    A("s_lshl_b32 s3, s28, 6")
    A(f"v_lshl_add_u32 v{HT+6}, v{HC}, 2, v{HLB}")
    A(f"v_add_u32 v{HT+6}, s3, v{HT+6}")
    A("s_nop 1")
    A(f"ds_write_b64 v{HT+4}, {vr(VACC,2)} offset:{O_OP}")
    A(f"ds_write_b32 v{HT+6}, v{RA} offset:{O_HS}")
    A("s_waitcnt lgkmcnt(0)")
    lds_arrive(HLB, O_CNT + C_H, 3)
    stamp(4)
    if clat == "h":
        mark_stores()
        mark_report()
    A(f"v_mul_u32_u24 v{HVB}, 1152, v{HG}")
    A(f"v_lshl_add_u32 v{HVS}, v{HC}, 1, v{HVB}")
    A("s_lshl_b32 s3, s28, 5")
    A("s_add_u32 s3, s3, 1024")
    A(f"v_add_u32 v{HVS}, s3, v{HVS}")
    A("s_lshl_b32 s3, s28, 8")
    A(f"v_lshl_add_u32 v{HVB}, v{HC}, 4, v{HVB}")
    A(f"v_add_u32 v{HVB}, s3, v{HVB}")
    A(f"v_lshlrev_b32 v{HPM}, 5, v{HC}")
    A(f"v_lshl_add_u32 v{HPM}, v{HG}, 4, v{HPM}")
    A("s_lshl_b32 s3, s28, 9")
    A(f"v_add_u32 v{HPM}, s3, v{HPM}")
    A(f"v_mov_b32 v{HT}, {OOB}")
    A(f"v_cmp_gt_u32 vcc, 2, v{HG}")
    A("s_lshl_b32 s3, s28, 6")
    A("s_add_u32 s3, s3, 2048")
    A(f"v_cndmask_b32 v{HPM}, v{HT}, v{HPM}, vcc")
    A(f"v_lshl_add_u32 v{HPR}, v{HC}, 2, s3")
    A(f"v_cmp_eq_u32 vcc, 0, v{HG}")
    A("s_nop 1")
    A(f"v_cndmask_b32 v{HPR}, v{HT}, v{HPR}, vcc")
    A(f"s_mov_b32 s96, {'0xf0f0f0f0' if smf else '0xffff0000'}")
    A("s_mov_b32 s97, s96")

    A(f"s_mul_i32 s3, s31, {144*1152}")
    srd(20, SW2, "s3", 144 * 1152)
    HT = 104
    PS = 110
    for e in range(4):
        A(f"s_mov_b32 s33, {(128+4*e)*1152}")
        A(f"buffer_load_dwordx4 {vr(ST+4*e,4)}, v{HVB}, s[20:23], s33 offen {spol}")
        A(f"buffer_load_ushort v{ST+16+e}, v{HVS}, s[20:23], s33 offen {spol}")
    A("s_waitcnt vmcnt(0)")
    for r in range(2):
        for t in range(8):
            lo = ST + 8 * r + (t >> 1)
            A(f"v_perm_b32 v{HF2+2*t+r}, v{lo+4}, v{lo}, s{94+(t&1)}")
        A(f"v_lshl_or_b32 v{HF2+16+r}, v{ST+17+2*r}, 16, v{ST+16+2*r}")
    A("s_call_b64 s[62:63], L_sub_load")
    stamp(7)
    lds_spin("L_h_hwait", HLB, O_CNT + C_H, HT, 4)
    GL = 16
    A(f"v_lshl_add_u32 v{HT}, v{HC}, 2, v{HLB}")
    for k in range(4):
        A(f"ds_read_b64 {vr(GL+4*k,2)}, v{HOP} offset:{O_OP+512*(4+k)}")
        A(f"ds_read_b32 v{GL+4*k+2}, v{HT} offset:{O_HS+64*k}")
    A(f"v_and_b32 v{HT}, 3, v{HC}")
    A(f"v_lshrrev_b32 v{HT+1}, 2, v{HC}")
    A(f"v_lshl_add_u32 v{HT}, v{HT}, 2, v{HT+1}")
    A(f"v_lshl_add_u32 v{HT}, v{HT}, 1, v{HLB}")
    A("s_waitcnt lgkmcnt(0)")
    c1 = -2.0 * LOG2E * 0.7978845608028654
    for r in range(3):
        A(f"v_add_f32 v{GL+r}, v{GL+r}, v{GL+4+r}")
        A(f"v_add_f32 v{GL+8+r}, v{GL+8+r}, v{GL+12+r}")
        A(f"v_add_f32 v{GL+r}, v{GL+r}, v{GL+8+r}")
        bfround(GL + r, GL + r)
        A(f"v_lshlrev_b32 v{GB+r}, 16, v{GB+r}")
        A(f"v_add_f32 v{GL+r}, v{GL+r}, v{GB+r}")
        bfround(GL + r, GL + r)
        A(f"v_mul_f32 v{GB+r}, v{GL+r}, v{GL+r}")
        A(f"v_mov_b32 v{GL+3}, {f32(c1)}")
        A(f"v_fmac_f32 v{GL+3}, {f32(c1*0.044715)}, v{GB+r}")
        A(f"v_mul_f32 v{GB+r}, v{GL+3}, v{GL+r}")
        A(f"v_exp_f32 v{GB+r}, v{GB+r}")
        A("s_nop 0")
        A(f"v_add_f32 v{GB+r}, 1.0, v{GB+r}")
        A(f"v_rcp_f32 v{GB+r}, v{GB+r}")
        A("s_nop 0")
        A(f"v_mul_f32 v{GL+r}, v{GL+r}, v{GB+r}")
        bfround(PS + r if r < 2 else GL + r, GL + r)
    A(f"ds_write_b16_d16_hi v{HT}, v{GL+2} offset:{O_HR}")
    A("s_waitcnt lgkmcnt(0)")
    A(f"v_lshl_add_u32 v{HT}, v{HG}, 3, v{HLB}")
    A(f"ds_read_b64 {vr(HT+2,2)}, v{HT} offset:{O_HR}")
    A("s_lshl_b32 s3, s29, 3")
    A("s_add_u32 s3, s3, s30")
    A(f"s_mul_i32 s3, s3, {SLOT2}")
    srd(24, SWS, "s3", 0)
    A("s_waitcnt lgkmcnt(0)")
    IDX = HA + 8

    def set_idx():
        A(f"v_mov_b32 v{IDX}, 0x4444")
        A(f"v_mov_b32 v{IDX+1}, 0xeeee")
        A(f"v_cndmask_b32 v{IDX}, v{IDX}, v{IDX+1}, s[96:97]")
    if smf:
        for r in range(2):
            A(f"v_cndmask_b32 v{HT+2+r}, v{HT+2+r}, 0, s[96:97]")
        set_idx()
    for t in range(9):
        A(f"v_mfma_f32_16x16x16_bf16 {vr(HD+4*t,4)}, {vr(HT+2,2)}, {vr(HF2+2*t,2)}, 0")
    A("s_call_b64 s[62:63], L_sub_gemv")
    OR = HF2
    for r in range(4):
        A(f"v_mov_b32 v{GH+r}, v{OR+4+r}")
    A(f"v_mov_b32 v{GH+4}, v{HD+32}")
    A(f"s_mov_b32 s26, {SLOT2}")
    lds_arrive(HLB, O_CNT + C_SM, 3)
    stamp(8)
    A(f"s_mul_i32 s3, s29, {128*1152}")
    srd(20, SWO, "s3", 128 * 1152)
    A("s_call_b64 s[62:63], L_sub_load")
    stamp(9)

    A("s_cmp_lg_u32 s28, 3")
    A("s_cbranch_scc1 L_h_pvpre")
    A(f"v_and_b32 v{HT+1}, {ncl-1}, v2")
    A(f"v_lshlrev_b32 v{HT+1}, {3 if ncl == 32 else 2}, v{HT+1}")
    A(f"global_load_dword v{HT}, v{HT+1}, s[{SDBG}:{SDBG+1}]")
    Lb("L_h_bpoll")
    A("s_waitcnt vmcnt(0)")
    A(f"v_cmp_ne_u32 vcc, 1, v{HT}")
    A("s_cbranch_vccz L_h_bpoll_ok")
    A("s_sleep 32")
    A(f"global_load_dword v{HT}, v{HT+1}, s[{SDBG}:{SDBG+1}] sc1")
    A("s_sub_u32 s69, s69, 16")
    A("s_cbranch_scc0 L_h_bpoll")
    A("s_mov_b32 s69, 0")
    A("s_waitcnt vmcnt(0)")
    Lb("L_h_bpoll_ok")
    A("s_cmp_ge_u32 s29, 18")
    A("s_cbranch_scc1 L_h_pvpre")
    final_srds(SOUT, False)
    A("s_lshl_b32 s33, s29, 5")
    A(f"v_lshrrev_b32 v{HT}, 3, v2")
    A(f"v_mul_u32_u24 v{HT}, {8*SLOT2}, v{HT}")
    A(f"v_and_b32 v{HT+1}, 7, v2")
    A(f"v_lshl_add_u32 v{HT+1}, v{HT+1}, 2, s33")
    A(f"v_lshl_add_u32 v{GS}, v{HT+1}, 2, v{HT}")
    A(f"v_bfe_u32 v{HT+2}, v2, 4, 1")
    A(f"v_lshrrev_b32 v{HT+3}, 5, v2")
    A(f"v_lshl_add_u32 v{HT+2}, v{HT+2}, 1, v{HT+3}")
    A(f"v_add_lshl_u32 v{HOA}, v{HT+2}, v{HT+1}, 1")
    srd(20, SB2, None, 1152)
    A(f"buffer_load_ushort v{HXV}, v{HOA}, s[8:11], s68 offen")
    A(f"buffer_load_ushort v{HB2}, v{HOA}, s[20:23], 0 offen")
    A("s_waitcnt vmcnt(0)")
    A(f"v_lshlrev_b32 v{HXV}, 16, v{HXV}")
    A(f"v_lshlrev_b32 v{HB2}, 16, v{HB2}")
    A(f"v_mov_b32 v{HT}, {OOB}")
    A(f"v_and_b32 v{HT+1}, 8, v2")
    A(f"v_cmp_eq_u32 vcc, 0, v{HT+1}")
    A("s_nop 1")
    A(f"v_cndmask_b32 v{HOA}, v{HT}, v{HOA}, vcc")
    A(f"v_lshl_add_u32 v{HT}, v2, 4, v{HLB}")
    A(f"ds_write_b128 v{HT}, {vr(HB2,4)} offset:{O_CX}")
    A("s_call_b64 s[62:63], L_sub_final")
    if warm2:
        for r in range(32, 64):
            A(f"v_mov_b32 v{r}, -1")
        A("s_call_b64 s[62:63], L_f_g_again")
    A("s_waitcnt vmcnt(0)")

    Lb("L_h_pvpre")
    PT = 28
    pv_masks(VM, HC, PT)
    for r in range(4):
        A(f"v_mov_b32 v{VACC+r}, 0")
    stamp(10)
    lds_spin("L_h_smwait", HLB, O_CNT + C_SM, PT, 8, sleep=4)
    A("s_lshl_b32 s3, s28, 3")
    A(f"v_add_u32 v{PT}, s3, v{HLB}")
    A(f"ds_read_b32 v{PT+1}, v{PT} offset:{O_ST}")
    A("s_lshl_b32 s3, s28, 9")
    A(f"v_lshl_add_u32 v{PT}, v2, 2, v{HLB}")
    A(f"v_add_u32 v{PT}, s3, v{PT}")
    A(f"ds_read_b32 v{VPC}, v{PT} offset:{O_E}")
    A(f"ds_read_b32 v{VPC+1}, v{PT} offset:{O_E+256}")
    softmax_factor(HLB, RING, PT, PT + 1)
    for u in range(2):
        A(f"v_mul_f32 v{VPC+u}, v{VPC+u}, v{PT}")
        A(f"v_cvt_pk_bf16_f32 v{VPC+u}, v{VPC+u}, v{VPC+u}")
    A("s_lshl_b32 s3, s28, 15")
    A(f"v_lshl_add_u32 v{PT}, v2, 4, s3")
    A("s_mov_b32 s34, 2")
    Lb("L_h_pv")
    for i in range(16):
        if i == 8:
            A("s_waitcnt lgkmcnt(0)")
        A(f"ds_read_b128 {vr(RING+4*i,4)}, v{PT} offset:{i*1024}")
    A("s_waitcnt lgkmcnt(0)")
    A("s_call_b64 s[62:63], L_sub_pv")
    A(f"v_mov_b32 v{VPC}, v{VPC+1}")
    A(f"v_add_u32 v{PT}, 16384, v{PT}")
    A("s_sub_u32 s34, s34, 1")
    A("s_cmp_lg_u32 s34, 0")
    A("s_cbranch_scc1 L_h_pv")
    A(f"v_lshl_add_u32 v{PT}, v0, 3, v{HLB}")
    A("s_nop 1")
    A(f"ds_write_b64 v{PT}, {vr(VACC,2)} offset:{O_OP}")
    for r in range(5):
        A(f"v_mov_b32 v{GT+r}, v{GH+r}")
    A("s_waitcnt lgkmcnt(0)")
    lds_arrive(HLB, O_CNT + C_PV, 3)
    for r in range(36):
        A(f"v_mov_b32 v{HD+r}, 0")
    lds_spin("L_h_pvwait", HLB, O_CNT + C_PV, HT, 4)
    for k in range(4):
        A(f"ds_read_b64 {vr(OR+2*k,2)}, v{HOP} offset:{O_OP+512*(4+k)}")
    A("s_waitcnt lgkmcnt(0)")
    for r in range(2):
        A(f"v_add_f32 v{OR+r}, v{OR+r}, v{OR+2+r}")
        A(f"v_add_f32 v{OR+4+r}, v{OR+4+r}, v{OR+6+r}")
        A(f"v_add_f32 v{PS+r}, v{OR+r}, v{OR+4+r}")
    if smf:
        set_idx()
    stamp(11)
    A("s_setprio 2")
    A("s_barrier")
    stamp(12)
    A("s_call_b64 s[62:63], L_sub_gemv")
    stamp(13)
    if b4 == 2:
        A("s_waitcnt vmcnt(0)")
    if b4:
        A("s_barrier")

    Lb("L_fin")
    if fixdur:
        Lb("L_fix")
        A("s_memrealtime s[76:77]")
        A("s_waitcnt lgkmcnt(0)")
        A("s_sub_u32 s76, s76, s74")
        A(f"s_cmp_lt_u32 s76, {fixdur*100}")
        A("s_cbranch_scc1 L_fix")
    if stamps:
        A("s_waitcnt vmcnt(0)")
        stamp(15)
        A(f"v_writelane_b32 v{VST}, s74, 0")
        A("s_getreg_b32 s70, hwreg(HW_REG_XCC_ID)")
        A(f"v_writelane_b32 v{VST}, s70, 16")
        A("s_getreg_b32 s70, hwreg(HW_REG_HW_ID)")
        A(f"v_writelane_b32 v{VST}, s70, 63")
        A(f"s_add_u32 s72, s72, {WS_STAMP}")
        A("s_addc_u32 s73, s73, 0")
        A("s_lshl_b32 s3, s2, 11")
        A("v_lshlrev_b32 v0, 2, v0")
        A("v_add_u32 v0, s3, v0")
        A(f"global_store_dword v0, v{VST}, s[72:73]")
    Lb("L_end")
    A("s_endpgm")

    Lb("L_sub_load")
    if noslab:
        A("s_setpc_b64 s[62:63]")

    freg = (lambda sg, t: HF + 72 * (sg >> 1) + 8 * t + 4 * (sg & 1)) if smf else (lambda sg, t: HF + 36 * sg + 4 * t)

    def issue_pair(n):
        sl = ST + 10 * (n % NSL)
        A(f"s_mov_b32 s33, {8*n*1152}")
        A(f"s_mov_b32 s34, {(8*n+4)*1152}")
        A(f"buffer_load_dwordx4 {vr(sl,4)}, v{HVB}, s[20:23], s33 offen {spol}")
        A(f"buffer_load_dwordx4 {vr(sl+4,4)}, v{HVB}, s[20:23], s34 offen {spol}")
        A(f"buffer_load_ushort v{sl+8}, v{HVS}, s[20:23], s33 offen {spol}")
        A(f"buffer_load_ushort v{sl+9}, v{HVS}, s[20:23], s34 offen {spol}")

    for n in range(NSL):
        issue_pair(n)
    for n in range(16):
        sg, r = n >> 2, n & 3
        sl = ST + 10 * (n % NSL)
        A(f"s_waitcnt vmcnt({4 * (min(n + NSL, 16) - n - 1)})")
        for t in range(8):
            A(f"v_perm_b32 v{freg(sg,t)+r}, v{sl+4+(t>>1)}, v{sl+(t>>1)}, s{94+(t&1)}")
        A(f"v_lshl_or_b32 v{freg(sg,8)+r}, v{sl+9}, 16, v{sl+8}")
        if n + NSL < 16:
            if hs:
                A(f"s_sleep {hs}")
            issue_pair(n + NSL)
    A("s_setpc_b64 s[62:63]")

    Lb("L_sub_gemv")
    for k in range(4):
        A(f"ds_read_b64 {vr(OR+2*k,2)}, v{HOP} offset:{O_OP+512*k}")
    if not nog:
        A(f"buffer_store_dwordx4 {vr(GT,4)}, v{HPM}, s[24:27], 0 offen {ypol}")
        A(f"buffer_store_dword v{GT+4}, v{HPR}, s[24:27], 0 offen {ypol}")
    if smf:
        A("s_waitcnt lgkmcnt(2)")
        A(f"v_pk_add_f32 {vr(OR,2)}, {vr(OR,2)}, {vr(PS,2)}")
        A(f"v_pk_add_f32 {vr(OR,2)}, {vr(OR,2)}, {vr(OR+2,2)}")
        A("s_waitcnt lgkmcnt(0)")
        A(f"v_pk_add_f32 {vr(OR,2)}, {vr(OR,2)}, {vr(OR+4,2)}")
        A(f"v_pk_add_f32 {vr(OR,2)}, {vr(OR,2)}, {vr(OR+6,2)}")
        A(f"v_cvt_pk_bf16_f32 v{HA}, v{OR}, v{OR+1}")
        A("s_nop 1")
        bc = [f"v_mov_b32_dpp v{HA+n}, v{HA} row_shl:{8*(n>>2)+(n&3)} {DPP_ALL}" for n in range(1, 8)]
        for n in range(5):
            A(bc.pop(0))
        tail = []
        for S in range(2):
            order = range(9) if S == 0 else (8, 0, 4, 1, 5, 2, 6, 3, 7)
            for t in order:
                A(f"v_smfmac_f32_16x16x64_bf16 {vr(HD+4*t,4)}, {vr(HA+4*S,4)}, {vr(freg(2*S,t),8)}, v{IDX}")
                if bc:
                    A(bc.pop(0))
        A("s_nop 3")
        A(f"v_permlane16_swap_b32 v{HD+32}, v{HD+33}")
        A(f"v_add_f32 v{HD+32}, v{HD+32}, v{HD+33}")
        A(f"buffer_store_dword v{HD+32}, v{HPR}, s[24:27], 0 offen offset:{SLOT} {ypol}")
        for r in range(4):
            A(f"v_permlane16_swap_b32 v{HD+4*r}, v{HD+16+4*r}")
            A(f"v_add_f32 v{OR+4+r}, v{HD+4*r}, v{HD+16+4*r}")
    else:
        for k in range(4):
            A(f"s_waitcnt lgkmcnt({3-k})")
            src = PS if k == 0 else OR + 2 * k
            A(f"v_add_f32 v{OR}, v{OR}, v{src}")
            A(f"v_add_f32 v{OR+1}, v{OR+1}, v{src+1}")
        A(f"v_cvt_pk_bf16_f32 v{OR}, v{OR}, v{OR+1}")
        A("s_nop 1")
        bc = [f"v_mov_b32_dpp v{HA+n}, v{OR} row_newbcast:{n} {DPP_ALL}" for n in range(16)]
        for n in range(6):
            A(bc.pop(0))
        for sg in range(4):
            order = range(9) if sg < 3 else (8, 0, 4, 1, 5, 2, 6, 3, 7)
            for t in order:
                A(f"v_mfma_f32_16x16x32_bf16 {vr(HD+4*t,4)}, {vr(HA+4*sg,4)}, {vr(HF+36*sg+4*t,4)}, {vr(HD+4*t,4)}")
                if bc:
                    A(bc.pop(0))
        A(f"buffer_store_dword v{HD+32}, v{HPR}, s[24:27], 0 offen offset:{SLOT} {ypol}")
        A("s_nop 3")
        for r in range(4):
            A(f"v_cndmask_b32 v{OR+4+r}, v{HD+4*r}, v{HD+16+4*r}, s[96:97]")
    A(f"buffer_store_dwordx4 {vr(OR+4,4)}, v{HPM}, s[24:27], 0 offen offset:{SLOT} {ypol}")
    A("s_setpc_b64 s[62:63]")

    GA, YA, SA = 32, 48, HA
    Lb("L_sub_final")

    def part_load(base, off, k):
        so = "0" if k == 0 else f"s{64+k}"
        A(f"buffer_load_dwordx4 {vr(base+4*k,4)}, v{GS}, s[12:15], {so} offen offset:{off} {lpol}")

    def reload(base, off, tag, done):
        for k in range(4):
            A(f"v_max3_u32 v{SA+8+k}, v{base+4*k}, v{base+4*k+1}, v{base+4*k+2}")
        for k in range(4):
            A(f"v_max_u32 v{SA+8+k}, v{SA+8+k}, v{base+4*k+3}")
        for k in range(4):
            A(f"v_cmp_eq_u32 s[{80+2*k}:{81+2*k}], -1, v{SA+8+k}")
        A("s_or_b64 s[88:89], s[80:81], s[82:83]")
        A("s_or_b64 s[90:91], s[84:85], s[86:87]")
        A("s_or_b64 s[88:89], s[88:89], s[90:91]")
        A(f"s_cbranch_scc0 {done}")
        for k in range(4):
            A(f"s_mov_b64 exec, s[{80+2*k}:{81+2*k}]")
            A(f"s_cbranch_execz L_f{tag}{k}")
            part_load(base, off, k)
            Lb(f"L_f{tag}{k}")
        A("s_mov_b64 exec, -1")

    def total(base):
        for r in (0, 2):
            A(f"v_pk_add_f32 {vr(SA+r,2)}, {vr(base+r,2)}, {vr(base+4+r,2)}")
            A(f"v_pk_add_f32 {vr(SA+4+r,2)}, {vr(base+8+r,2)}, {vr(base+12+r,2)}")
        for r in (0, 2):
            A(f"v_pk_add_f32 {vr(SA+r,2)}, {vr(SA+r,2)}, {vr(SA+4+r,2)}")
        A("s_nop 0")
        A(f"v_permlane32_swap_b32 v{SA}, v{SA+1}")
        A(f"v_permlane32_swap_b32 v{SA+2}, v{SA+3}")
        A(f"v_add_f32 v{SA}, v{SA}, v{SA+1}")
        A(f"v_add_f32 v{SA+2}, v{SA+2}, v{SA+3}")
        A("s_nop 1")
        A(f"v_permlane16_swap_b32 v{SA}, v{SA+2}")
        A(f"v_add_f32 v{SA}, v{SA}, v{SA+2}")
        A("s_nop 1")
        A(f"v_add_f32_dpp v{SA}, v{SA}, v{SA} row_ror:8 {DPP_ALL}")
        A(f"v_cmp_u_f32 vcc, v{SA}, v{SA}")
        bfround(SA, SA)

    for base, off in ((GA, 0), (YA, SLOT)):
        for k in range(4):
            part_load(base, off, k)
    A("s_waitcnt vmcnt(4)")
    Lb("L_f_g")
    total(GA)
    A("s_cbranch_vccnz L_f_g_again")
    Lb("L_f_gate")
    stamp(11)
    A(f"v_add_f32 v{HT+1}, v{SA}, v{HB2}")
    bfround(HT + 1, HT + 1)
    A(f"v_mul_f32 v{HT}, {f32(-LOG2E)}, v{HT+1}")
    A(f"v_exp_f32 v{HT}, v{HT}")
    A("s_nop 0")
    A(f"v_add_f32 v{HT}, 1.0, v{HT}")
    A(f"v_rcp_f32 v{HT}, v{HT}")
    A("s_nop 0")
    A(f"v_mul_f32 v{HT+1}, v{HT+1}, v{HT}")
    bfround(HT + 1, HT + 1)
    Lb("L_f_y")
    A("s_waitcnt vmcnt(0)")
    total(YA)
    A("s_cbranch_vccnz L_f_y_again")
    Lb("L_f_out")
    stamp(12)
    A(f"v_mul_f32 v{HT}, v{SA}, v{HT+1}")
    bfround(HT, HT)
    A(f"v_add_f32 v{HT}, v{HT}, v{HXV}")
    A(f"v_cvt_pk_bf16_f32 v{HT}, v{HT}, v{HT}")
    A(f"buffer_store_short v{HT}, v{HOA}, s[16:19], s68 offen {outpol}")
    A("s_setpc_b64 s[62:63]")
    Lb("L_f_y_again")
    reload(YA, SLOT, "y", "L_f_out")
    A("s_sub_u32 s69, s69, 4")
    A("s_cbranch_scc0 L_f_y")
    A("s_mov_b32 s69, 0")
    A("s_setpc_b64 s[62:63]")
    Lb("L_f_g_again")
    reload(GA, 0, "g", "L_f_gate")
    A("s_waitcnt vmcnt(0)")
    A("s_sub_u32 s69, s69, 4")
    A("s_cbranch_scc0 L_f_g")
    A("s_mov_b32 s69, 0")
    A("s_setpc_b64 s[62:63]")

    o[:] = o[:head_end] + o[helper_start:] + o[head_end:helper_start]
    o.append("L_code_end:")
    o.append('.section .rodata,"a"')
    o.append(".p2align 6")
    o.append(f".amdhsa_kernel {NAME}_kernel")
    o.append("  .amdhsa_next_free_vgpr 256")
    o.append("  .amdhsa_next_free_sgpr 100")
    o.append("  .amdhsa_accum_offset 256")
    o.append("  .amdhsa_group_segment_fixed_size 0")
    o.append("  .amdhsa_kernarg_size 104")
    o.append("  .amdhsa_user_sgpr_count 2")
    o.append("  .amdhsa_user_sgpr_kernarg_segment_ptr 1")
    o.append("  .amdhsa_system_sgpr_workgroup_id_x 1")
    o.append("  .amdhsa_float_denorm_mode_32 3")
    o.append(".end_amdhsa_kernel")
    return "\n".join(o) + "\n"


if __name__ == "__main__":
    cfg = json.loads(sys.argv[2]) if len(sys.argv) > 2 else {}
    open(sys.argv[1], "w").write(gen(**cfg))
```

```python
import struct, sys, json

NAME = "recurrent_scan__mha_block_cached__dense_activation_gelu__decode"
HEADER = open("header.txt").read()

WS_G = 0x000000
SLOT = 2304
SLOT2 = 2 * SLOT
WS_S = 0x200000
WS_STAMP = 0x20000000

L_V = 0x00000
L_B = 0x20000
O_OP = 0x0000
O_E = 0x1000
O_ST = 0x1800
O_CNT = 0x1840
O_Q = 0x1880
O_HR = 0x1980
O_XN = 0x19C0
O_CX = 0x2300
O_HS = 0x2700
LDS_BYTES = L_B + 0x2800
C_CL, C_S1, C_Q, C_H, C_SM, C_PV = 0, 4, 8, 12, 16, 20

LOG2E = 1.4426950408889634
OOB = "0x10000000"


def f32(x):
    return "0x%08x" % struct.unpack("<I", struct.pack("<f", x))[0]


def vr(a, n=1):
    return f"v{a}" if n == 1 else f"v[{a}:{a+n-1}]"


DPP_ALL = "row_mask:0xf bank_mask:0xf"


def cl(i):
    return ((i & 1) << 3) | (((i >> 1) & 1) << 2) | (i >> 2)


def gen(D=5, D0=5.5, DK=0, DV=0, DT=0, stamps=False, hprio=1, kvpol="nt", wpol="", spol="",
        NSL=1, xown=False, pf=2, xs0=0, xs1=0, fixdur=0,
        ctl=True, DL=(4, 5, 6, 10), TH=(-25, 20, 60), LOOK=1, SSTR=40*128,
        fs=0, fslow=0, fthr=16, outpol="sc0 sc1", fwait=True, ypol="sc1", lpol="sc1", wb=(16, 13), tb=(14, 19), gb=(15, 17, 18, 12), mid=True, ramp=(0, 0), nop1=False, noclear=False, fakew=False, nonarrow=False, f0=0, nog=False, fa=(157, 0, 150), b4=1, warm2=False, DLK=(4, 5.5, 6.5, 10), noslab=False, hs=0, NQ=3.5, ring3=True, rot=True, ncl=64, clat="start", srot=4, slew=3, first=0, cpf=1, prior=862, wstart=5, gx=(), st0=False, smf=True, pf1=True, order="kvrwp", N0=4, probe=0, eb=None, THV=(-20, 15, 45), bfirst=True, pers=True, skew=None, NK0=None, hb=(-100, 3), ec=True, prior0=910, DL0=(4, 5.5, 6.5, 8), m2=(1, 2, 3, 0, 4), warm1=True, tv=False, tw=False, tout=None, cmap=True, noqwait=False, wpc=False, ppol="", quart=1, qall=False, ge=0):
    o = []
    cur = [o]
    A = lambda s: cur[0].append("  " + s)
    Lb = lambda s: cur[0].append(s + ":")

    def capture(fn):
        tmp = []
        cur[0] = tmp
        fn()
        cur[0] = o
        return tmp

    VST = 1
    ID = "s78" if m2 else "s2"
    DLV = DL
    assert sorted(list(wb) + list(tb) + list(gb)) == list(range(12, 20))
    dep = lambda v, pos: sum(((v >> k) & 1) << p for k, p in enumerate(pos))
    TOFF = [dep(k, tb) for k in range(4)]
    D0 = D0 or D; DK = DK or D; DV = DV or D; DT = DT or DV
    pace = lambda d, i: f"s_waitcnt vmcnt({int(d + (0.5 if i & 1 else 0)) - 1})"

    def stamp(i):
        if stamps and ((stamps != "lite" and not isinstance(stamps, list)) or i in (stamps if isinstance(stamps, list) else (0, 15))):
            A("s_memrealtime s[70:71]")
            A("s_waitcnt lgkmcnt(0)")
            A(f"v_writelane_b32 v{VST}, s70, {i}")

    def bfround(dst, src):
        A(f"v_cvt_pk_bf16_f32 v{dst}, v{src}, v{src}")
        A(f"v_and_b32 v{dst}, 0xffff0000, v{dst}")

    def allreduce_row(op, v):
        for sh in (8, 4, 2, 1):
            A("s_nop 1")
            A(f"{op}_dpp v{v}, v{v}, v{v} row_ror:{sh} {DPP_ALL}")

    def swap_reduce(op, v, t, which):
        A(f"v_mov_b32 v{t}, v{v}")
        A("s_nop 1")
        A(f"v_permlane{which}_swap_b32 v{t}, v{v}")
        A("s_nop 1")
        A(f"{op} v{v}, v{v}, v{t}")

    def lds_spin(label, vaddr, off, vtmp, target, sleep=1):
        Lb(label)
        A(f"ds_read_b32 v{vtmp}, v{vaddr} offset:{off}")
        A("s_waitcnt lgkmcnt(0)")
        A(f"v_readfirstlane_b32 s3, v{vtmp}")
        A(f"s_cmp_ge_u32 s3, {target}")
        A(f"s_cbranch_scc1 {label}_ok")
        if sleep:
            A(f"s_sleep {sleep}")
        A("s_sub_u32 s69, s69, 1")
        A(f"s_cbranch_scc0 {label}")
        A("s_mov_b32 s69, 0")
        Lb(label + "_ok")

    def lds_arrive(vaddr, off, vone):
        A("s_mov_b64 exec, 1")
        A(f"ds_add_u32 v{vaddr}, v{vone} offset:{off}")
        A("s_mov_b64 exec, -1")

    def pv_masks(vm, vc, t0):
        A(f"v_and_b32 v{t0}, 4, v{vc}")
        A(f"v_lshlrev_b32 v{t0}, 2, v{t0}")
        A(f"v_mov_b32 v{t0+1}, 0xffff")
        A(f"v_lshlrev_b32 v{t0}, v{t0}, v{t0+1}")
        A(f"v_and_b32 v{t0+1}, 3, v{vc}")
        A(f"v_lshrrev_b32 v{vm}, 3, v{vc}")
        A(f"v_lshl_add_u32 v{t0+1}, v{t0+1}, 1, v{vm}")
        for r in range(4):
            A(f"v_cmp_eq_u32 vcc, {r}, v{t0+1}")
            A("s_nop 1")
            A(f"v_cndmask_b32 v{vm+r}, 0, v{t0}, vcc")

    def softmax_factor(vbase, vst, vf, vown):
        A(f"ds_read_b128 {vr(vst,4)}, v{vbase} offset:{O_ST}")
        A(f"ds_read_b128 {vr(vst+4,4)}, v{vbase} offset:{O_ST+16}")
        A("s_waitcnt lgkmcnt(0)")
        m, t = vst + 8, vst + 9
        A(f"v_max3_f32 v{m}, v{vst}, v{vst+2}, v{vst+4}")
        A(f"v_max_f32 v{m}, v{m}, v{vst+6}")
        for k in range(4):
            A(f"v_sub_f32 v{vst+2*k}, v{vst+2*k}, v{m}")
        A(f"v_sub_f32 v{t}, v{vown}, v{m}")
        for k in range(4):
            A(f"v_mul_f32 v{vst+2*k}, {f32(LOG2E)}, v{vst+2*k}")
        A(f"v_mul_f32 v{t}, {f32(LOG2E)}, v{t}")
        for k in range(4):
            A(f"v_exp_f32 v{vst+2*k}, v{vst+2*k}")
        A(f"v_exp_f32 v{t}, v{t}")
        A(f"v_mul_f32 v{m}, v{vst}, v{vst+1}")
        for k in range(1, 4):
            A(f"v_fmac_f32 v{m}, v{vst+2*k}, v{vst+2*k+1}")
        A(f"v_rcp_f32 v{m}, v{m}")
        A("s_nop 0")
        A(f"v_mul_f32 v{vf}, v{t}, v{m}")

    o.append(HEADER.rstrip())
    o.append(f"; @launch grid=(256,1,1) block=(512,1,1) lds={LDS_BYTES}")
    o.append('.amdgcn_target "amdgcn-amd-amdhsa--gfx950"')
    o.append(".text")
    o.append(f".globl {NAME}_kernel")
    o.append(".p2align 8")
    o.append(f".type {NAME}_kernel,@function")
    Lb(f"{NAME}_kernel")
    A("s_cmp_ge_u32 s2, 256")
    A("s_cbranch_scc1 L_end")
    if skew:
        A(f"s_and_b32 s3, s2, {skew[0]}")
        A(f"s_cmp_lg_u32 s3, {skew[0]}")
        A("s_cbranch_scc1 L_noskew")
        A(f"s_sleep {skew[1]}")
        Lb("L_noskew")
    if fixdur or stamps or st0:
        A("s_memrealtime s[74:75]")
    SX, SK, SV, SWQ, SWO, SW1, SB1, SW2, SB2, SOUT, SDBG, SWS = 36, 38, 40, 42, 44, 48, 50, 52, 54, 56, 58, 60
    A("s_load_dwordx16 s[36:51], s[0:1], 0")
    A("s_load_dwordx8 s[52:59], s[0:1], 64")
    A("s_load_dwordx2 s[60:61], s[0:1], 96")
    A("v_lshrrev_b32 v1, 6, v0")
    A("v_and_b32 v2, 63, v0")
    A("v_readfirstlane_b32 s28, v1")
    A(f"v_mov_b32 v6, {L_B}")
    A("v_mov_b32 v8, 0")
    A("v_mov_b32 v9, 0")
    A("v_lshl_add_u32 v7, v0, 3, v6")
    A(f"ds_write_b64 v7, v[8:9] offset:{O_OP}")
    A("v_and_b32 v4, 15, v2")
    A("v_lshl_add_u32 v7, v4, 2, v6")
    A(f"ds_write_b32 v7, v8 offset:{O_CNT}")
    A("v_lshlrev_b32 v3, 4, v2")
    A("v_and_b32 v7, 1, v1")
    A(f"v_lshl_add_u32 v3, v7, {wb[0]}, v3")
    A("v_bfe_u32 v7, v1, 1, 1")
    A(f"v_lshl_add_u32 v3, v7, {wb[1]}, v3")
    for k, p in gx:
        assert p in gb
        A(f"s_bfe_u32 s3, s2, {k | (1 << 16)}")
        A(f"s_lshl_b32 s3, s3, {p}")
        A("v_xor_b32 v3, s3, v3")
    if m2:
        keep = 0xe0 | sum(1 << k for k in range(5) if m2[k] == k)
        A(f"s_and_b32 s78, s2, {keep}")
        runs = []
        for k in range(5):
            if m2[k] == k:
                continue
            if runs and runs[-1][0] + runs[-1][2] == k and runs[-1][1] + runs[-1][2] == m2[k]:
                runs[-1][2] += 1
            else:
                runs.append([k, m2[k], 1])
        for k, p, w in runs:
            A(f"s_bfe_u32 s3, s2, {k | (w << 16)}")
            if p:
                A(f"s_lshl_b32 s3, s3, {p}")
            A("s_or_b32 s78, s78, s3")
    A(f"s_lshl_b32 s3, {ID}, 20")
    A("s_mov_b32 s18, 0x100000")
    A("s_mov_b32 s19, 0x20000")
    A("s_mov_b32 s69, 0x200000")
    A(f"s_mov_b32 s33, {TOFF[1]}")
    if stamps:
        A(f"v_mov_b32 v{VST}, 0")
    A("s_cmp_ge_u32 s28, 4")
    A("s_waitcnt lgkmcnt(0)")
    if stamps:
        A("s_mov_b64 s[72:73], s[60:61]")
    A("s_cbranch_scc1 L_helper")

    HB2, HXV, HOA, GS = 12, 13, 14, 15

    def srd(n, base, off_s, size):
        if off_s is None:
            A(f"s_mov_b32 s{n}, s{base}")
            A(f"s_mov_b32 s{n+1}, s{base+1}")
        else:
            A(f"s_add_u32 s{n}, s{base}, {off_s}")
            A(f"s_addc_u32 s{n+1}, s{base+1}, 0")
        A(f"s_mov_b32 s{n+2}, {size}")
        A(f"s_mov_b32 s{n+3}, 0x20000")

    def final_srds(out_ptr, live):
        A("s_lshr_b32 s68, s2, 5")
        A(f"s_mul_i32 s3, s68, {SLOT2}")
        srd(12, SWS, "s3", 249 * SLOT2 if live else 0)
        srd(16, out_ptr, None, 9216 if live else 0)
        for k in (1, 2, 3):
            A(f"s_mov_b32 s{64+k}, {64*k*SLOT2}")
        A("s_mul_i32 s68, s68, 1152")

    VQ, VP, VA0, VA1, VB, VC, VS, VMAX = 4, 8, 10, 11, 12, 13, 14, 15
    VE, VM, VAO, VACC = 16, 32, 36, 44
    RING, RING2, VT, VLB = 48, 112, 176, 188
    VPC, VN = VE + 2, VE + 1
    def ring_load(i, ring=RING):
        so = "0" if i < 4 else f"s{36+i//4}"
        A(f"buffer_load_dwordx4 {vr(ring+4*i,4)}, v3, s[16:19], {so} offen offset:{(i%4)*1024} {kvpol}")

    VB0 = 189

    def next_group():
        A("s_add_u32 s29, s29, 1")
        runs = []
        for k, p in enumerate(gb):
            if runs and p == runs[-1][1] + runs[-1][2]:
                runs[-1][2] += 1
            else:
                runs.append([k, p, 1])
        for n, (k, p, w) in enumerate(runs):
            d = "s35" if n == 0 else "s3"
            A(f"s_bfe_u32 {d}, s29, {k | (w << 16)}")
            A(f"s_lshl_b32 {d}, {d}, {p}")
            if n:
                A("s_or_b32 s35, s35, s3")
        A(f"v_xor_b32 v3, s35, v{VB0}")

    A(f"s_add_u32 s16, s{SK}, s3")
    A(f"s_addc_u32 s17, s{SK+1}, 0")
    NK0 = int(D0) if NK0 is None else NK0
    for i in range(NK0):
        A(f"buffer_load_dwordx4 {vr(RING+4*i,4)}, v3, s[16:19], {'0' if i < 4 else 's33'} offen offset:{(i%4)*1024} {kvpol}")
    stamp(6)
    A("s_barrier")
    A("s_branch L_streamer")
    head_end = len(o)
    Lb("L_streamer")
    stamp(7)
    A(f"s_add_u32 s12, s{SV}, s3")
    A(f"s_addc_u32 s13, s{SV+1}, 0")
    A("s_mov_b32 s14, 0x100000")
    A("s_mov_b32 s15, 0x20000")
    for k in (1, 2, 3):
        A(f"s_mov_b32 s{36+k}, {TOFF[k]}")
    A(f"v_mov_b32 v{VLB}, {L_B}")
    A(f"v_mov_b32 v{VB0}, v3")
    if tv:
        A(f"buffer_load_dword v{VT+10}, off, s[12:15], 0 nt")
    A(f"s_mov_b64 s[6:7], s[{SOUT}:{SOUT+1}]")
    if pf:
        A(f"s_and_b32 s33, {ID}, 31")
        A("s_lshr_b32 s34, s2, 5")
        A(f"s_mul_i32 s3, s33, {128*1152}")
        A(f"s_mul_i32 s35, s34, {16*1152}")
        A("s_add_u32 s3, s3, s35")
        srd(8, SWO, "s3", 16 * 1152)
        A("s_and_b32 s3, s2, 7")
        A("s_lshl_b32 s3, s3, 2")
        A("s_bfe_u32 s33, s2, 0x20003")
        A("s_add_u32 s3, s3, s33")
        A(f"s_mul_i32 s3, s3, {144*1152}")
        A(f"s_mul_i32 s35, s34, {18*1152}")
        A("s_add_u32 s3, s3, s35")
        srd(24, SW2, "s3", 18 * 1152)
    if pf1:
        A("s_and_b32 s3, s2, 7")
        A("s_mul_i32 s3, s3, 1152")
        A("s_lshr_b32 s33, s2, 3")
        A(f"s_mul_i32 s33, s33, {18*9216}")
        A("s_add_u32 s3, s3, s33")
        srd(64, SW1, "s3", 17 * 9216 + 1152)
        if tv == 2:
            A("s_cmp_lg_u32 s28, 0")
            A("s_cbranch_scc1 L_notouch")
            for sr in (8, 24, 64):
                A(f"buffer_load_dword v{VT+10}, off, s[{sr}:{sr+3}], 0")
            Lb("L_notouch")
    A("s_mov_b32 s29, 0")
    for k in (1, 2, 3):
        A(f"s_mov_b32 s{38+2*k}, 0x{(0x11111111 << k) & 0xffffffff:08x}")
        A(f"s_mov_b32 s{39+2*k}, 0x{(0x11111111 << k) & 0xffffffff:08x}")
    if ctl:
        A("s_lshr_b32 s3, s2, 5")
        A("s_and_b32 s54, s2, 31")
        if srot == 16:
            A("s_lshr_b32 s35, s54, 3")
            A("s_lshl_b32 s35, s35, 2")
            A("s_add_u32 s35, s35, s28")
            A("s_lshl_b32 s35, s35, 7")
            A("s_and_b32 s54, s54, 7")
        else:
            A("s_lshl_b32 s35, s28, 7")
        A("s_cmp_eq_u32 s54, s3")
        A("s_cselect_b32 s54, s35, -1")
        A(f"s_mul_i32 s3, s3, {SSTR}")
        A(f"s_add_u32 s3, s3, {WS_S}")
        A(f"s_add_u32 s20, s{SWS}, s3")
        A(f"s_addc_u32 s21, s{SWS+1}, 0")
        A(f"s_movk_i32 s22, {40*128}")
        A("s_mov_b32 s23, 0x20000")
        A(f"s_add_u32 s46, s{SWS}, {WS_S - LOOK*128}")
        A(f"s_addc_u32 s47, s{SWS+1}, 0")
        A("s_mov_b32 s48, 0")
    A(f"v_and_b32 v{VT+2}, 15, v2")
    A(f"v_lshl_add_u32 v{VT+3}, v{VT+2}, 4, v{VLB}")
    pv_masks(VM, VT + 2, VT)
    for r in range(4):
        A(f"v_mov_b32 v{VACC+r}, 0")

    def loop_stamp(base):
        if stamps is True:
            A("s_memrealtime s[70:71]")
            A(f"s_sub_u32 m0, {base}, s34")
            A("s_waitcnt lgkmcnt(0)")
            A(f"v_writelane_b32 v{VST}, s70, m0")

    ckn = [0]

    thc = [TH]

    def level(lag):
        TH = thc[0]
        return [f"s_add_u32 s93, {lag}, 1500", "s_cmp_lt_u32 s93, 3000", f"s_cselect_b32 {lag}, {lag}, {TH[0]}",
                f"s_cmp_ge_i32 {lag}, {TH[1]}", "s_cselect_b64 vcc, -1, 0", "s_cselect_b32 s93, s5, s4",
                f"s_cmp_ge_i32 {lag}, s93", "s_cselect_b32 s90, 1, 0"]

    def decide(last=False):
        if not ctl:
            return
        A("s_waitcnt lgkmcnt(0)")
        A("s_sub_u32 s79, s50, s49")
        for l in level("s79"):
            A(l)

    def atoms(fine=False):
        if not ctl:
            return {}
        ckn[0] += 1
        n = ckn[0]
        at = {}
        at[0] = [f"s_and_b32 s93, s48, {(srot-1)*128}", "s_cmp_lg_u32 s54, s93", f"s_cbranch_scc1 L_ck{n}_nopub", f"v_mov_b32 v{VT+11}, s50", "s_mov_b64 exec, 1",
                 f"buffer_store_dword v{VT+11}, off, s[20:23], s48 sc1", "s_mov_b64 exec, -1", f"L_ck{n}_nopub:"]
        at[1] = ["s_add_u32 s88, s46, s48", "s_addc_u32 s89, s47, 0", f"s_cmp_lt_u32 s48, {LOOK*128}", f"s_cbranch_scc1 L_ck{n}_early"]
        at[1] += [f"s_load_dword s{80+j}, s[88:89], {j*SSTR}" for j in range(8)] + [f"L_ck{n}_early:"]
        if ramp[0]:
            at[3] = [f"s_add_u32 s4, s4, {ramp[1]}", f"s_min_i32 s4, s4, {TH[0]}"]
        if mid:
            at[6] = ["s_memrealtime s[98:99]", "s_lshr_b32 s93, s92, 3", "s_add_u32 s49, s49, s93"]
            at[7] = ["s_waitcnt lgkmcnt(0)", "s_sub_u32 s79, s98, s49"] + level("s79")
            at[8] = [f"s_sub_u32 s{80+j}, s50, s{80+j}" for j in range(8)] + ["s_max_u32 s91, s80, s81", "s_add_u32 s55, s80, s81"]
        else:
            at[7] = ["s_waitcnt lgkmcnt(0)"] + [f"s_sub_u32 s{80+j}, s50, s{80+j}" for j in range(4)]
            at[8] = [f"s_sub_u32 s{80+j}, s50, s{80+j}" for j in range(4, 8)] + ["s_max_u32 s91, s80, s81", "s_add_u32 s55, s80, s81"]
        at[9] = sum(([f"s_max_u32 s91, s91, s{80+j}", f"s_add_u32 s55, s55, s{80+j}"] for j in range(2, 5)), [])
        at[10] = sum(([f"s_max_u32 s91, s91, s{80+j}", f"s_add_u32 s55, s55, s{80+j}"] for j in range(5, 8)), [])
        if prior:
            at[11] = ["s_lshr_b32 s55, s55, 3", "s_sub_u32 s55, s50, s55", "s_lshr_b32 s49, s92, 2", "s_add_u32 s49, s49, s52",
                      "s_cmp_lt_u32 s91, 2500", "s_cselect_b32 s55, s55, s49"]
            at[12] = ["s_sub_u32 s91, s55, s57", f"s_add_u32 s49, s92, {slew}", "s_min_u32 s91, s91, s49",
                      f"s_sub_u32 s49, s92, {slew}", "s_max_u32 s91, s91, s49",
                      f"s_cmp_ge_u32 s48, {(LOOK+wstart+(4 if ec else 0))*128}", "s_cselect_b32 s92, s91, s92", f"s_mul_i32 s91, s92, {LOOK+1}"]
        else:
            at[11] = ["s_lshr_b32 s55, s55, 3", "s_sub_u32 s55, s50, s55", "s_lshl_b32 s49, s52, 1", "s_sub_u32 s49, s49, s53",
                      "s_cmp_lt_u32 s91, 2500", "s_cselect_b32 s55, s55, s49"]
            at[12] = ["s_sub_u32 s91, s55, s53", "s_lshl_b32 s91, s91, 1", "s_sub_u32 s49, s55, s57",
                      f"s_cmp_ge_u32 s48, {(LOOK+5)*128}", "s_cselect_b32 s91, s49, s91"]
            if slew:
                at[12] += [f"s_add_u32 s49, s92, {slew}", "s_min_u32 s49, s49, s91", f"s_cmp_gt_u32 s48, {(LOOK+5)*128}",
                           "s_cselect_b32 s91, s49, s91"]
            at[12] += ["s_mov_b32 s92, s91", f"s_mul_i32 s91, s91, {LOOK+1}"]
        if pers:
            one = lambda j: [f"s_sub_u32 s{80+j}, s91, s{80+j}", f"s_cmp_lt_u32 s{80+j}, 2500", f"s_cselect_b32 s{80+j}, s{80+j}, 0"] + \
                            ([f"s_add_u32 s80, s80, s{80+j}"] if j else [])
            at[8] = ["s_add_u32 s91, s50, 64"] + one(0) + one(1)
            at[9] = one(2) + one(3)
            at[10] = one(4) + one(5)
            at[11] = one(6) + one(7) + ["s_lshr_b32 s55, s80, 3", "s_sub_u32 s55, s91, s55"]
        if quart and (fine or qall):
            tick = ["s_memrealtime s[98:99]", "s_lshr_b32 s93, s92, 4", "s_add_u32 s49, s49, s93"]
            dec = ["s_waitcnt lgkmcnt(0)", "s_sub_u32 s79, s98, s49"] + level("s79")
            if quart == 1:
                at[2] = tick; at[3] = dec; at[4] = at.pop(1)
                at[6] = tick
            at[10] = tick + at[10]
            at[11] = dec + at[11]
        at[13] = ["s_lshr_b32 s91, s91, 2", "s_add_u32 s49, s55, s91", "s_mov_b32 s57, s56", "s_mov_b32 s56, s53",
                  "s_mov_b32 s53, s52", "s_mov_b32 s52, s55"]
        at[14] = ["s_add_u32 s91, s50, 0x40000000", f"s_cmp_lt_u32 s48, {(LOOK+first)*128}", "s_cselect_b32 s49, s91, s49",
                  "s_add_u32 s48, s48, 128", "s_memrealtime s[50:51]"]
        return at

    def emit_atom(at, i, restore=True):
        if i in at:
            for l in at[i]:
                if l.endswith(":"):
                    Lb(l[:-1])
                else:
                    A(l)
            if restore:
                A("s_cmp_lg_u32 s90, 0")

    def cpace(d, i, tag):
        if not ctl:
            A(pace(d, i))
            return
        DL = DLK if (tag == "pk" and DLK) else (DL0 if tag[0] == "e" else DLV)
        A(f"s_cbranch_vccnz L_{tag}a{i}")
        A(f"s_cbranch_scc1 L_{tag}b{i}")
        A(pace(DL[0], i))
        if hb:
            A(f"s_cmp_lt_i32 s79, {hb[0]}")
            A(f"s_cbranch_scc0 L_{tag}b{i}")
            A(pace(hb[1], i))
            A("s_cmp_lg_u32 s90, 0")
        Lb(f"L_{tag}b{i}")
        A(pace(DL[1], i))
        Lb(f"L_{tag}a{i}")
        if DL[3] != DL[2]:
            A(f"s_cbranch_scc1 L_{tag}c{i}")
            A(pace(DL[2], i))
            Lb(f"L_{tag}c{i}")
        A(pace(DL[3], i))

    def pre_k():
        for i in range(NK0, 16):
            A(pace(D0, i))
            ring_load(i)

    RING3 = 190

    def pre_v():
        A(f"v_xor_b32 v{VT+4}, {dep(14, gb)}, v3")
        A("s_lshl_b32 s33, s28, 15")
        A("s_mov_b32 s35, 2")
        Lb("L_vdma")
        for i in range(16):
            if i % 4 == 0:
                A("s_mov_b32 m0, s33")
                A("s_add_u32 s33, s33, 4096")
            A(pace(D0, i))
            A(f"buffer_load_dwordx4 v{VT+4}, s[12:15], {'0' if i < 4 else 's%d' % (36+i//4)} offen offset:{(i%4)*1024} {kvpol} lds")
        A(f"v_xor_b32 v{VT+4}, {dep(1, gb)}, v{VT+4}")
        A("s_sub_u32 s35, s35, 1")
        A("s_cmp_lg_u32 s35, 0")
        A("s_cbranch_scc1 L_vdma")

    def pre_r():
        if ring3:
            A(f"v_xor_b32 v{VT+4}, {dep(13, gb)}, v3")
            for i in range(16):
                A(pace(D0, i))
                A(f"buffer_load_dwordx4 {vr(RING3+4*i,4)}, v{VT+4}, s[12:15], {'0' if i < 4 else 's%d' % (36+i//4)} offen offset:{(i%4)*1024} {kvpol}")

    def pre_p():
        if pf:
            A(f"v_lshlrev_b32 v{VT+4}, 4, v0")
            for n, (sr, cnt) in enumerate(((24, 6), (8, 5))):
                for k in range(cnt):
                    A(f"s_movk_i32 s3, {4096*k}")
                    A(pace(D0, k))
                    A(f"buffer_load_dwordx4 {vr(RING2+4*(6*n+k),4)}, v{VT+4}, s[{sr}:{sr+3}], s3 offen")

    def pre_w():
        if pf1:
            for k in range(6):
                A(f"v_add_u32 v{VT+4}, {256*k}, v0")
                A(f"v_mul_u32_u24 v{VT+5}, 58255, v{VT+4}")
                A(f"v_lshrrev_b32 v{VT+5}, 22, v{VT+5}")
                A(f"v_mul_u32_u24 v{VT+5}, {9216-1152}, v{VT+5}")
                A(f"v_lshl_add_u32 v{VT+4}, v{VT+4}, 4, v{VT+5}")
                A(pace(D0, k))
                A(f"buffer_load_dwordx4 {vr(RING2+44+4*(k%5),4)}, v{VT+4}, s[64:67], 0 offen")

    def ctl_init(p):
        for r in (49, 52, 53, 56, 57):
            A(f"s_mov_b32 s{r}, s50")
        A("s_add_u32 s49, s49, 0x40000000")
        A(f"s_mov_b32 s92, {p}")
        A(f"s_mov_b32 s4, {TH[0] - ramp[0]*ramp[1]}")
        A(f"s_mov_b32 s5, {TH[2]}")

    def egroup(tag, pre, load, extra={}):
        decide()
        at = atoms()
        for k, v in extra.items():
            at[k] = at.get(k, []) + v
        for i in range(16):
            for l in pre(i):
                A(l)
            cpace(D0, i, tag)
            A(load(i))
            emit_atom(at, i)

    if ec and ctl:
        so = lambda i: '0' if i < 4 else 's%d' % (36 + i // 4)
        for i in range(NK0, 16):
            A(pace(D0, i))
            ring_load(i)
            if i == 14:
                A("s_memrealtime s[50:51]")
        A("s_waitcnt lgkmcnt(0)")
        ctl_init(prior0)
        stamp(8)
        A(f"v_xor_b32 v{VT+4}, {dep(14, gb)}, v3")
        A("s_lshl_b32 s33, s28, 15")
        A("s_mov_b32 s35, 2")
        Lb("L_vdma")
        egroup("ev", lambda i: ["s_mov_b32 m0, s33"] if i % 4 == 0 else [],
               lambda i: f"buffer_load_dwordx4 v{VT+4}, s[12:15], {so(i)} offen offset:{(i%4)*1024} {kvpol} lds",
               {k: ["s_add_u32 s33, s33, 4096"] for k in (2, 5, 9, 13)})
        A(f"v_xor_b32 v{VT+4}, {dep(1, gb)}, v{VT+4}")
        A("s_sub_u32 s35, s35, 1")
        A("s_cmp_lg_u32 s35, 0")
        A("s_cbranch_scc1 L_vdma")
        stamp(9)
        A(f"v_xor_b32 v{VT+4}, {dep(13, gb)}, v3")
        egroup("er", lambda i: [],
               lambda i: f"buffer_load_dwordx4 {vr(RING3+4*i,4)}, v{VT+4}, s[12:15], {so(i)} offen offset:{(i%4)*1024} {kvpol}")
        stamp(10)

        if wpc:
            A(f"v_lshrrev_b32 v{VT+6}, 6, v0")
            A(f"v_mul_u32_u24 v{VT+6}, 320, v{VT+6}")
            A(f"v_add_u32 v{VT+6}, v{VT+6}, v2")

        def wp_pre(i):
            if i < 5:
                first = f"v_add_u32 v{VT+4}, {64*i}, v{VT+6}" if wpc else f"v_add_u32 v{VT+4}, {256*i}, v0"
                return [first, f"v_mul_u32_u24 v{VT+5}, 58255, v{VT+4}", f"v_lshrrev_b32 v{VT+5}, 22, v{VT+5}",
                        f"v_mul_u32_u24 v{VT+5}, {9216-1152}, v{VT+5}", f"v_lshl_add_u32 v{VT+4}, v{VT+4}, 4, v{VT+5}"]
            k = i - 5 if i < 11 else i - 11
            if wpc:
                if i == 10:
                    return [f"v_lshlrev_b32 v{VT+4}, 4, v0", "s_movk_i32 s3, 20480"]
                return ([f"v_lshlrev_b32 v{VT+4}, 4, v{VT+6}"] if i in (5, 11) else []) + [f"s_movk_i32 s3, {1024*k}"]
            return ([f"v_lshlrev_b32 v{VT+4}, 4, v0"] if i == 5 else []) + [f"s_movk_i32 s3, {4096*k}"]

        def wp_load(i):
            if i < 5:
                return f"buffer_load_dwordx4 {vr(RING2+4*i,4)}, v{VT+4}, s[64:67], 0 offen {ppol}"
            sr = 24 if i < 11 else 8
            return f"buffer_load_dwordx4 {vr(RING2+4*i,4)}, v{VT+4}, s[{sr}:{sr+3}], s3 offen {ppol}"
        egroup("ew", wp_pre, wp_load)
        A(f"s_mov_b32 s92, {prior}")
    else:
        for n, ch in enumerate(order):
            {"k": pre_k, "v": pre_v, "r": pre_r, "p": pre_p, "w": pre_w}[ch]()
            if n < 3:
                stamp(8 + n)
    stamp(1)
    lds_spin("L_qwait", VLB, O_CNT + C_Q, VT, 0 if noqwait else 1, sleep=0)
    A(f"ds_read_b128 {vr(VQ,4)}, v{VT+3} offset:{O_Q}")
    A("s_mov_b32 s34, 16")
    if ctl:
        A("s_memrealtime s[50:51]")
    stamp(2)
    A("s_waitcnt lgkmcnt(0)")
    if ctl and not ec:
        ctl_init(prior)
    if ctl and ec:
        A("s_sub_u32 s50, s50, 20")

    def red_a(i):
        j = i & 3
        dst = VA0 if j < 2 else VA1
        bm = "0x3" if (j & 1) == 0 else "0xc"
        p = VP + (i & 1)
        A(f"v_add_f32_dpp v{dst}, v{p}, v{p} row_ror:8 row_mask:0xf bank_mask:{bm}")

    def red_b(which):
        src = VA0 if which == 0 else VA1
        bm = "0x5" if which == 0 else "0xa"
        A(f"v_add_f32_dpp v{VB}, v{src}, v{src} row_half_mirror row_mask:0xf bank_mask:{bm}")

    def red_c():
        A(f"v_add_f32_dpp v{VC}, v{VB}, v{VB} quad_perm:[1,0,3,2] {DPP_ALL}")

    def red_d(k):
        dst = VS if k == 0 else VB
        A(f"v_add_f32_dpp v{dst}, v{VC}, v{VC} quad_perm:[2,3,0,1] {DPP_ALL}")

    def red_e(k):
        if k:
            A(f"v_cndmask_b32 v{VS}, v{VS}, v{VB}, s[{38+2*k}:{39+2*k}]")

    def post_a():
        if probe < 1:
            bfround(VS, VS)
        A(f"v_mul_f32 v{VS}, {f32(128 ** -0.5)}, v{VS}")

    def post_b():
        if probe < 2:
            bfround(VE + 15, VS)
        else:
            A(f"v_mov_b32 v{VE+15}, v{VS}")

    Lb("L_kloop")
    loop_stamp(33)
    next_group()
    A("s_cmp_eq_u32 s34, 1")
    A("s_cselect_b32 s16, s12, s16")
    A("s_cselect_b32 s17, s13, s17")
    decide()
    at = atoms()
    for i in range(16):
        k, j = i >> 2, i & 3
        p = VP + (i & 1)
        R = RING + 4 * i
        A(f"v_dot2_f32_bf16 v{p}, v{R}, v{VQ}, 0")
        A(f"v_dot2_f32_bf16 v{p}, v{R+1}, v{VQ+1}, v{p}")
        red_a((i - 1) & 15)
        A(f"v_dot2_f32_bf16 v{p}, v{R+2}, v{VQ+2}, v{p}")
        if j == 0:
            red_b(0)
        elif j == 1:
            red_b(1)
        elif j == 2:
            red_c()
        else:
            red_d((k - 1) & 3)
        A(f"v_dot2_f32_bf16 v{p}, v{R+3}, v{VQ+3}, v{p}")
        cpace(DK, i, "pk")
        ring_load(i)
        if j == 3:
            red_e((k - 1) & 3)
        if i == 4:
            post_a()
        if i == 5:
            post_b()
        if i < 15:
            A(f"v_mov_b32 v{VE+i}, v{VE+i+1}")
        emit_atom(at, i)
    A("s_sub_u32 s34, s34, 1")
    A("s_cmp_lg_u32 s34, 0")
    A("s_cbranch_scc1 L_kloop")
    stamp(3)

    def sm_a():
        red_a(15)
        red_b(0)
        A("s_nop 0")
        red_b(1)
        A("s_nop 1")
        red_c()
        A("s_nop 1")
        red_d(3)
        red_e(3)
        post_a()
        post_b()
        A(f"v_max3_f32 v{VMAX}, v{VE}, v{VE+1}, v{VE+2}")
        for u in range(3, 15, 2):
            A(f"v_max3_f32 v{VMAX}, v{VMAX}, v{VE+u}, v{VE+u+1}")
        A(f"v_max_f32 v{VMAX}, v{VMAX}, v{VE+15}")
        allreduce_row("v_max_f32", VMAX)
        swap_reduce("v_max_f32", VMAX, VT, 16)
        swap_reduce("v_max_f32", VMAX, VT, 32)
        for u in range(16):
            A(f"v_sub_f32 v{VE+u}, v{VE+u}, v{VMAX}")
        for u in range(16):
            A(f"v_mul_f32 v{VE+u}, {f32(LOG2E)}, v{VE+u}")
        for u in range(16):
            A(f"v_exp_f32 v{VE+u}, v{VE+u}")
        A(f"v_add_f32 v{VS}, v{VE}, v{VE+1}")
        for u in range(2, 16):
            A(f"v_add_f32 v{VS}, v{VS}, v{VE+u}")
        A(f"s_lshl_b32 s3, s28, 9")
        A(f"v_lshl_add_u32 v{VT+2}, v2, 2, v{VLB}")
        A(f"v_add_u32 v{VT+2}, s3, v{VT+2}")
        A(f"ds_write_b32 v{VT+2}, v{VE+14} offset:{O_E}")
        A(f"ds_write_b32 v{VT+2}, v{VE+15} offset:{O_E+256}")
        allreduce_row("v_add_f32", VS)
        swap_reduce("v_add_f32", VS, VT, 16)
        swap_reduce("v_add_f32", VS, VT, 32)
        A(f"s_lshl_b32 s3, s28, 3")
        A(f"v_add_u32 v{VT+2}, s3, v{VLB}")
        A(f"ds_write_b32 v{VT+2}, v{VMAX} offset:{O_ST}")
        A(f"ds_write_b32 v{VT+2}, v{VS} offset:{O_ST+4}")
        A(f"v_mov_b32 v{VT+3}, 1")

    def sm_b():
        softmax_factor(VLB, VT, VS, VMAX)
        for u in range(14):
            A(f"v_mul_f32 v{VE+u}, v{VE+u}, v{VS}")
        for u in range(14):
            A(f"v_cvt_pk_bf16_f32 v{VE+u}, v{VE+u}, v{VE+u}")

    nxt = [0]

    def issue2():
        i = nxt[0]
        if ctl:
            A("s_cmp_lg_u32 s90, 0")
        cpace(DT, i, "pt")
        ring_load(i, RING2)
        emit_atom(at, i, restore=False)
        nxt[0] += 1

    def weave(lines, n):
        step = (len(lines) + n - 1) // n
        for a in range(0, len(lines), step):
            issue2()
            o.extend(lines[a:a + step])

    if stamps:
        A("s_mov_b32 s34, 14")
        loop_stamp(47)
    next_group()
    decide()
    at = atoms()
    weave(capture(sm_a), 6)
    A("s_waitcnt lgkmcnt(0)")
    lds_arrive(VLB, O_CNT + C_SM, VT + 3)
    while nxt[0] < 12:
        issue2()
    lds_spin("L_smwait", VLB, O_CNT + C_SM, VT, 8, sleep=0)
    weave(capture(sm_b), 4)
    while nxt[0] < 16:
        issue2()
    stamp(4)

    def build_a(n, i, vp):
        for r in range(4):
            A(f"v_and_b32_dpp v{VAO+4*(n&1)+r}, v{vp}, v{VM+r} row_newbcast:{cl(i)} {DPP_ALL}")

    def pv_mfma(n, reg):
        A(f"v_mfma_f32_16x16x32_bf16 {vr(VACC,4)}, {vr(VAO+4*(n&1),4)}, {vr(reg,4)}, {vr(VACC,4)}")

    if stamps:
        A("s_mov_b32 s34, 13")
        loop_stamp(47)
    next_group()
    decide()
    at = atoms()
    build_a(0, 0, VE)
    for i in range(16):
        build_a(1, i, VE + 1)
        pv_mfma(0, RING + 4 * i)
        cpace(DV, i, "px")
        ring_load(i)
        if ring3:
            build_a(0, i, VE + 13)
            pv_mfma(1, RING2 + 4 * i)
            A("s_nop 0")
            pv_mfma(0, RING3 + 4 * i)
            build_a(0, (i + 1) & 15, VE if i < 15 else VPC)
        else:
            build_a(0, (i + 1) & 15, VE if i < 15 else VPC)
            pv_mfma(1, RING2 + 4 * i)
        emit_atom(at, i)
    A(f"s_mov_b32 s34, {10 if ring3 else 11}")

    if THV and ctl:
        thc[0] = THV
        A(f"s_mov_b32 s4, {THV[0]}")
        A(f"s_mov_b32 s5, {THV[2]}")
    Lb("L_vloop")
    loop_stamp(45 if ring3 else 46)
    next_group()
    decide(True)
    at = atoms(True)
    if eb is not None and ctl:
        for st in [eb] + [k for k in (3, 7, 11) if k > eb]:
            at[st] = at.get(st, []) + ["s_cmp_eq_u32 s34, 1", "s_cselect_b64 vcc, -1, vcc", "s_cselect_b32 s90, 1, s90"]
    for i in range(16):
        pv_mfma(i, RING + 4 * i)
        cpace(DV, i, "pv")
        ring_load(i)
        build_a(i + 1, (i + 1) & 15, VPC if i < 15 else VN)
        if i == 0:
            A(f"v_mov_b32 v{VN}, v{VPC+1}")
        if 1 <= i <= 10:
            A(f"v_mov_b32 v{VPC+i}, v{VPC+i+1}")
        if i == 15:
            A(f"v_mov_b32 v{VPC}, v{VN}")
        emit_atom(at, i)
        if i > 10 and i < 15 and i not in at:
            A("s_nop 0")
        if i < 15 and i not in at:
            A("s_nop 0")
    A("s_sub_u32 s34, s34, 1")
    A("s_cmp_lg_u32 s34, 0")
    A("s_cbranch_scc1 L_vloop")
    loop_stamp(46)
    if ring3 and stamps and stamps != "lite":
        A(f"v_writelane_b32 v{VST}, s70, 45")
    A(f"v_lshl_add_u32 v{VT}, v0, 3, v{VLB}")
    A("s_call_b64 s[62:63], L_sub_pv")
    A("s_nop 6")
    A(f"ds_write_b64 v{VT}, {vr(VACC,2)} offset:{O_OP}")
    A("s_waitcnt lgkmcnt(0)")
    stamp(5)
    A("s_barrier")
    if stamps == "lite":
        A("s_memrealtime s[70:71]")
        A("s_waitcnt lgkmcnt(0)")
        A(f"v_writelane_b32 v{VST}, s70, 5")
    A(f"s_and_b32 s3, {ID}, {15 if cmap else 31}")
    A("s_lshl_b32 s33, s28, 5")
    A("s_add_u32 s3, s3, s33")
    A(f"s_cmp_ge_u32 s3, {9 if cmap else 18}")
    A("s_cbranch_scc1 L_fin")
    A(f"v_lshl_add_u32 v{VT}, v2, 4, v{VLB}")
    A(f"ds_read_b128 {vr(HB2,4)}, v{VT} offset:{O_CX}")
    final_srds(6, True)
    if b4 and not bfirst:
        A("s_barrier")
    if fa and ctl:
        A("s_memrealtime s[50:51]")
        A("s_waitcnt lgkmcnt(0)")
        A("s_sub_u32 s3, s49, s50")
        A(f"s_add_u32 s3, s3, {fa[0]}")
        A(f"s_max_i32 s3, s3, {fa[1]}")
        A(f"s_min_i32 s3, s3, {fa[2]}")
        Lb("L_backoff")
        A("s_sleep 1")
        A("s_sub_u32 s3, s3, 4")
        A("s_cbranch_scc0 L_backoff")
    if ge:
        A("s_call_b64 s[62:63], L_sub_final_g")
        A(f"s_sleep {ge}")
    if b4 and bfirst:
        A("s_barrier")
    if f0:
        A(f"s_sleep {f0}")
    A("s_waitcnt lgkmcnt(0)")
    stamp(13)
    A("s_call_b64 s[62:63], L_sub_final")
    stamp(14)
    A("s_branch L_fin" if (stamps or fixdur) else "s_endpgm")

    Lb("L_sub_pv")
    build_a(0, 0, VPC)
    for i in range(16):
        if i < 15:
            build_a(i + 1, i + 1, VPC)
        if 15 - i < int((DL[3] if ctl else DV) + 0.5):
            A(f"s_waitcnt vmcnt({15-i})")
        pv_mfma(i, RING + 4 * i)
    A("s_setpc_b64 s[62:63]")

    HC, HG, HLB = 4, 5, 6
    HVB, HVS = 7, 8
    HPM, HPR = 9, 10
    HOP = 11
    HD = 16
    HF2 = 64
    HT = 64
    HA = 88
    XO, XP, XZ, XE = 104, 105, 106, 107
    HF = 112
    ST = 28
    GH, GT = 20, 82

    helper_start = len(o)
    Lb("L_helper")
    if hprio:
        A(f"s_setprio {hprio}")
    A(f"v_and_b32 v{HT}, 31, v2")
    A(f"v_mul_u32_u24 v{HT}, 36, v{HT}")
    A("s_lshr_b32 s30, s2, 5")
    A("s_mul_i32 s68, s30, 1152")
    XR = 52
    srd(8, SX, None, 9216)
    A(f"buffer_load_dwordx4 {vr(XR,4)}, v{HT}, s[8:11], s68 offen")
    A(f"buffer_load_dwordx4 {vr(XR+4,4)}, v{HT}, s[8:11], s68 offen offset:16")
    A(f"buffer_load_dword v{XR+8}, v{HT}, s[8:11], s68 offen offset:32")
    A("s_barrier")
    A("s_sub_u32 s28, s28, 4")
    if cpf:
        A("s_getpc_b64 s[34:35]")
        Lb("L_pc")
        A("s_lshr_b32 s3, s2, 3")
        A("s_lshl_b32 s3, s3, 10")
        A(f"v_subrev_u32 v{HT+8}, 256, v0")
        A(f"v_lshl_add_u32 v{HT+8}, v{HT+8}, 2, s3")
        A(f"v_min_u32 v{HT+8}, L_code_end-L_pc-4, v{HT+8}")
        A(f"v_mov_b32 v{HT+9}, s35")
        A(f"v_add_co_u32 v{HT+8}, vcc, s34, v{HT+8}")
        A("s_nop 1")
        A(f"v_addc_co_u32 v{HT+9}, vcc, 0, v{HT+9}, vcc")
        A(f"global_load_dword v{HT+10}, {vr(HT+8,2)}, off")
    A(f"s_and_b32 s29, {ID}, 31")
    A(f"v_lshrrev_b32 v{HG}, 4, v2")
    HRW, HW1, HXA = HT + 1, HT + 2, HT + 3
    A("s_mul_i32 s3, s28, 144")
    A(f"v_lshl_add_u32 v{HRW}, v{HG}, 2, s3")
    A(f"v_lshlrev_b32 v{HW1}, 13, v{HRW}")
    A(f"v_lshl_add_u32 v{HW1}, v{HC}, 4, v{HW1}")
    A("s_lshl_b32 s3, s29, 8")
    srd(12, SWQ, "s3", 575 * 8192 + 256)

    per = 256 // ncl

    def is_marker(label):
        A("s_add_u32 s3, s2, 3")
        A("s_xor_b32 s3, s3, s30")
        A(f"s_and_b32 s3, s3, {per-1}")
        A(f"s_cbranch_scc1 {label}")

    def marker_index():
        A("s_lshl_b32 s3, s29, 3")
        A("s_add_u32 s3, s3, s30")
        A(f"s_lshr_b32 s3, s3, {per.bit_length()-1}")

    def mark_stores():
        is_marker("L_h_nomark")
        marker_index()
        A(f"s_mul_i32 s3, s3, {per*SLOT2}")
        srd(20, SWS, "s3", 0 if noclear else per * SLOT2)
        for r in range(4):
            A(f"v_mov_b32 v{48+r}, -1")
        A(f"v_subrev_u32 v{HT+5}, 256, v0")
        A(f"v_lshlrev_b32 v{HT+5}, 4, v{HT+5}")
        A("s_mov_b32 s35, 0")
        for k in range((per * SLOT2 + 4095) // 4096):
            A(f"buffer_store_dwordx4 {vr(48,4)}, v{HT+5}, s[20:23], s35 offen sc1")
            A("s_add_u32 s35, s35, 4096")
        Lb("L_h_nomark")

    def mark_report():
        is_marker("L_h_noreport")
        marker_index()
        A(f"s_lshl_b32 s3, s3, {3 if ncl == 32 else 2}")
        A(f"v_mov_b32 v{HT+6}, s3")
        A("s_waitcnt vmcnt(0)")
        A("s_mov_b64 exec, 1")
        A(f"ds_add_rtn_u32 v{HT+5}, v{HLB}, v3 offset:{O_CNT+C_CL}")
        A("s_waitcnt lgkmcnt(0)")
        A(f"v_readfirstlane_b32 s3, v{HT+5}")
        A("s_cmp_lg_u32 s3, 3")
        A("s_cbranch_scc1 L_h_noflag")
        A(f"global_store_dword v{HT+6}, v3, s[{SDBG}:{SDBG+1}] sc1")
        Lb("L_h_noflag")
        A("s_mov_b64 exec, -1")
        Lb("L_h_noreport")

    if clat == "start":
        mark_stores()

    def bump(r):
        A(f"s_add_u32 {r}, {r}, 1")
        A(f"s_cmp_eq_u32 {r}, 9")
        A(f"s_cselect_b32 {r}, 0, {r}")

    A("s_mov_b32 s32, s30" if rot else "s_mov_b32 s32, 0")
    A("s_mov_b32 s33, s32")
    def q_first(n):
        st, j = n >> 2, n & 3
        if j == 0:
            A("s_lshl_b32 s34, s33, 17")
        if n >= N0:
            A(pace(NQ, n))
        A(f"buffer_load_dwordx4 {vr(HF+16*st+4*j,4)}, v{HW1}, s[12:15], s34 offen {wpol}")
        A("s_add_u32 s34, s34, 8192")
        if j == 3:
            bump("s33")

    for n in range(N0):
        q_first(n)
    stamp(16 + 1)
    A(f"s_waitcnt vmcnt({N0})")
    ln_start = len(o)

    Lb("L_h_ln")
    stamp(1)
    A("s_mov_b32 s94, 0x05040100")
    A("s_mov_b32 s95, 0x07060302")
    XF = HD
    SUM, T1, MEAN = 34, 35, 36
    for d in range(9):
        A(f"v_lshlrev_b32 v{XF+2*d}, 16, v{XR+d}")
        A(f"v_and_b32 v{XF+2*d+1}, 0xffff0000, v{XR+d}")
    A(f"v_add_f32 v{SUM}, v{XF}, v{XF+1}")
    for e in range(2, 18):
        A(f"v_add_f32 v{SUM}, v{SUM}, v{XF+e}")
    allreduce_row("v_add_f32", SUM)
    swap_reduce("v_add_f32", SUM, T1, 16)
    A(f"v_mul_f32 v{MEAN}, {f32(1/576)}, v{SUM}")
    A(f"v_mov_b32 v{SUM}, 0")
    for e in range(18):
        t = 38 + (e & 1)
        A(f"v_sub_f32 v{t}, v{XF+e}, v{MEAN}")
        A(f"v_fmac_f32 v{SUM}, v{t}, v{t}")
    allreduce_row("v_add_f32", SUM)
    swap_reduce("v_add_f32", SUM, T1, 16)
    A(f"v_mul_f32 v{SUM}, {f32(1/576)}, v{SUM}")
    bfround(MEAN, MEAN)
    bfround(SUM, SUM)
    A(f"v_add_f32 v{SUM}, {f32(1e-5)}, v{SUM}")
    bfround(SUM, SUM)
    A(f"v_sqrt_f32 v{SUM}, v{SUM}")
    A("s_nop 0")
    bfround(SUM, SUM)
    A(f"v_rcp_f32 v{SUM}, v{SUM}")
    for e in range(18):
        A(f"v_sub_f32 v{XF+e}, v{XF+e}, v{MEAN}")
    for d in range(9):
        A(f"v_cvt_pk_bf16_f32 v{XR+d}, v{XF+2*d}, v{XF+2*d+1}")
    for d in range(9):
        A(f"v_lshlrev_b32 v{XF+2*d}, 16, v{XR+d}")
        A(f"v_and_b32 v{XF+2*d+1}, 0xffff0000, v{XR+d}")
    for e in range(18):
        A(f"v_mul_f32 v{XF+e}, v{XF+e}, v{SUM}")
    for e in range(18):
        A(f"v_cvt_pk_bf16_f32 v{XF+e}, v{XF+e}, v{XF+e}")
    ln_code = o[ln_start:]
    del o[ln_start:]
    rest = list(range(N0, 8))
    step = (len(ln_code) + len(rest) - 1) // max(len(rest), 1)
    for n in rest:
        o.extend(ln_code[:step]); ln_code = ln_code[step:]
        q_first(n)
    o.extend(ln_code)
    A(f"v_lshl_add_u32 v{HT}, v{HT}, 1, v{HLB}")
    A(f"v_lshrrev_b32 v{HXA}, 3, v2")
    A(f"v_mov_b32 v3, 1")
    A(f"v_cmp_eq_u32 vcc, s28, v{HXA}")
    A("s_and_saveexec_b64 s[34:35], vcc")
    for d in range(9):
        A(f"ds_write_b64 v{HT}, {vr(XF+2*d,2)} offset:{O_XN+8*d}")
    A("s_mov_b64 exec, -1")
    A(f"v_lshl_add_u32 v{HXA}, v{HRW}, 2, v{HLB}")
    A("s_waitcnt lgkmcnt(0)")
    pv_masks(VM, HC, HT + 4)
    for r in range(4):
        A(f"v_mov_b32 v{VACC+r}, 0")
    stamp(2)
    XV = 48

    def read_x():
        A("s_lshl_b32 s3, s32, 6")
        A(f"v_add_u32 v{HT+4}, s3, v{HXA}")
        A(f"ds_read_b128 {vr(XV,4)}, v{HT+4} offset:{O_XN}")

    def diag(j):
        for r in range(4):
            A(f"v_and_b32 v{VAO+4*(j&1)+r}, v{XV+j}, v{VM+r}")

    A("s_mov_b32 s77, 2")
    Lb("L_h_q")
    for st in range(2):
        read_x()
        bump("s32")
        A("s_lshl_b32 s34, s33, 17")
        A("s_cmp_ge_u32 s77, 9")
        A(f"s_cselect_b32 s34, {OOB}, s34")
        bump("s33")
        A("s_add_u32 s77, s77, 1")
        A("s_waitcnt lgkmcnt(0)")
        for j in range(4):
            diag(j)
            A(pace(min(8, NQ), j))
            A("s_nop 0")
            pv_mfma(j, HF + 16 * st + 4 * j)
            A(f"buffer_load_dwordx4 {vr(HF+16*st+4*j,4)}, v{HW1}, s[12:15], s34 offen {wpol}")
            A("s_add_u32 s34, s34, 8192")
        if st == 0:
            A("s_cmp_eq_u32 s77, 11")
            A("s_cbranch_scc1 L_h_q_done")
    A("s_branch L_h_q")
    Lb("L_h_q_done")
    A(f"v_subrev_u32 v{HT+4}, 256, v0")
    A(f"v_lshl_add_u32 v{HT+4}, v{HT+4}, 3, v{HLB}")
    A("s_nop 1")
    A(f"ds_write_b64 v{HT+4}, {vr(VACC,2)} offset:{O_E}")
    A("s_waitcnt lgkmcnt(0)")
    A("s_mov_b64 exec, 1")
    A(f"ds_add_rtn_u32 v{HT+5}, v{HLB}, v3 offset:{O_CNT+C_S1}")
    A("s_mov_b64 exec, -1")
    A(f"v_lshl_add_u32 v{HOP}, v2, 3, v{HLB}")
    A("s_waitcnt lgkmcnt(0)")
    A(f"v_readfirstlane_b32 s3, v{HT+5}")
    stamp(3)
    A("s_cmp_lg_u32 s3, 3")
    A("s_cbranch_scc1 L_h_q_out")
    for k in range(4):
        A(f"ds_read_b64 {vr(XV+2*k,2)}, v{HOP} offset:{O_E+512*k}")
    A(f"v_lshl_add_u32 v{HT+5}, v{HC}, 3, v{HG}")
    A(f"v_lshl_add_u32 v{HT+5}, v{HT+5}, 1, v{HLB}")
    A("s_waitcnt lgkmcnt(0)")
    A(f"v_pk_add_f32 {vr(XV,2)}, {vr(XV,2)}, {vr(XV+2,2)}")
    A(f"v_pk_add_f32 {vr(XV+4,2)}, {vr(XV+4,2)}, {vr(XV+6,2)}")
    A(f"v_pk_add_f32 {vr(XV,2)}, {vr(XV,2)}, {vr(XV+4,2)}")
    A(f"v_cvt_pk_bf16_f32 v{XV}, v{XV}, v{XV+1}")
    A(f"ds_write_b16 v{HT+5}, v{XV} offset:{O_Q}")
    A(f"ds_write_b16_d16_hi v{HT+5}, v{XV} offset:{O_Q+8}")
    A("s_waitcnt lgkmcnt(0)")
    A(f"ds_write_b32 v{HLB}, v3 offset:{O_CNT+C_Q}")
    stamp(6)
    Lb("L_h_q_out")
    if hprio:
        A("s_setprio 0")

    if st0:
        A("s_cmp_lg_u32 s28, 3")
        A("s_cbranch_scc1 L_nost0")
        A("s_lshl_b32 s3, s2, 7")
        A(f"s_add_u32 s3, s3, {WS_STAMP}")
        A(f"v_mov_b32 v{HT+8}, s3")
        A(f"v_mov_b32 v{HT+9}, s74")
        A("s_mov_b64 exec, 1")
        A(f"global_store_dword v{HT+8}, v{HT+9}, s[{SWS}:{SWS+1}] sc1")
        A("s_mov_b64 exec, -1")
        Lb("L_nost0")
    if clat == "q":
        mark_stores()
    if clat != "h":
        mark_report()

    A("s_and_b32 s31, s2, 7")
    A("s_lshl_b32 s31, s31, 2")
    A("s_bfe_u32 s3, s2, 0x20003")
    A("s_add_u32 s31, s31, s3")
    A("s_mul_i32 s3, s31, 288")
    srd(12, SW1, "s3", 575 * 9216 + 288)
    srd(20, SB1, "s3", 288)
    HN1, GB = HT + 5, 60
    A(f"v_mul_u32_u24 v{HW1}, 9216, v{HRW}")
    A(f"v_lshl_add_u32 v{HN1}, v{HC}, 1, v{HW1}")
    A(f"v_lshl_add_u32 v{HW1}, v{HC}, 4, v{HW1}")
    if smf:
        A(f"v_and_b32 v{HT+6}, 8, v2")
        A(f"v_bfe_u32 v{HT+7}, v2, 5, 1")
        A(f"v_lshl_add_u32 v{HT+6}, v{HT+7}, 2, v{HT+6}")
        A(f"v_and_b32 v{HT+7}, 1, v2")
        A(f"v_lshl_add_u32 v{HT+6}, v{HT+7}, 1, v{HT+6}")
        A(f"v_bfe_u32 v{HT+7}, v2, 2, 1")
        A(f"v_add_u32 v{HT+6}, v{HT+6}, v{HT+7}")
        A(f"v_bfe_u32 v{HT+7}, v2, 4, 1")
        A(f"v_bfe_u32 v{HT+8}, v2, 1, 1")
        A(f"v_lshl_add_u32 v{HT+7}, v{HT+7}, 1, v{HT+8}")
        A(f"v_lshl_add_u32 v{HOP}, v{HT+7}, 4, v{HT+6}")
        A(f"v_lshl_add_u32 v{HOP}, v{HOP}, 3, v{HLB}")
        A(f"v_lshl_add_u32 v{HT+6}, v{HT+6}, 3, v{HT+7}")
    else:
        A(f"v_lshl_add_u32 v{HT+6}, v{HC}, 3, v{HG}")
    A(f"v_lshlrev_b32 v{HT+6}, 1, v{HT+6}")
    A(f"v_lshlrev_b32 v{HT+7}, 1, v{HC}")
    A("s_waitcnt vmcnt(0)")
    A(f"buffer_load_ushort v{GB}, v{HT+6}, s[20:23], 0 offen")
    A(f"buffer_load_ushort v{GB+1}, v{HT+6}, s[20:23], 0 offen offset:8")
    A(f"buffer_load_ushort v{GB+2}, v{HT+7}, s[20:23], 0 offen offset:256")
    RA, PA, PB = 52, 56, 58
    for r in range(4):
        A(f"v_mov_b32 v{VACC+r}, 0")
        A(f"v_mov_b32 v{RA+r}, 0")
    A("s_mov_b32 s32, s30" if rot else "s_mov_b32 s32, 0")
    A("s_mov_b32 s77, 9")
    Lb("L_h_h")
    read_x()
    A(f"s_mul_i32 s34, s32, {16*9216}")
    bump("s32")
    for half in range(2):
        for j in (2 * half, 2 * half + 1):
            A(f"buffer_load_dwordx4 {vr(HF+4*j,4)}, v{HW1}, s[12:15], s34 offen {wpol}")
            A(f"buffer_load_ushort v{HF+16+j}, v{HN1}, s[12:15], s34 offen offset:256 {wpol}")
            A("s_add_u32 s34, s34, 9216")
        A("s_waitcnt lgkmcnt(0)")
        diag(2 * half)
        diag(2 * half + 1)
        A(f"v_perm_b32 v{PA+half}, v{XV+2*half+1}, v{XV+2*half}, s94")
        A("s_waitcnt vmcnt(0)")
        A(f"v_lshl_or_b32 v{PB+half}, v{HF+17+2*half}, 16, v{HF+16+2*half}")
        pv_mfma(2 * half, HF + 8 * half)
        pv_mfma(2 * half + 1, HF + 8 * half + 4)
    A(f"v_mfma_f32_16x16x16_bf16 {vr(RA,4)}, {vr(PA,2)}, {vr(PB,2)}, {vr(RA,4)}")
    A("s_sub_u32 s77, s77, 1")
    A("s_cmp_lg_u32 s77, 0")
    A("s_cbranch_scc1 L_h_h")
    A(f"v_lshl_add_u32 v{HT+4}, v0, 3, v{HLB}")
    A("s_lshl_b32 s3, s28, 6")
    A(f"v_lshl_add_u32 v{HT+6}, v{HC}, 2, v{HLB}")
    A(f"v_add_u32 v{HT+6}, s3, v{HT+6}")
    A("s_nop 1")
    A(f"ds_write_b64 v{HT+4}, {vr(VACC,2)} offset:{O_OP}")
    A(f"ds_write_b32 v{HT+6}, v{RA} offset:{O_HS}")
    A("s_waitcnt lgkmcnt(0)")
    lds_arrive(HLB, O_CNT + C_H, 3)
    stamp(4)
    if clat == "h":
        mark_stores()
        mark_report()
    A(f"v_mul_u32_u24 v{HVB}, 1152, v{HG}")
    A(f"v_lshl_add_u32 v{HVS}, v{HC}, 1, v{HVB}")
    A("s_lshl_b32 s3, s28, 5")
    A("s_add_u32 s3, s3, 1024")
    A(f"v_add_u32 v{HVS}, s3, v{HVS}")
    A("s_lshl_b32 s3, s28, 8")
    A(f"v_lshl_add_u32 v{HVB}, v{HC}, 4, v{HVB}")
    A(f"v_add_u32 v{HVB}, s3, v{HVB}")
    A(f"v_lshlrev_b32 v{HPM}, 5, v{HC}")
    A(f"v_lshl_add_u32 v{HPM}, v{HG}, 4, v{HPM}")
    A("s_lshl_b32 s3, s28, 9")
    A(f"v_add_u32 v{HPM}, s3, v{HPM}")
    A(f"v_mov_b32 v{HT}, {OOB}")
    A(f"v_cmp_gt_u32 vcc, 2, v{HG}")
    A("s_lshl_b32 s3, s28, 6")
    A("s_add_u32 s3, s3, 2048")
    A(f"v_cndmask_b32 v{HPM}, v{HT}, v{HPM}, vcc")
    A(f"v_lshl_add_u32 v{HPR}, v{HC}, 2, s3")
    A(f"v_cmp_eq_u32 vcc, 0, v{HG}")
    A("s_nop 1")
    A(f"v_cndmask_b32 v{HPR}, v{HT}, v{HPR}, vcc")
    A(f"s_mov_b32 s96, {'0xf0f0f0f0' if smf else '0xffff0000'}")
    A("s_mov_b32 s97, s96")

    A(f"s_mul_i32 s3, s31, {144*1152}")
    srd(20, SW2, "s3", 144 * 1152)
    HT = 104
    PS = 110
    for e in range(4):
        A(f"s_mov_b32 s33, {(128+4*e)*1152}")
        A(f"buffer_load_dwordx4 {vr(ST+4*e,4)}, v{HVB}, s[20:23], s33 offen {spol}")
        A(f"buffer_load_ushort v{ST+16+e}, v{HVS}, s[20:23], s33 offen {spol}")
    A("s_waitcnt vmcnt(0)")
    for r in range(2):
        for t in range(8):
            lo = ST + 8 * r + (t >> 1)
            A(f"v_perm_b32 v{HF2+2*t+r}, v{lo+4}, v{lo}, s{94+(t&1)}")
        A(f"v_lshl_or_b32 v{HF2+16+r}, v{ST+17+2*r}, 16, v{ST+16+2*r}")
    A("s_call_b64 s[62:63], L_sub_load")
    stamp(7)
    lds_spin("L_h_hwait", HLB, O_CNT + C_H, HT, 4)
    GL = 16
    A(f"v_lshl_add_u32 v{HT}, v{HC}, 2, v{HLB}")
    for k in range(4):
        A(f"ds_read_b64 {vr(GL+4*k,2)}, v{HOP} offset:{O_OP+512*(4+k)}")
        A(f"ds_read_b32 v{GL+4*k+2}, v{HT} offset:{O_HS+64*k}")
    A(f"v_and_b32 v{HT}, 3, v{HC}")
    A(f"v_lshrrev_b32 v{HT+1}, 2, v{HC}")
    A(f"v_lshl_add_u32 v{HT}, v{HT}, 2, v{HT+1}")
    A(f"v_lshl_add_u32 v{HT}, v{HT}, 1, v{HLB}")
    A("s_waitcnt lgkmcnt(0)")
    c1 = -2.0 * LOG2E * 0.7978845608028654
    for r in range(3):
        A(f"v_add_f32 v{GL+r}, v{GL+r}, v{GL+4+r}")
        A(f"v_add_f32 v{GL+8+r}, v{GL+8+r}, v{GL+12+r}")
        A(f"v_add_f32 v{GL+r}, v{GL+r}, v{GL+8+r}")
        bfround(GL + r, GL + r)
        A(f"v_lshlrev_b32 v{GB+r}, 16, v{GB+r}")
        A(f"v_add_f32 v{GL+r}, v{GL+r}, v{GB+r}")
        bfround(GL + r, GL + r)
        A(f"v_mul_f32 v{GB+r}, v{GL+r}, v{GL+r}")
        A(f"v_mov_b32 v{GL+3}, {f32(c1)}")
        A(f"v_fmac_f32 v{GL+3}, {f32(c1*0.044715)}, v{GB+r}")
        A(f"v_mul_f32 v{GB+r}, v{GL+3}, v{GL+r}")
        A(f"v_exp_f32 v{GB+r}, v{GB+r}")
        A("s_nop 0")
        A(f"v_add_f32 v{GB+r}, 1.0, v{GB+r}")
        A(f"v_rcp_f32 v{GB+r}, v{GB+r}")
        A("s_nop 0")
        A(f"v_mul_f32 v{GL+r}, v{GL+r}, v{GB+r}")
        bfround(PS + r if r < 2 else GL + r, GL + r)
    A(f"ds_write_b16_d16_hi v{HT}, v{GL+2} offset:{O_HR}")
    A("s_waitcnt lgkmcnt(0)")
    A(f"v_lshl_add_u32 v{HT}, v{HG}, 3, v{HLB}")
    A(f"ds_read_b64 {vr(HT+2,2)}, v{HT} offset:{O_HR}")
    A("s_lshl_b32 s3, s29, 3")
    A("s_add_u32 s3, s3, s30")
    A(f"s_mul_i32 s3, s3, {SLOT2}")
    srd(24, SWS, "s3", 0)
    A("s_waitcnt lgkmcnt(0)")
    IDX = HA + 8

    def set_idx():
        A(f"v_mov_b32 v{IDX}, 0x4444")
        A(f"v_mov_b32 v{IDX+1}, 0xeeee")
        A(f"v_cndmask_b32 v{IDX}, v{IDX}, v{IDX+1}, s[96:97]")
    if smf:
        for r in range(2):
            A(f"v_cndmask_b32 v{HT+2+r}, v{HT+2+r}, 0, s[96:97]")
        set_idx()
    for t in range(9):
        A(f"v_mfma_f32_16x16x16_bf16 {vr(HD+4*t,4)}, {vr(HT+2,2)}, {vr(HF2+2*t,2)}, 0")
    A("s_call_b64 s[62:63], L_sub_gemv")
    OR = HF2
    for r in range(4):
        A(f"v_mov_b32 v{GH+r}, v{OR+4+r}")
    A(f"v_mov_b32 v{GH+4}, v{HD+32}")
    A(f"s_mov_b32 s26, {SLOT2}")
    lds_arrive(HLB, O_CNT + C_SM, 3)
    stamp(8)
    A(f"s_mul_i32 s3, s29, {128*1152}")
    srd(20, SWO, "s3", 128 * 1152)
    A("s_call_b64 s[62:63], L_sub_load")
    stamp(9)

    A("s_cmp_lg_u32 s28, 3")
    A("s_cbranch_scc1 L_h_pvpre")
    A(f"v_and_b32 v{HT+1}, {ncl-1}, v2")
    A(f"v_lshlrev_b32 v{HT+1}, {3 if ncl == 32 else 2}, v{HT+1}")
    A(f"global_load_dword v{HT}, v{HT+1}, s[{SDBG}:{SDBG+1}]")
    Lb("L_h_bpoll")
    A("s_waitcnt vmcnt(0)")
    A(f"v_cmp_ne_u32 vcc, 1, v{HT}")
    A("s_cbranch_vccz L_h_bpoll_ok")
    A("s_sleep 32")
    A(f"global_load_dword v{HT}, v{HT+1}, s[{SDBG}:{SDBG+1}] sc1")
    A("s_sub_u32 s69, s69, 16")
    A("s_cbranch_scc0 L_h_bpoll")
    A("s_mov_b32 s69, 0")
    A("s_waitcnt vmcnt(0)")
    Lb("L_h_bpoll_ok")
    if tw:
        A(f"v_mov_b32 v{HT+1}, 0x1f0000")
        A(f"global_load_dword v{HT+4}, v{HT+1}, s[{SWS}:{SWS+1}]")
        A("s_waitcnt vmcnt(0)")
    if cmap:
        A("s_and_b32 s33, s29, 15")
        A("s_cmp_ge_u32 s33, 9")
        A("s_cbranch_scc1 L_h_pvpre")
        A("s_lshl_b32 s33, s33, 6")
        A("s_and_b32 s3, s29, 16")
        A("s_lshl_b32 s3, s3, 1")
        A("s_add_u32 s33, s33, s3")
        final_srds(SOUT, False)
    else:
        A("s_cmp_ge_u32 s29, 18")
        A("s_cbranch_scc1 L_h_pvpre")
        final_srds(SOUT, False)
        A("s_lshl_b32 s33, s29, 5")
    A(f"v_lshrrev_b32 v{HT}, 3, v2")
    A(f"v_mul_u32_u24 v{HT}, {8*SLOT2}, v{HT}")
    A(f"v_and_b32 v{HT+1}, 7, v2")
    A(f"v_lshl_add_u32 v{HT+1}, v{HT+1}, 2, s33")
    A(f"v_lshl_add_u32 v{GS}, v{HT+1}, 2, v{HT}")
    A(f"v_bfe_u32 v{HT+2}, v2, 4, 1")
    A(f"v_lshrrev_b32 v{HT+3}, 5, v2")
    A(f"v_lshl_add_u32 v{HT+2}, v{HT+2}, 1, v{HT+3}")
    A(f"v_add_lshl_u32 v{HOA}, v{HT+2}, v{HT+1}, 1")
    srd(20, SB2, None, 1152)
    A(f"buffer_load_ushort v{HXV}, v{HOA}, s[8:11], s68 offen")
    A(f"buffer_load_ushort v{HB2}, v{HOA}, s[20:23], 0 offen")
    if tout is not None:
        A(f"v_add_u32 v{HT+4}, s68, v{HOA}")
        A(f"global_load_ushort v{HT+5}, v{HT+4}, s[{SOUT}:{SOUT+1}] {tout}")
    A("s_waitcnt vmcnt(0)")
    A(f"v_lshlrev_b32 v{HXV}, 16, v{HXV}")
    A(f"v_lshlrev_b32 v{HB2}, 16, v{HB2}")
    A(f"v_mov_b32 v{HT}, {OOB}")
    A(f"v_and_b32 v{HT+1}, 8, v2")
    A(f"v_cmp_eq_u32 vcc, 0, v{HT+1}")
    A("s_nop 1")
    A(f"v_cndmask_b32 v{HOA}, v{HT}, v{HOA}, vcc")
    A(f"v_lshl_add_u32 v{HT}, v2, 4, v{HLB}")
    A(f"ds_write_b128 v{HT}, {vr(HB2,4)} offset:{O_CX}")
    if warm1:
        if ge:
            A("s_call_b64 s[62:63], L_sub_final_g")
        A("s_call_b64 s[62:63], L_sub_final")
    if warm2:
        for r in range(32, 64):
            A(f"v_mov_b32 v{r}, -1")
        A("s_call_b64 s[62:63], L_f_g_again")
    A("s_waitcnt vmcnt(0)")

    Lb("L_h_pvpre")
    PT = 28
    pv_masks(VM, HC, PT)
    for r in range(4):
        A(f"v_mov_b32 v{VACC+r}, 0")
    stamp(10)
    lds_spin("L_h_smwait", HLB, O_CNT + C_SM, PT, 8, sleep=4)
    A("s_lshl_b32 s3, s28, 3")
    A(f"v_add_u32 v{PT}, s3, v{HLB}")
    A(f"ds_read_b32 v{PT+1}, v{PT} offset:{O_ST}")
    A("s_lshl_b32 s3, s28, 9")
    A(f"v_lshl_add_u32 v{PT}, v2, 2, v{HLB}")
    A(f"v_add_u32 v{PT}, s3, v{PT}")
    A(f"ds_read_b32 v{VPC}, v{PT} offset:{O_E}")
    A(f"ds_read_b32 v{VPC+1}, v{PT} offset:{O_E+256}")
    softmax_factor(HLB, RING, PT, PT + 1)
    for u in range(2):
        A(f"v_mul_f32 v{VPC+u}, v{VPC+u}, v{PT}")
        A(f"v_cvt_pk_bf16_f32 v{VPC+u}, v{VPC+u}, v{VPC+u}")
    A("s_lshl_b32 s3, s28, 15")
    A(f"v_lshl_add_u32 v{PT}, v2, 4, s3")
    A("s_mov_b32 s34, 2")
    Lb("L_h_pv")
    for i in range(16):
        if i == 8:
            A("s_waitcnt lgkmcnt(0)")
        A(f"ds_read_b128 {vr(RING+4*i,4)}, v{PT} offset:{i*1024}")
    A("s_waitcnt lgkmcnt(0)")
    A("s_call_b64 s[62:63], L_sub_pv")
    A(f"v_mov_b32 v{VPC}, v{VPC+1}")
    A(f"v_add_u32 v{PT}, 16384, v{PT}")
    A("s_sub_u32 s34, s34, 1")
    A("s_cmp_lg_u32 s34, 0")
    A("s_cbranch_scc1 L_h_pv")
    A(f"v_lshl_add_u32 v{PT}, v0, 3, v{HLB}")
    A("s_nop 1")
    A(f"ds_write_b64 v{PT}, {vr(VACC,2)} offset:{O_OP}")
    for r in range(5):
        A(f"v_mov_b32 v{GT+r}, v{GH+r}")
    A("s_waitcnt lgkmcnt(0)")
    lds_arrive(HLB, O_CNT + C_PV, 3)
    for r in range(36):
        A(f"v_mov_b32 v{HD+r}, 0")
    lds_spin("L_h_pvwait", HLB, O_CNT + C_PV, HT, 4)
    for k in range(4):
        A(f"ds_read_b64 {vr(OR+2*k,2)}, v{HOP} offset:{O_OP+512*(4+k)}")
    A("s_waitcnt lgkmcnt(0)")
    for r in range(2):
        A(f"v_add_f32 v{OR+r}, v{OR+r}, v{OR+2+r}")
        A(f"v_add_f32 v{OR+4+r}, v{OR+4+r}, v{OR+6+r}")
        A(f"v_add_f32 v{PS+r}, v{OR+r}, v{OR+4+r}")
    if smf:
        set_idx()
    stamp(11)
    A("s_setprio 2")
    A("s_barrier")
    stamp(12)
    A("s_call_b64 s[62:63], L_sub_gemv")
    stamp(13)
    if b4 == 2:
        A("s_waitcnt vmcnt(0)")
    if b4:
        A("s_barrier")

    Lb("L_fin")
    if fixdur:
        Lb("L_fix")
        A("s_memrealtime s[76:77]")
        A("s_waitcnt lgkmcnt(0)")
        A("s_sub_u32 s76, s76, s74")
        A(f"s_cmp_lt_u32 s76, {fixdur*100}")
        A("s_cbranch_scc1 L_fix")
    if stamps:
        A("s_waitcnt vmcnt(0)")
        stamp(15)
        A(f"v_writelane_b32 v{VST}, s74, 0")
        A("s_getreg_b32 s70, hwreg(HW_REG_XCC_ID)")
        A(f"v_writelane_b32 v{VST}, s70, 16")
        A("s_getreg_b32 s70, hwreg(HW_REG_HW_ID)")
        A(f"v_writelane_b32 v{VST}, s70, 63")
        A(f"s_add_u32 s72, s72, {WS_STAMP}")
        A("s_addc_u32 s73, s73, 0")
        A("s_lshl_b32 s3, s2, 11")
        A("v_lshlrev_b32 v0, 2, v0")
        A("v_add_u32 v0, s3, v0")
        A(f"global_store_dword v0, v{VST}, s[72:73]")
    Lb("L_end")
    A("s_endpgm")

    Lb("L_sub_load")
    if noslab:
        A("s_setpc_b64 s[62:63]")

    freg = (lambda sg, t: HF + 72 * (sg >> 1) + 8 * t + 4 * (sg & 1)) if smf else (lambda sg, t: HF + 36 * sg + 4 * t)

    def issue_pair(n):
        sl = ST + 10 * (n % NSL)
        A(f"s_mov_b32 s33, {8*n*1152}")
        A(f"s_mov_b32 s34, {(8*n+4)*1152}")
        A(f"buffer_load_dwordx4 {vr(sl,4)}, v{HVB}, s[20:23], s33 offen {spol}")
        A(f"buffer_load_dwordx4 {vr(sl+4,4)}, v{HVB}, s[20:23], s34 offen {spol}")
        A(f"buffer_load_ushort v{sl+8}, v{HVS}, s[20:23], s33 offen {spol}")
        A(f"buffer_load_ushort v{sl+9}, v{HVS}, s[20:23], s34 offen {spol}")

    for n in range(NSL):
        issue_pair(n)
    for n in range(16):
        sg, r = n >> 2, n & 3
        sl = ST + 10 * (n % NSL)
        A(f"s_waitcnt vmcnt({4 * (min(n + NSL, 16) - n - 1)})")
        for t in range(8):
            A(f"v_perm_b32 v{freg(sg,t)+r}, v{sl+4+(t>>1)}, v{sl+(t>>1)}, s{94+(t&1)}")
        A(f"v_lshl_or_b32 v{freg(sg,8)+r}, v{sl+9}, 16, v{sl+8}")
        if n + NSL < 16:
            if hs:
                A(f"s_sleep {hs}")
            issue_pair(n + NSL)
    A("s_setpc_b64 s[62:63]")

    Lb("L_sub_gemv")
    for k in range(4):
        A(f"ds_read_b64 {vr(OR+2*k,2)}, v{HOP} offset:{O_OP+512*k}")
    if not nog:
        A(f"buffer_store_dwordx4 {vr(GT,4)}, v{HPM}, s[24:27], 0 offen {ypol}")
        A(f"buffer_store_dword v{GT+4}, v{HPR}, s[24:27], 0 offen {ypol}")
    if smf:
        A("s_waitcnt lgkmcnt(2)")
        A(f"v_pk_add_f32 {vr(OR,2)}, {vr(OR,2)}, {vr(PS,2)}")
        A(f"v_pk_add_f32 {vr(OR,2)}, {vr(OR,2)}, {vr(OR+2,2)}")
        A("s_waitcnt lgkmcnt(0)")
        A(f"v_pk_add_f32 {vr(OR,2)}, {vr(OR,2)}, {vr(OR+4,2)}")
        A(f"v_pk_add_f32 {vr(OR,2)}, {vr(OR,2)}, {vr(OR+6,2)}")
        A(f"v_cvt_pk_bf16_f32 v{HA}, v{OR}, v{OR+1}")
        A("s_nop 1")
        bc = [f"v_mov_b32_dpp v{HA+n}, v{HA} row_shl:{8*(n>>2)+(n&3)} {DPP_ALL}" for n in range(1, 8)]
        for n in range(5):
            A(bc.pop(0))
        tail = []
        for S in range(2):
            order = range(9) if S == 0 else (8, 0, 4, 1, 5, 2, 6, 3, 7)
            for t in order:
                A(f"v_smfmac_f32_16x16x64_bf16 {vr(HD+4*t,4)}, {vr(HA+4*S,4)}, {vr(freg(2*S,t),8)}, v{IDX}")
                if bc:
                    A(bc.pop(0))
        A("s_nop 3")
        A(f"v_permlane16_swap_b32 v{HD+32}, v{HD+33}")
        A(f"v_add_f32 v{HD+32}, v{HD+32}, v{HD+33}")
        A(f"buffer_store_dword v{HD+32}, v{HPR}, s[24:27], 0 offen offset:{SLOT} {ypol}")
        for r in range(4):
            A(f"v_permlane16_swap_b32 v{HD+4*r}, v{HD+16+4*r}")
            A(f"v_add_f32 v{OR+4+r}, v{HD+4*r}, v{HD+16+4*r}")
    else:
        for k in range(4):
            A(f"s_waitcnt lgkmcnt({3-k})")
            src = PS if k == 0 else OR + 2 * k
            A(f"v_add_f32 v{OR}, v{OR}, v{src}")
            A(f"v_add_f32 v{OR+1}, v{OR+1}, v{src+1}")
        A(f"v_cvt_pk_bf16_f32 v{OR}, v{OR}, v{OR+1}")
        A("s_nop 1")
        bc = [f"v_mov_b32_dpp v{HA+n}, v{OR} row_newbcast:{n} {DPP_ALL}" for n in range(16)]
        for n in range(6):
            A(bc.pop(0))
        for sg in range(4):
            order = range(9) if sg < 3 else (8, 0, 4, 1, 5, 2, 6, 3, 7)
            for t in order:
                A(f"v_mfma_f32_16x16x32_bf16 {vr(HD+4*t,4)}, {vr(HA+4*sg,4)}, {vr(HF+36*sg+4*t,4)}, {vr(HD+4*t,4)}")
                if bc:
                    A(bc.pop(0))
        A(f"buffer_store_dword v{HD+32}, v{HPR}, s[24:27], 0 offen offset:{SLOT} {ypol}")
        A("s_nop 3")
        for r in range(4):
            A(f"v_cndmask_b32 v{OR+4+r}, v{HD+4*r}, v{HD+16+4*r}, s[96:97]")
    A(f"buffer_store_dwordx4 {vr(OR+4,4)}, v{HPM}, s[24:27], 0 offen offset:{SLOT} {ypol}")
    A("s_setpc_b64 s[62:63]")

    GA, YA, SA = 32, 48, HA

    def part_load(base, off, k):
        so = "0" if k == 0 else f"s{64+k}"
        A(f"buffer_load_dwordx4 {vr(base+4*k,4)}, v{GS}, s[12:15], {so} offen offset:{off} {lpol}")

    def reload(base, off, tag, done):
        for k in range(4):
            A(f"v_max3_u32 v{SA+8+k}, v{base+4*k}, v{base+4*k+1}, v{base+4*k+2}")
        for k in range(4):
            A(f"v_max_u32 v{SA+8+k}, v{SA+8+k}, v{base+4*k+3}")
        for k in range(4):
            A(f"v_cmp_eq_u32 s[{80+2*k}:{81+2*k}], -1, v{SA+8+k}")
        A("s_or_b64 s[88:89], s[80:81], s[82:83]")
        A("s_or_b64 s[90:91], s[84:85], s[86:87]")
        A("s_or_b64 s[88:89], s[88:89], s[90:91]")
        A(f"s_cbranch_scc0 {done}")
        for k in range(4):
            A(f"s_mov_b64 exec, s[{80+2*k}:{81+2*k}]")
            A(f"s_cbranch_execz L_f{tag}{k}")
            part_load(base, off, k)
            Lb(f"L_f{tag}{k}")
        A("s_mov_b64 exec, -1")

    def total(base):
        for r in (0, 2):
            A(f"v_pk_add_f32 {vr(SA+r,2)}, {vr(base+r,2)}, {vr(base+4+r,2)}")
            A(f"v_pk_add_f32 {vr(SA+4+r,2)}, {vr(base+8+r,2)}, {vr(base+12+r,2)}")
        for r in (0, 2):
            A(f"v_pk_add_f32 {vr(SA+r,2)}, {vr(SA+r,2)}, {vr(SA+4+r,2)}")
        A("s_nop 0")
        A(f"v_permlane32_swap_b32 v{SA}, v{SA+1}")
        A(f"v_permlane32_swap_b32 v{SA+2}, v{SA+3}")
        A(f"v_add_f32 v{SA}, v{SA}, v{SA+1}")
        A(f"v_add_f32 v{SA+2}, v{SA+2}, v{SA+3}")
        A("s_nop 1")
        A(f"v_permlane16_swap_b32 v{SA}, v{SA+2}")
        A(f"v_add_f32 v{SA}, v{SA}, v{SA+2}")
        A("s_nop 1")
        A(f"v_add_f32_dpp v{SA}, v{SA}, v{SA} row_ror:8 {DPP_ALL}")
        A(f"v_cmp_u_f32 vcc, v{SA}, v{SA}")
        bfround(SA, SA)

    Lb("L_sub_final_g" if ge else "L_sub_final")
    for k in range(4):
        part_load(GA, 0, k)
    if ge:
        A("s_setpc_b64 s[62:63]")
        Lb("L_sub_final")
    for k in range(4):
        part_load(YA, SLOT, k)
    A("s_waitcnt vmcnt(4)")
    Lb("L_f_g")
    total(GA)
    A("s_cbranch_vccnz L_f_g_again")
    Lb("L_f_gate")
    stamp(11)
    A(f"v_add_f32 v{HT+1}, v{SA}, v{HB2}")
    bfround(HT + 1, HT + 1)
    A(f"v_mul_f32 v{HT}, {f32(-LOG2E)}, v{HT+1}")
    A(f"v_exp_f32 v{HT}, v{HT}")
    A("s_nop 0")
    A(f"v_add_f32 v{HT}, 1.0, v{HT}")
    A(f"v_rcp_f32 v{HT}, v{HT}")
    A("s_nop 0")
    A(f"v_mul_f32 v{HT+1}, v{HT+1}, v{HT}")
    bfround(HT + 1, HT + 1)
    Lb("L_f_y")
    A("s_waitcnt vmcnt(0)")
    total(YA)
    A("s_cbranch_vccnz L_f_y_again")
    Lb("L_f_out")
    stamp(12)
    A(f"v_mul_f32 v{HT}, v{SA}, v{HT+1}")
    bfround(HT, HT)
    A(f"v_add_f32 v{HT}, v{HT}, v{HXV}")
    A(f"v_cvt_pk_bf16_f32 v{HT}, v{HT}, v{HT}")
    A(f"buffer_store_short v{HT}, v{HOA}, s[16:19], s68 offen {outpol}")
    A("s_setpc_b64 s[62:63]")
    Lb("L_f_y_again")
    reload(YA, SLOT, "y", "L_f_out")
    A("s_sub_u32 s69, s69, 4")
    A("s_cbranch_scc0 L_f_y")
    A("s_mov_b32 s69, 0")
    A("s_setpc_b64 s[62:63]")
    Lb("L_f_g_again")
    reload(GA, 0, "g", "L_f_gate")
    A("s_waitcnt vmcnt(0)")
    A("s_sub_u32 s69, s69, 4")
    A("s_cbranch_scc0 L_f_g")
    A("s_mov_b32 s69, 0")
    A("s_setpc_b64 s[62:63]")

    o[:] = o[:head_end] + o[helper_start:] + o[head_end:helper_start]
    o.append("L_code_end:")
    o.append('.section .rodata,"a"')
    o.append(".p2align 6")
    o.append(f".amdhsa_kernel {NAME}_kernel")
    o.append("  .amdhsa_next_free_vgpr 256")
    o.append("  .amdhsa_next_free_sgpr 100")
    o.append("  .amdhsa_accum_offset 256")
    o.append("  .amdhsa_group_segment_fixed_size 0")
    o.append("  .amdhsa_kernarg_size 104")
    o.append("  .amdhsa_user_sgpr_count 2")
    o.append("  .amdhsa_user_sgpr_kernarg_segment_ptr 1")
    o.append("  .amdhsa_system_sgpr_workgroup_id_x 1")
    o.append("  .amdhsa_float_denorm_mode_32 3")
    o.append(".end_amdhsa_kernel")
    return "\n".join(o) + "\n"


if __name__ == "__main__":
    cfg = json.loads(sys.argv[2]) if len(sys.argv) > 2 else {}
    open(sys.argv[1], "w").write(gen(**cfg))
```

```python
import struct, sys, json

NAME = "recurrent_scan__mha_block_cached__dense_activation_gelu__decode"
HEADER = open("header.txt").read()

WS_G = 0x000000
SLOT = 2304
SLOT2 = 2 * SLOT
WS_S = 0x200000
WS_STAMP = 0x20000000

L_V = 0x00000
L_B = 0x20000
O_OP = 0x0000
O_E = 0x1000
O_ST = 0x1800
O_CNT = 0x1840
O_Q = 0x1880
O_HR = 0x1980
O_XN = 0x19C0
O_CX = 0x2300
O_HS = 0x2700
LDS_BYTES = L_B + 0x2800
C_CL, C_S1, C_Q, C_H, C_SM, C_PV = 0, 4, 8, 12, 16, 20

LOG2E = 1.4426950408889634
OOB = "0x10000000"


def f32(x):
    return "0x%08x" % struct.unpack("<I", struct.pack("<f", x))[0]


def vr(a, n=1):
    return f"v{a}" if n == 1 else f"v[{a}:{a+n-1}]"


DPP_ALL = "row_mask:0xf bank_mask:0xf"


def cl(i):
    return ((i & 1) << 3) | (((i >> 1) & 1) << 2) | (i >> 2)


def gen(D=5, D0=5.5, DK=0, DV=0, DT=0, stamps=False, hprio=1, kvpol="nt", wpol="", spol="",
        NSL=1, xown=False, pf=2, xs0=0, xs1=0, fixdur=0,
        ctl=True, DL=(4, 5, 6, 10), TH=(-25, 20, 60), LOOK=1, SSTR=40*128,
        fs=0, fslow=0, fthr=16, outpol="sc0 sc1", fwait=True, ypol="sc1", lpol="sc1", wb=(16, 13), tb=(14, 19), gb=(15, 17, 18, 12), mid=True, ramp=(0, 0), nop1=False, noclear=False, fakew=False, nonarrow=False, f0=0, nog=False, fa=None, b4=2, warm2=False, DLK=(4, 5.5, 6.5, 10), noslab=False, hs=0, NQ=3.5, ring3=True, rot=True, ncl=64, clat="start", srot=4, slew=3, first=0, cpf=1, prior=870, wstart=5, gx=(), st0=False, smf=True, pf1=True, order="kvrwp", N0=4, probe=0, eb=None, THV=(-20, 18, 50), bfirst=True, pers=True, skew=None, NK0=None, hb=(-100, 3), ec=True, prior0=910, DL0=(4, 5.5, 6.5, 8), m2=(1, 2, 3, 0, 4), warm1=True, tv=False, tw=False, tout=None, cmap=True, noqwait=False, wpc=False, ppol="", quart=1, qall=False, ge=0, gack=False, gfirst=False, gearly=False):
    o = []
    cur = [o]
    A = lambda s: cur[0].append("  " + s)
    Lb = lambda s: cur[0].append(s + ":")

    def capture(fn):
        tmp = []
        cur[0] = tmp
        fn()
        cur[0] = o
        return tmp

    VST = 1
    ID = "s78" if m2 else "s2"
    DLV = DL
    assert sorted(list(wb) + list(tb) + list(gb)) == list(range(12, 20))
    dep = lambda v, pos: sum(((v >> k) & 1) << p for k, p in enumerate(pos))
    TOFF = [dep(k, tb) for k in range(4)]
    D0 = D0 or D; DK = DK or D; DV = DV or D; DT = DT or DV
    pace = lambda d, i: f"s_waitcnt vmcnt({int(d + (0.5 if i & 1 else 0)) - 1})"

    def stamp(i):
        if stamps and ((stamps != "lite" and not isinstance(stamps, list)) or i in (stamps if isinstance(stamps, list) else (0, 15))):
            A("s_memrealtime s[70:71]")
            A("s_waitcnt lgkmcnt(0)")
            A(f"v_writelane_b32 v{VST}, s70, {i}")

    def bfround(dst, src):
        A(f"v_cvt_pk_bf16_f32 v{dst}, v{src}, v{src}")
        A(f"v_and_b32 v{dst}, 0xffff0000, v{dst}")

    def allreduce_row(op, v):
        for sh in (8, 4, 2, 1):
            A("s_nop 1")
            A(f"{op}_dpp v{v}, v{v}, v{v} row_ror:{sh} {DPP_ALL}")

    def swap_reduce(op, v, t, which):
        A(f"v_mov_b32 v{t}, v{v}")
        A("s_nop 1")
        A(f"v_permlane{which}_swap_b32 v{t}, v{v}")
        A("s_nop 1")
        A(f"{op} v{v}, v{v}, v{t}")

    def lds_spin(label, vaddr, off, vtmp, target, sleep=1):
        Lb(label)
        A(f"ds_read_b32 v{vtmp}, v{vaddr} offset:{off}")
        A("s_waitcnt lgkmcnt(0)")
        A(f"v_readfirstlane_b32 s3, v{vtmp}")
        A(f"s_cmp_ge_u32 s3, {target}")
        A(f"s_cbranch_scc1 {label}_ok")
        if sleep:
            A(f"s_sleep {sleep}")
        A("s_sub_u32 s69, s69, 1")
        A(f"s_cbranch_scc0 {label}")
        A("s_mov_b32 s69, 0")
        Lb(label + "_ok")

    def lds_arrive(vaddr, off, vone):
        A("s_mov_b64 exec, 1")
        A(f"ds_add_u32 v{vaddr}, v{vone} offset:{off}")
        A("s_mov_b64 exec, -1")

    def pv_masks(vm, vc, t0):
        A(f"v_and_b32 v{t0}, 4, v{vc}")
        A(f"v_lshlrev_b32 v{t0}, 2, v{t0}")
        A(f"v_mov_b32 v{t0+1}, 0xffff")
        A(f"v_lshlrev_b32 v{t0}, v{t0}, v{t0+1}")
        A(f"v_and_b32 v{t0+1}, 3, v{vc}")
        A(f"v_lshrrev_b32 v{vm}, 3, v{vc}")
        A(f"v_lshl_add_u32 v{t0+1}, v{t0+1}, 1, v{vm}")
        for r in range(4):
            A(f"v_cmp_eq_u32 vcc, {r}, v{t0+1}")
            A("s_nop 1")
            A(f"v_cndmask_b32 v{vm+r}, 0, v{t0}, vcc")

    def softmax_factor(vbase, vst, vf, vown):
        A(f"ds_read_b128 {vr(vst,4)}, v{vbase} offset:{O_ST}")
        A(f"ds_read_b128 {vr(vst+4,4)}, v{vbase} offset:{O_ST+16}")
        A("s_waitcnt lgkmcnt(0)")
        m, t = vst + 8, vst + 9
        A(f"v_max3_f32 v{m}, v{vst}, v{vst+2}, v{vst+4}")
        A(f"v_max_f32 v{m}, v{m}, v{vst+6}")
        for k in range(4):
            A(f"v_sub_f32 v{vst+2*k}, v{vst+2*k}, v{m}")
        A(f"v_sub_f32 v{t}, v{vown}, v{m}")
        for k in range(4):
            A(f"v_mul_f32 v{vst+2*k}, {f32(LOG2E)}, v{vst+2*k}")
        A(f"v_mul_f32 v{t}, {f32(LOG2E)}, v{t}")
        for k in range(4):
            A(f"v_exp_f32 v{vst+2*k}, v{vst+2*k}")
        A(f"v_exp_f32 v{t}, v{t}")
        A(f"v_mul_f32 v{m}, v{vst}, v{vst+1}")
        for k in range(1, 4):
            A(f"v_fmac_f32 v{m}, v{vst+2*k}, v{vst+2*k+1}")
        A(f"v_rcp_f32 v{m}, v{m}")
        A("s_nop 0")
        A(f"v_mul_f32 v{vf}, v{t}, v{m}")

    o.append(HEADER.rstrip())
    o.append(f"; @launch grid=(256,1,1) block=(512,1,1) lds={LDS_BYTES}")
    o.append('.amdgcn_target "amdgcn-amd-amdhsa--gfx950"')
    o.append(".text")
    o.append(f".globl {NAME}_kernel")
    o.append(".p2align 8")
    o.append(f".type {NAME}_kernel,@function")
    Lb(f"{NAME}_kernel")
    A("s_cmp_ge_u32 s2, 256")
    A("s_cbranch_scc1 L_end")
    if skew:
        A(f"s_and_b32 s3, s2, {skew[0]}")
        A(f"s_cmp_lg_u32 s3, {skew[0]}")
        A("s_cbranch_scc1 L_noskew")
        A(f"s_sleep {skew[1]}")
        Lb("L_noskew")
    if fixdur or stamps or st0:
        A("s_memrealtime s[74:75]")
    SX, SK, SV, SWQ, SWO, SW1, SB1, SW2, SB2, SOUT, SDBG, SWS = 36, 38, 40, 42, 44, 48, 50, 52, 54, 56, 58, 60
    A("s_load_dwordx16 s[36:51], s[0:1], 0")
    A("s_load_dwordx8 s[52:59], s[0:1], 64")
    A("s_load_dwordx2 s[60:61], s[0:1], 96")
    A("v_lshrrev_b32 v1, 6, v0")
    A("v_and_b32 v2, 63, v0")
    A("v_readfirstlane_b32 s28, v1")
    A(f"v_mov_b32 v6, {L_B}")
    A("v_mov_b32 v8, 0")
    A("v_mov_b32 v9, 0")
    A("v_lshl_add_u32 v7, v0, 3, v6")
    A(f"ds_write_b64 v7, v[8:9] offset:{O_OP}")
    A("v_and_b32 v4, 15, v2")
    A("v_lshl_add_u32 v7, v4, 2, v6")
    A(f"ds_write_b32 v7, v8 offset:{O_CNT}")
    A("v_lshlrev_b32 v3, 4, v2")
    A("v_and_b32 v7, 1, v1")
    A(f"v_lshl_add_u32 v3, v7, {wb[0]}, v3")
    A("v_bfe_u32 v7, v1, 1, 1")
    A(f"v_lshl_add_u32 v3, v7, {wb[1]}, v3")
    for k, p in gx:
        assert p in gb
        A(f"s_bfe_u32 s3, s2, {k | (1 << 16)}")
        A(f"s_lshl_b32 s3, s3, {p}")
        A("v_xor_b32 v3, s3, v3")
    if m2:
        keep = 0xe0 | sum(1 << k for k in range(5) if m2[k] == k)
        A(f"s_and_b32 s78, s2, {keep}")
        runs = []
        for k in range(5):
            if m2[k] == k:
                continue
            if runs and runs[-1][0] + runs[-1][2] == k and runs[-1][1] + runs[-1][2] == m2[k]:
                runs[-1][2] += 1
            else:
                runs.append([k, m2[k], 1])
        for k, p, w in runs:
            A(f"s_bfe_u32 s3, s2, {k | (w << 16)}")
            if p:
                A(f"s_lshl_b32 s3, s3, {p}")
            A("s_or_b32 s78, s78, s3")
    A(f"s_lshl_b32 s3, {ID}, 20")
    A("s_mov_b32 s18, 0x100000")
    A("s_mov_b32 s19, 0x20000")
    A("s_mov_b32 s69, 0x200000")
    A(f"s_mov_b32 s33, {TOFF[1]}")
    if stamps:
        A(f"v_mov_b32 v{VST}, 0")
    A("s_cmp_ge_u32 s28, 4")
    A("s_waitcnt lgkmcnt(0)")
    if stamps:
        A("s_mov_b64 s[72:73], s[60:61]")
    A("s_cbranch_scc1 L_helper")

    HB2, HXV, HOA, GS = 12, 13, 14, 15

    def srd(n, base, off_s, size):
        if off_s is None:
            A(f"s_mov_b32 s{n}, s{base}")
            A(f"s_mov_b32 s{n+1}, s{base+1}")
        else:
            A(f"s_add_u32 s{n}, s{base}, {off_s}")
            A(f"s_addc_u32 s{n+1}, s{base+1}, 0")
        A(f"s_mov_b32 s{n+2}, {size}")
        A(f"s_mov_b32 s{n+3}, 0x20000")

    def final_srds(out_ptr, live):
        A("s_lshr_b32 s68, s2, 5")
        A(f"s_mul_i32 s3, s68, {SLOT2}")
        srd(12, SWS, "s3", 249 * SLOT2 if live else 0)
        srd(16, out_ptr, None, 9216 if live else 0)
        for k in (1, 2, 3):
            A(f"s_mov_b32 s{64+k}, {64*k*SLOT2}")
        A("s_mul_i32 s68, s68, 1152")

    VQ, VP, VA0, VA1, VB, VC, VS, VMAX = 4, 8, 10, 11, 12, 13, 14, 15
    VE, VM, VAO, VACC = 16, 32, 36, 44
    RING, RING2, VT, VLB = 48, 112, 176, 188
    VPC, VN = VE + 2, VE + 1
    def ring_load(i, ring=RING):
        so = "0" if i < 4 else f"s{36+i//4}"
        A(f"buffer_load_dwordx4 {vr(ring+4*i,4)}, v3, s[16:19], {so} offen offset:{(i%4)*1024} {kvpol}")

    VB0 = 189

    def next_group():
        A("s_add_u32 s29, s29, 1")
        runs = []
        for k, p in enumerate(gb):
            if runs and p == runs[-1][1] + runs[-1][2]:
                runs[-1][2] += 1
            else:
                runs.append([k, p, 1])
        for n, (k, p, w) in enumerate(runs):
            d = "s35" if n == 0 else "s3"
            A(f"s_bfe_u32 {d}, s29, {k | (w << 16)}")
            A(f"s_lshl_b32 {d}, {d}, {p}")
            if n:
                A("s_or_b32 s35, s35, s3")
        A(f"v_xor_b32 v3, s35, v{VB0}")

    A(f"s_add_u32 s16, s{SK}, s3")
    A(f"s_addc_u32 s17, s{SK+1}, 0")
    NK0 = int(D0) if NK0 is None else NK0
    for i in range(NK0):
        A(f"buffer_load_dwordx4 {vr(RING+4*i,4)}, v3, s[16:19], {'0' if i < 4 else 's33'} offen offset:{(i%4)*1024} {kvpol}")
    stamp(6)
    A("s_barrier")
    A("s_branch L_streamer")
    head_end = len(o)
    Lb("L_streamer")
    stamp(7)
    A(f"s_add_u32 s12, s{SV}, s3")
    A(f"s_addc_u32 s13, s{SV+1}, 0")
    A("s_mov_b32 s14, 0x100000")
    A("s_mov_b32 s15, 0x20000")
    for k in (1, 2, 3):
        A(f"s_mov_b32 s{36+k}, {TOFF[k]}")
    A(f"v_mov_b32 v{VLB}, {L_B}")
    A(f"v_mov_b32 v{VB0}, v3")
    if tv:
        A(f"buffer_load_dword v{VT+10}, off, s[12:15], 0 nt")
    A(f"s_mov_b64 s[6:7], s[{SOUT}:{SOUT+1}]")
    if pf:
        A(f"s_and_b32 s33, {ID}, 31")
        A("s_lshr_b32 s34, s2, 5")
        A(f"s_mul_i32 s3, s33, {128*1152}")
        A(f"s_mul_i32 s35, s34, {16*1152}")
        A("s_add_u32 s3, s3, s35")
        srd(8, SWO, "s3", 16 * 1152)
        A("s_and_b32 s3, s2, 7")
        A("s_lshl_b32 s3, s3, 2")
        A("s_bfe_u32 s33, s2, 0x20003")
        A("s_add_u32 s3, s3, s33")
        A(f"s_mul_i32 s3, s3, {144*1152}")
        A(f"s_mul_i32 s35, s34, {18*1152}")
        A("s_add_u32 s3, s3, s35")
        srd(24, SW2, "s3", 18 * 1152)
    if pf1:
        A("s_and_b32 s3, s2, 7")
        A("s_mul_i32 s3, s3, 1152")
        A("s_lshr_b32 s33, s2, 3")
        A(f"s_mul_i32 s33, s33, {18*9216}")
        A("s_add_u32 s3, s3, s33")
        srd(64, SW1, "s3", 17 * 9216 + 1152)
        if tv == 2:
            A("s_cmp_lg_u32 s28, 0")
            A("s_cbranch_scc1 L_notouch")
            for sr in (8, 24, 64):
                A(f"buffer_load_dword v{VT+10}, off, s[{sr}:{sr+3}], 0")
            Lb("L_notouch")
    A("s_mov_b32 s29, 0")
    for k in (1, 2, 3):
        A(f"s_mov_b32 s{38+2*k}, 0x{(0x11111111 << k) & 0xffffffff:08x}")
        A(f"s_mov_b32 s{39+2*k}, 0x{(0x11111111 << k) & 0xffffffff:08x}")
    if ctl:
        A("s_lshr_b32 s3, s2, 5")
        A("s_and_b32 s54, s2, 31")
        if srot == 16:
            A("s_lshr_b32 s35, s54, 3")
            A("s_lshl_b32 s35, s35, 2")
            A("s_add_u32 s35, s35, s28")
            A("s_lshl_b32 s35, s35, 7")
            A("s_and_b32 s54, s54, 7")
        else:
            A("s_lshl_b32 s35, s28, 7")
        A("s_cmp_eq_u32 s54, s3")
        A("s_cselect_b32 s54, s35, -1")
        A(f"s_mul_i32 s3, s3, {SSTR}")
        A(f"s_add_u32 s3, s3, {WS_S}")
        A(f"s_add_u32 s20, s{SWS}, s3")
        A(f"s_addc_u32 s21, s{SWS+1}, 0")
        A(f"s_movk_i32 s22, {40*128}")
        A("s_mov_b32 s23, 0x20000")
        A(f"s_add_u32 s46, s{SWS}, {WS_S - LOOK*128}")
        A(f"s_addc_u32 s47, s{SWS+1}, 0")
        A("s_mov_b32 s48, 0")
    A(f"v_and_b32 v{VT+2}, 15, v2")
    A(f"v_lshl_add_u32 v{VT+3}, v{VT+2}, 4, v{VLB}")
    pv_masks(VM, VT + 2, VT)
    for r in range(4):
        A(f"v_mov_b32 v{VACC+r}, 0")

    def loop_stamp(base):
        if stamps is True:
            A("s_memrealtime s[70:71]")
            A(f"s_sub_u32 m0, {base}, s34")
            A("s_waitcnt lgkmcnt(0)")
            A(f"v_writelane_b32 v{VST}, s70, m0")

    ckn = [0]

    thc = [TH]

    def level(lag):
        TH = thc[0]
        return [f"s_add_u32 s93, {lag}, 1500", "s_cmp_lt_u32 s93, 3000", f"s_cselect_b32 {lag}, {lag}, {TH[0]}",
                f"s_cmp_ge_i32 {lag}, {TH[1]}", "s_cselect_b64 vcc, -1, 0", "s_cselect_b32 s93, s5, s4",
                f"s_cmp_ge_i32 {lag}, s93", "s_cselect_b32 s90, 1, 0"]

    def decide(last=False):
        if not ctl:
            return
        A("s_waitcnt lgkmcnt(0)")
        A("s_sub_u32 s79, s50, s49")
        for l in level("s79"):
            A(l)

    def atoms(fine=False):
        if not ctl:
            return {}
        ckn[0] += 1
        n = ckn[0]
        at = {}
        at[0] = [f"s_and_b32 s93, s48, {(srot-1)*128}", "s_cmp_lg_u32 s54, s93", f"s_cbranch_scc1 L_ck{n}_nopub", f"v_mov_b32 v{VT+11}, s50", "s_mov_b64 exec, 1",
                 f"buffer_store_dword v{VT+11}, off, s[20:23], s48 sc1", "s_mov_b64 exec, -1", f"L_ck{n}_nopub:"]
        at[1] = ["s_add_u32 s88, s46, s48", "s_addc_u32 s89, s47, 0", f"s_cmp_lt_u32 s48, {LOOK*128}", f"s_cbranch_scc1 L_ck{n}_early"]
        at[1] += [f"s_load_dword s{80+j}, s[88:89], {j*SSTR}" for j in range(8)] + [f"L_ck{n}_early:"]
        if ramp[0]:
            at[3] = [f"s_add_u32 s4, s4, {ramp[1]}", f"s_min_i32 s4, s4, {TH[0]}"]
        if mid:
            at[6] = ["s_memrealtime s[98:99]", "s_lshr_b32 s93, s92, 3", "s_add_u32 s49, s49, s93"]
            at[7] = ["s_waitcnt lgkmcnt(0)", "s_sub_u32 s79, s98, s49"] + level("s79")
            at[8] = [f"s_sub_u32 s{80+j}, s50, s{80+j}" for j in range(8)] + ["s_max_u32 s91, s80, s81", "s_add_u32 s55, s80, s81"]
        else:
            at[7] = ["s_waitcnt lgkmcnt(0)"] + [f"s_sub_u32 s{80+j}, s50, s{80+j}" for j in range(4)]
            at[8] = [f"s_sub_u32 s{80+j}, s50, s{80+j}" for j in range(4, 8)] + ["s_max_u32 s91, s80, s81", "s_add_u32 s55, s80, s81"]
        at[9] = sum(([f"s_max_u32 s91, s91, s{80+j}", f"s_add_u32 s55, s55, s{80+j}"] for j in range(2, 5)), [])
        at[10] = sum(([f"s_max_u32 s91, s91, s{80+j}", f"s_add_u32 s55, s55, s{80+j}"] for j in range(5, 8)), [])
        if prior:
            at[11] = ["s_lshr_b32 s55, s55, 3", "s_sub_u32 s55, s50, s55", "s_lshr_b32 s49, s92, 2", "s_add_u32 s49, s49, s52",
                      "s_cmp_lt_u32 s91, 2500", "s_cselect_b32 s55, s55, s49"]
            at[12] = ["s_sub_u32 s91, s55, s57", f"s_add_u32 s49, s92, {slew}", "s_min_u32 s91, s91, s49",
                      f"s_sub_u32 s49, s92, {slew}", "s_max_u32 s91, s91, s49",
                      f"s_cmp_ge_u32 s48, {(LOOK+wstart+(4 if ec else 0))*128}", "s_cselect_b32 s92, s91, s92", f"s_mul_i32 s91, s92, {LOOK+1}"]
        else:
            at[11] = ["s_lshr_b32 s55, s55, 3", "s_sub_u32 s55, s50, s55", "s_lshl_b32 s49, s52, 1", "s_sub_u32 s49, s49, s53",
                      "s_cmp_lt_u32 s91, 2500", "s_cselect_b32 s55, s55, s49"]
            at[12] = ["s_sub_u32 s91, s55, s53", "s_lshl_b32 s91, s91, 1", "s_sub_u32 s49, s55, s57",
                      f"s_cmp_ge_u32 s48, {(LOOK+5)*128}", "s_cselect_b32 s91, s49, s91"]
            if slew:
                at[12] += [f"s_add_u32 s49, s92, {slew}", "s_min_u32 s49, s49, s91", f"s_cmp_gt_u32 s48, {(LOOK+5)*128}",
                           "s_cselect_b32 s91, s49, s91"]
            at[12] += ["s_mov_b32 s92, s91", f"s_mul_i32 s91, s91, {LOOK+1}"]
        if pers:
            one = lambda j: [f"s_sub_u32 s{80+j}, s91, s{80+j}", f"s_cmp_lt_u32 s{80+j}, 2500", f"s_cselect_b32 s{80+j}, s{80+j}, 0"] + \
                            ([f"s_add_u32 s80, s80, s{80+j}"] if j else [])
            at[8] = ["s_add_u32 s91, s50, 64"] + one(0) + one(1)
            at[9] = one(2) + one(3)
            at[10] = one(4) + one(5)
            at[11] = one(6) + one(7) + ["s_lshr_b32 s55, s80, 3", "s_sub_u32 s55, s91, s55"]
        if quart and (fine or qall):
            tick = ["s_memrealtime s[98:99]", "s_lshr_b32 s93, s92, 4", "s_add_u32 s49, s49, s93"]
            dec = ["s_waitcnt lgkmcnt(0)", "s_sub_u32 s79, s98, s49"] + level("s79")
            if quart == 1:
                at[2] = tick; at[3] = dec; at[4] = at.pop(1)
                at[6] = tick
            at[10] = tick + at[10]
            at[11] = dec + at[11]
        at[13] = ["s_lshr_b32 s91, s91, 2", "s_add_u32 s49, s55, s91", "s_mov_b32 s57, s56", "s_mov_b32 s56, s53",
                  "s_mov_b32 s53, s52", "s_mov_b32 s52, s55"]
        at[14] = ["s_add_u32 s91, s50, 0x40000000", f"s_cmp_lt_u32 s48, {(LOOK+first)*128}", "s_cselect_b32 s49, s91, s49",
                  "s_add_u32 s48, s48, 128", "s_memrealtime s[50:51]"]
        return at

    def emit_atom(at, i, restore=True):
        if i in at:
            for l in at[i]:
                if l.endswith(":"):
                    Lb(l[:-1])
                else:
                    A(l)
            if restore:
                A("s_cmp_lg_u32 s90, 0")

    def cpace(d, i, tag):
        if not ctl:
            A(pace(d, i))
            return
        DL = DLK if (tag == "pk" and DLK) else (DL0 if tag[0] == "e" else DLV)
        A(f"s_cbranch_vccnz L_{tag}a{i}")
        A(f"s_cbranch_scc1 L_{tag}b{i}")
        A(pace(DL[0], i))
        if hb:
            A(f"s_cmp_lt_i32 s79, {hb[0]}")
            A(f"s_cbranch_scc0 L_{tag}b{i}")
            A(pace(hb[1], i))
            A("s_cmp_lg_u32 s90, 0")
        Lb(f"L_{tag}b{i}")
        A(pace(DL[1], i))
        Lb(f"L_{tag}a{i}")
        if DL[3] != DL[2]:
            A(f"s_cbranch_scc1 L_{tag}c{i}")
            A(pace(DL[2], i))
            Lb(f"L_{tag}c{i}")
        A(pace(DL[3], i))

    def pre_k():
        for i in range(NK0, 16):
            A(pace(D0, i))
            ring_load(i)

    RING3 = 190

    def pre_v():
        A(f"v_xor_b32 v{VT+4}, {dep(14, gb)}, v3")
        A("s_lshl_b32 s33, s28, 15")
        A("s_mov_b32 s35, 2")
        Lb("L_vdma")
        for i in range(16):
            if i % 4 == 0:
                A("s_mov_b32 m0, s33")
                A("s_add_u32 s33, s33, 4096")
            A(pace(D0, i))
            A(f"buffer_load_dwordx4 v{VT+4}, s[12:15], {'0' if i < 4 else 's%d' % (36+i//4)} offen offset:{(i%4)*1024} {kvpol} lds")
        A(f"v_xor_b32 v{VT+4}, {dep(1, gb)}, v{VT+4}")
        A("s_sub_u32 s35, s35, 1")
        A("s_cmp_lg_u32 s35, 0")
        A("s_cbranch_scc1 L_vdma")

    def pre_r():
        if ring3:
            A(f"v_xor_b32 v{VT+4}, {dep(13, gb)}, v3")
            for i in range(16):
                A(pace(D0, i))
                A(f"buffer_load_dwordx4 {vr(RING3+4*i,4)}, v{VT+4}, s[12:15], {'0' if i < 4 else 's%d' % (36+i//4)} offen offset:{(i%4)*1024} {kvpol}")

    def pre_p():
        if pf:
            A(f"v_lshlrev_b32 v{VT+4}, 4, v0")
            for n, (sr, cnt) in enumerate(((24, 6), (8, 5))):
                for k in range(cnt):
                    A(f"s_movk_i32 s3, {4096*k}")
                    A(pace(D0, k))
                    A(f"buffer_load_dwordx4 {vr(RING2+4*(6*n+k),4)}, v{VT+4}, s[{sr}:{sr+3}], s3 offen")

    def pre_w():
        if pf1:
            for k in range(6):
                A(f"v_add_u32 v{VT+4}, {256*k}, v0")
                A(f"v_mul_u32_u24 v{VT+5}, 58255, v{VT+4}")
                A(f"v_lshrrev_b32 v{VT+5}, 22, v{VT+5}")
                A(f"v_mul_u32_u24 v{VT+5}, {9216-1152}, v{VT+5}")
                A(f"v_lshl_add_u32 v{VT+4}, v{VT+4}, 4, v{VT+5}")
                A(pace(D0, k))
                A(f"buffer_load_dwordx4 {vr(RING2+44+4*(k%5),4)}, v{VT+4}, s[64:67], 0 offen")

    def ctl_init(p):
        for r in (49, 52, 53, 56, 57):
            A(f"s_mov_b32 s{r}, s50")
        A("s_add_u32 s49, s49, 0x40000000")
        A(f"s_mov_b32 s92, {p}")
        A(f"s_mov_b32 s4, {TH[0] - ramp[0]*ramp[1]}")
        A(f"s_mov_b32 s5, {TH[2]}")

    def egroup(tag, pre, load, extra={}):
        decide()
        at = atoms()
        for k, v in extra.items():
            at[k] = at.get(k, []) + v
        for i in range(16):
            for l in pre(i):
                A(l)
            cpace(D0, i, tag)
            A(load(i))
            emit_atom(at, i)

    if ec and ctl:
        so = lambda i: '0' if i < 4 else 's%d' % (36 + i // 4)
        for i in range(NK0, 16):
            A(pace(D0, i))
            ring_load(i)
            if i == 14:
                A("s_memrealtime s[50:51]")
        A("s_waitcnt lgkmcnt(0)")
        ctl_init(prior0)
        stamp(8)
        A(f"v_xor_b32 v{VT+4}, {dep(14, gb)}, v3")
        A("s_lshl_b32 s33, s28, 15")
        A("s_mov_b32 s35, 2")
        Lb("L_vdma")
        egroup("ev", lambda i: ["s_mov_b32 m0, s33"] if i % 4 == 0 else [],
               lambda i: f"buffer_load_dwordx4 v{VT+4}, s[12:15], {so(i)} offen offset:{(i%4)*1024} {kvpol} lds",
               {k: ["s_add_u32 s33, s33, 4096"] for k in (2, 5, 9, 13)})
        A(f"v_xor_b32 v{VT+4}, {dep(1, gb)}, v{VT+4}")
        A("s_sub_u32 s35, s35, 1")
        A("s_cmp_lg_u32 s35, 0")
        A("s_cbranch_scc1 L_vdma")
        stamp(9)
        A(f"v_xor_b32 v{VT+4}, {dep(13, gb)}, v3")
        egroup("er", lambda i: [],
               lambda i: f"buffer_load_dwordx4 {vr(RING3+4*i,4)}, v{VT+4}, s[12:15], {so(i)} offen offset:{(i%4)*1024} {kvpol}")
        stamp(10)

        if wpc:
            A(f"v_lshrrev_b32 v{VT+6}, 6, v0")
            A(f"v_mul_u32_u24 v{VT+6}, 320, v{VT+6}")
            A(f"v_add_u32 v{VT+6}, v{VT+6}, v2")

        def wp_pre(i):
            if i < 5:
                first = f"v_add_u32 v{VT+4}, {64*i}, v{VT+6}" if wpc else f"v_add_u32 v{VT+4}, {256*i}, v0"
                return [first, f"v_mul_u32_u24 v{VT+5}, 58255, v{VT+4}", f"v_lshrrev_b32 v{VT+5}, 22, v{VT+5}",
                        f"v_mul_u32_u24 v{VT+5}, {9216-1152}, v{VT+5}", f"v_lshl_add_u32 v{VT+4}, v{VT+4}, 4, v{VT+5}"]
            k = i - 5 if i < 11 else i - 11
            if wpc:
                if i == 10:
                    return [f"v_lshlrev_b32 v{VT+4}, 4, v0", "s_movk_i32 s3, 20480"]
                return ([f"v_lshlrev_b32 v{VT+4}, 4, v{VT+6}"] if i in (5, 11) else []) + [f"s_movk_i32 s3, {1024*k}"]
            return ([f"v_lshlrev_b32 v{VT+4}, 4, v0"] if i == 5 else []) + [f"s_movk_i32 s3, {4096*k}"]

        def wp_load(i):
            if i < 5:
                return f"buffer_load_dwordx4 {vr(RING2+4*i,4)}, v{VT+4}, s[64:67], 0 offen {ppol}"
            sr = 24 if i < 11 else 8
            return f"buffer_load_dwordx4 {vr(RING2+4*i,4)}, v{VT+4}, s[{sr}:{sr+3}], s3 offen {ppol}"
        egroup("ew", wp_pre, wp_load)
        A(f"s_mov_b32 s92, {prior}")
    else:
        for n, ch in enumerate(order):
            {"k": pre_k, "v": pre_v, "r": pre_r, "p": pre_p, "w": pre_w}[ch]()
            if n < 3:
                stamp(8 + n)
    stamp(1)
    lds_spin("L_qwait", VLB, O_CNT + C_Q, VT, 0 if noqwait else 1, sleep=0)
    A(f"ds_read_b128 {vr(VQ,4)}, v{VT+3} offset:{O_Q}")
    A("s_mov_b32 s34, 16")
    if ctl:
        A("s_memrealtime s[50:51]")
    stamp(2)
    A("s_waitcnt lgkmcnt(0)")
    if ctl and not ec:
        ctl_init(prior)
    if ctl and ec:
        A("s_sub_u32 s50, s50, 20")

    def red_a(i):
        j = i & 3
        dst = VA0 if j < 2 else VA1
        bm = "0x3" if (j & 1) == 0 else "0xc"
        p = VP + (i & 1)
        A(f"v_add_f32_dpp v{dst}, v{p}, v{p} row_ror:8 row_mask:0xf bank_mask:{bm}")

    def red_b(which):
        src = VA0 if which == 0 else VA1
        bm = "0x5" if which == 0 else "0xa"
        A(f"v_add_f32_dpp v{VB}, v{src}, v{src} row_half_mirror row_mask:0xf bank_mask:{bm}")

    def red_c():
        A(f"v_add_f32_dpp v{VC}, v{VB}, v{VB} quad_perm:[1,0,3,2] {DPP_ALL}")

    def red_d(k):
        dst = VS if k == 0 else VB
        A(f"v_add_f32_dpp v{dst}, v{VC}, v{VC} quad_perm:[2,3,0,1] {DPP_ALL}")

    def red_e(k):
        if k:
            A(f"v_cndmask_b32 v{VS}, v{VS}, v{VB}, s[{38+2*k}:{39+2*k}]")

    def post_a():
        if probe < 1:
            bfround(VS, VS)
        A(f"v_mul_f32 v{VS}, {f32(128 ** -0.5)}, v{VS}")

    def post_b():
        if probe < 2:
            bfround(VE + 15, VS)
        else:
            A(f"v_mov_b32 v{VE+15}, v{VS}")

    Lb("L_kloop")
    loop_stamp(33)
    next_group()
    A("s_cmp_eq_u32 s34, 1")
    A("s_cselect_b32 s16, s12, s16")
    A("s_cselect_b32 s17, s13, s17")
    decide()
    at = atoms()
    for i in range(16):
        k, j = i >> 2, i & 3
        p = VP + (i & 1)
        R = RING + 4 * i
        A(f"v_dot2_f32_bf16 v{p}, v{R}, v{VQ}, 0")
        A(f"v_dot2_f32_bf16 v{p}, v{R+1}, v{VQ+1}, v{p}")
        red_a((i - 1) & 15)
        A(f"v_dot2_f32_bf16 v{p}, v{R+2}, v{VQ+2}, v{p}")
        if j == 0:
            red_b(0)
        elif j == 1:
            red_b(1)
        elif j == 2:
            red_c()
        else:
            red_d((k - 1) & 3)
        A(f"v_dot2_f32_bf16 v{p}, v{R+3}, v{VQ+3}, v{p}")
        cpace(DK, i, "pk")
        ring_load(i)
        if j == 3:
            red_e((k - 1) & 3)
        if i == 4:
            post_a()
        if i == 5:
            post_b()
        if i < 15:
            A(f"v_mov_b32 v{VE+i}, v{VE+i+1}")
        emit_atom(at, i)
    A("s_sub_u32 s34, s34, 1")
    A("s_cmp_lg_u32 s34, 0")
    A("s_cbranch_scc1 L_kloop")
    stamp(3)

    def sm_a():
        red_a(15)
        red_b(0)
        A("s_nop 1")
        red_b(1)
        A("s_nop 1")
        red_c()
        A("s_nop 1")
        red_d(3)
        red_e(3)
        post_a()
        post_b()
        A(f"v_max3_f32 v{VMAX}, v{VE}, v{VE+1}, v{VE+2}")
        for u in range(3, 15, 2):
            A(f"v_max3_f32 v{VMAX}, v{VMAX}, v{VE+u}, v{VE+u+1}")
        A(f"v_max_f32 v{VMAX}, v{VMAX}, v{VE+15}")
        allreduce_row("v_max_f32", VMAX)
        swap_reduce("v_max_f32", VMAX, VT, 16)
        swap_reduce("v_max_f32", VMAX, VT, 32)
        for u in range(16):
            A(f"v_sub_f32 v{VE+u}, v{VE+u}, v{VMAX}")
        for u in range(16):
            A(f"v_mul_f32 v{VE+u}, {f32(LOG2E)}, v{VE+u}")
        for u in range(16):
            A(f"v_exp_f32 v{VE+u}, v{VE+u}")
        A(f"v_add_f32 v{VS}, v{VE}, v{VE+1}")
        for u in range(2, 16):
            A(f"v_add_f32 v{VS}, v{VS}, v{VE+u}")
        A(f"s_lshl_b32 s3, s28, 9")
        A(f"v_lshl_add_u32 v{VT+2}, v2, 2, v{VLB}")
        A(f"v_add_u32 v{VT+2}, s3, v{VT+2}")
        A(f"ds_write_b32 v{VT+2}, v{VE+14} offset:{O_E}")
        A(f"ds_write_b32 v{VT+2}, v{VE+15} offset:{O_E+256}")
        allreduce_row("v_add_f32", VS)
        swap_reduce("v_add_f32", VS, VT, 16)
        swap_reduce("v_add_f32", VS, VT, 32)
        A(f"s_lshl_b32 s3, s28, 3")
        A(f"v_add_u32 v{VT+2}, s3, v{VLB}")
        A(f"ds_write_b32 v{VT+2}, v{VMAX} offset:{O_ST}")
        A(f"ds_write_b32 v{VT+2}, v{VS} offset:{O_ST+4}")
        A(f"v_mov_b32 v{VT+3}, 1")

    def sm_b():
        softmax_factor(VLB, VT, VS, VMAX)
        for u in range(14):
            A(f"v_mul_f32 v{VE+u}, v{VE+u}, v{VS}")
        for u in range(14):
            A(f"v_cvt_pk_bf16_f32 v{VE+u}, v{VE+u}, v{VE+u}")

    nxt = [0]

    def issue2():
        i = nxt[0]
        if ctl:
            A("s_cmp_lg_u32 s90, 0")
        cpace(DT, i, "pt")
        ring_load(i, RING2)
        emit_atom(at, i, restore=False)
        nxt[0] += 1

    def weave(lines, n):
        step = (len(lines) + n - 1) // n
        for a in range(0, len(lines), step):
            issue2()
            o.extend(lines[a:a + step])

    if stamps:
        A("s_mov_b32 s34, 14")
        loop_stamp(47)
    next_group()
    decide()
    at = atoms()
    weave(capture(sm_a), 6)
    A("s_waitcnt lgkmcnt(0)")
    lds_arrive(VLB, O_CNT + C_SM, VT + 3)
    while nxt[0] < 12:
        issue2()
    lds_spin("L_smwait", VLB, O_CNT + C_SM, VT, 8, sleep=0)
    weave(capture(sm_b), 4)
    while nxt[0] < 16:
        issue2()
    stamp(4)

    def build_a(n, i, vp):
        for r in range(4):
            A(f"v_and_b32_dpp v{VAO+4*(n&1)+r}, v{vp}, v{VM+r} row_newbcast:{cl(i)} {DPP_ALL}")

    def pv_mfma(n, reg):
        A(f"v_mfma_f32_16x16x32_bf16 {vr(VACC,4)}, {vr(VAO+4*(n&1),4)}, {vr(reg,4)}, {vr(VACC,4)}")

    if stamps:
        A("s_mov_b32 s34, 13")
        loop_stamp(47)
    next_group()
    decide()
    at = atoms()
    build_a(0, 0, VE)
    for i in range(16):
        build_a(1, i, VE + 1)
        pv_mfma(0, RING + 4 * i)
        cpace(DV, i, "px")
        ring_load(i)
        if ring3:
            build_a(0, i, VE + 13)
            pv_mfma(1, RING2 + 4 * i)
            A("s_nop 0")
            pv_mfma(0, RING3 + 4 * i)
            build_a(0, (i + 1) & 15, VE if i < 15 else VPC)
        else:
            build_a(0, (i + 1) & 15, VE if i < 15 else VPC)
            pv_mfma(1, RING2 + 4 * i)
        emit_atom(at, i)
    A(f"s_mov_b32 s34, {10 if ring3 else 11}")

    if THV and ctl:
        thc[0] = THV
        A(f"s_mov_b32 s4, {THV[0]}")
        A(f"s_mov_b32 s5, {THV[2]}")
    Lb("L_vloop")
    loop_stamp(45 if ring3 else 46)
    next_group()
    decide(True)
    at = atoms(True)
    if eb is not None and ctl:
        for st in [eb] + [k for k in (3, 7, 11) if k > eb]:
            at[st] = at.get(st, []) + ["s_cmp_eq_u32 s34, 1", "s_cselect_b64 vcc, -1, vcc", "s_cselect_b32 s90, 1, s90"]
    for i in range(16):
        pv_mfma(i, RING + 4 * i)
        cpace(DV, i, "pv")
        ring_load(i)
        build_a(i + 1, (i + 1) & 15, VPC if i < 15 else VN)
        if i == 0:
            A(f"v_mov_b32 v{VN}, v{VPC+1}")
        if 1 <= i <= 10:
            A(f"v_mov_b32 v{VPC+i}, v{VPC+i+1}")
        if i == 15:
            A(f"v_mov_b32 v{VPC}, v{VN}")
        emit_atom(at, i)
        if i > 10 and i < 15 and i not in at:
            A("s_nop 0")
        if i < 15 and i not in at:
            A("s_nop 0")
    A("s_sub_u32 s34, s34, 1")
    A("s_cmp_lg_u32 s34, 0")
    A("s_cbranch_scc1 L_vloop")
    loop_stamp(46)
    if ring3 and stamps and stamps != "lite":
        A(f"v_writelane_b32 v{VST}, s70, 45")
    if gearly:
        A("s_barrier")
    A(f"v_lshl_add_u32 v{VT}, v0, 3, v{VLB}")
    A("s_call_b64 s[62:63], L_sub_pv")
    A("s_nop 6")
    A(f"ds_write_b64 v{VT}, {vr(VACC,2)} offset:{O_OP}")
    A("s_waitcnt lgkmcnt(0)")
    stamp(5)
    A("s_barrier")
    if stamps == "lite":
        A("s_memrealtime s[70:71]")
        A("s_waitcnt lgkmcnt(0)")
        A(f"v_writelane_b32 v{VST}, s70, 5")
    A(f"s_and_b32 s3, {ID}, {15 if cmap else 31}")
    A("s_lshl_b32 s33, s28, 5")
    A("s_add_u32 s3, s3, s33")
    A(f"s_cmp_ge_u32 s3, {9 if cmap else 18}")
    A("s_cbranch_scc1 L_fin")
    A(f"v_lshl_add_u32 v{VT}, v2, 4, v{VLB}")
    A(f"ds_read_b128 {vr(HB2,4)}, v{VT} offset:{O_CX}")
    final_srds(6, True)
    if b4 and not bfirst:
        A("s_barrier")
    if fa and ctl:
        A("s_memrealtime s[50:51]")
        A("s_waitcnt lgkmcnt(0)")
        A("s_sub_u32 s3, s49, s50")
        A(f"s_add_u32 s3, s3, {fa[0]}")
        A(f"s_max_i32 s3, s3, {fa[1]}")
        A(f"s_min_i32 s3, s3, {fa[2]}")
        Lb("L_backoff")
        A("s_sleep 1")
        A("s_sub_u32 s3, s3, 4")
        A("s_cbranch_scc0 L_backoff")
    if gearly:
        A("s_waitcnt lgkmcnt(0)")
        A("s_call_b64 s[62:63], L_sub_gate")
    if ge == -1:
        A("s_waitcnt lgkmcnt(0)")
        A("s_barrier")
    if ge:
        A("s_call_b64 s[62:63], L_sub_final_g")
    if ge > 0:
        A(f"s_sleep {ge}")
    if b4 and bfirst:
        A("s_barrier")
    if f0:
        A(f"s_sleep {f0}")
    A("s_waitcnt lgkmcnt(0)")
    stamp(13)
    A("s_call_b64 s[62:63], L_sub_final")
    stamp(14)
    A("s_branch L_fin" if (stamps or fixdur) else "s_endpgm")

    Lb("L_sub_pv")
    build_a(0, 0, VPC)
    for i in range(16):
        if i < 15:
            build_a(i + 1, i + 1, VPC)
        if 15 - i < int((DL[3] if ctl else DV) + 0.5):
            A(f"s_waitcnt vmcnt({15-i})")
        pv_mfma(i, RING + 4 * i)
    A("s_setpc_b64 s[62:63]")

    HC, HG, HLB = 4, 5, 6
    HVB, HVS = 7, 8
    HPM, HPR = 9, 10
    HOP = 11
    HD = 16
    HF2 = 64
    HT = 64
    HA = 88
    XO, XP, XZ, XE = 104, 105, 106, 107
    HF = 112
    ST = 28
    GH, GT = 20, 82

    helper_start = len(o)
    Lb("L_helper")
    if hprio:
        A(f"s_setprio {hprio}")
    A(f"v_and_b32 v{HT}, 31, v2")
    A(f"v_mul_u32_u24 v{HT}, 36, v{HT}")
    A("s_lshr_b32 s30, s2, 5")
    A("s_mul_i32 s68, s30, 1152")
    XR = 52
    srd(8, SX, None, 9216)
    A(f"buffer_load_dwordx4 {vr(XR,4)}, v{HT}, s[8:11], s68 offen")
    A(f"buffer_load_dwordx4 {vr(XR+4,4)}, v{HT}, s[8:11], s68 offen offset:16")
    A(f"buffer_load_dword v{XR+8}, v{HT}, s[8:11], s68 offen offset:32")
    A("s_barrier")
    A("s_sub_u32 s28, s28, 4")
    if cpf:
        A("s_getpc_b64 s[34:35]")
        Lb("L_pc")
        A("s_lshr_b32 s3, s2, 3")
        A("s_lshl_b32 s3, s3, 10")
        A(f"v_subrev_u32 v{HT+8}, 256, v0")
        A(f"v_lshl_add_u32 v{HT+8}, v{HT+8}, 2, s3")
        A(f"v_min_u32 v{HT+8}, L_code_end-L_pc-4, v{HT+8}")
        A(f"v_mov_b32 v{HT+9}, s35")
        A(f"v_add_co_u32 v{HT+8}, vcc, s34, v{HT+8}")
        A("s_nop 1")
        A(f"v_addc_co_u32 v{HT+9}, vcc, 0, v{HT+9}, vcc")
        A(f"global_load_dword v{HT+10}, {vr(HT+8,2)}, off")
    A(f"s_and_b32 s29, {ID}, 31")
    A(f"v_lshrrev_b32 v{HG}, 4, v2")
    HRW, HW1, HXA = HT + 1, HT + 2, HT + 3
    A("s_mul_i32 s3, s28, 144")
    A(f"v_lshl_add_u32 v{HRW}, v{HG}, 2, s3")
    A(f"v_lshlrev_b32 v{HW1}, 13, v{HRW}")
    A(f"v_lshl_add_u32 v{HW1}, v{HC}, 4, v{HW1}")
    A("s_lshl_b32 s3, s29, 8")
    srd(12, SWQ, "s3", 575 * 8192 + 256)

    per = 256 // ncl

    def is_marker(label):
        A("s_add_u32 s3, s2, 3")
        A("s_xor_b32 s3, s3, s30")
        A(f"s_and_b32 s3, s3, {per-1}")
        A(f"s_cbranch_scc1 {label}")

    def marker_index():
        A("s_lshl_b32 s3, s29, 3")
        A("s_add_u32 s3, s3, s30")
        A(f"s_lshr_b32 s3, s3, {per.bit_length()-1}")

    def mark_stores():
        is_marker("L_h_nomark")
        marker_index()
        A(f"s_mul_i32 s3, s3, {per*SLOT2}")
        srd(20, SWS, "s3", 0 if noclear else per * SLOT2)
        for r in range(4):
            A(f"v_mov_b32 v{48+r}, -1")
        A(f"v_subrev_u32 v{HT+5}, 256, v0")
        A(f"v_lshlrev_b32 v{HT+5}, 4, v{HT+5}")
        A("s_mov_b32 s35, 0")
        for k in range((per * SLOT2 + 4095) // 4096):
            A(f"buffer_store_dwordx4 {vr(48,4)}, v{HT+5}, s[20:23], s35 offen sc1")
            A("s_add_u32 s35, s35, 4096")
        Lb("L_h_nomark")

    def mark_report():
        is_marker("L_h_noreport")
        marker_index()
        A(f"s_lshl_b32 s3, s3, {3 if ncl == 32 else 2}")
        A(f"v_mov_b32 v{HT+6}, s3")
        A("s_waitcnt vmcnt(0)")
        A("s_mov_b64 exec, 1")
        A(f"ds_add_rtn_u32 v{HT+5}, v{HLB}, v3 offset:{O_CNT+C_CL}")
        A("s_waitcnt lgkmcnt(0)")
        A(f"v_readfirstlane_b32 s3, v{HT+5}")
        A("s_cmp_lg_u32 s3, 3")
        A("s_cbranch_scc1 L_h_noflag")
        A(f"global_store_dword v{HT+6}, v3, s[{SDBG}:{SDBG+1}] sc1")
        Lb("L_h_noflag")
        A("s_mov_b64 exec, -1")
        Lb("L_h_noreport")

    if clat == "start":
        mark_stores()

    def bump(r):
        A(f"s_add_u32 {r}, {r}, 1")
        A(f"s_cmp_eq_u32 {r}, 9")
        A(f"s_cselect_b32 {r}, 0, {r}")

    A("s_mov_b32 s32, s30" if rot else "s_mov_b32 s32, 0")
    A("s_mov_b32 s33, s32")
    def q_first(n):
        st, j = n >> 2, n & 3
        if j == 0:
            A("s_lshl_b32 s34, s33, 17")
        if n >= N0:
            A(pace(NQ, n))
        A(f"buffer_load_dwordx4 {vr(HF+16*st+4*j,4)}, v{HW1}, s[12:15], s34 offen {wpol}")
        A("s_add_u32 s34, s34, 8192")
        if j == 3:
            bump("s33")

    for n in range(N0):
        q_first(n)
    stamp(16 + 1)
    A(f"s_waitcnt vmcnt({N0})")
    ln_start = len(o)

    Lb("L_h_ln")
    stamp(1)
    A("s_mov_b32 s94, 0x05040100")
    A("s_mov_b32 s95, 0x07060302")
    XF = HD
    SUM, T1, MEAN = 34, 35, 36
    for d in range(9):
        A(f"v_lshlrev_b32 v{XF+2*d}, 16, v{XR+d}")
        A(f"v_and_b32 v{XF+2*d+1}, 0xffff0000, v{XR+d}")
    A(f"v_add_f32 v{SUM}, v{XF}, v{XF+1}")
    for e in range(2, 18):
        A(f"v_add_f32 v{SUM}, v{SUM}, v{XF+e}")
    allreduce_row("v_add_f32", SUM)
    swap_reduce("v_add_f32", SUM, T1, 16)
    A(f"v_mul_f32 v{MEAN}, {f32(1/576)}, v{SUM}")
    A(f"v_mov_b32 v{SUM}, 0")
    for e in range(18):
        t = 38 + (e & 1)
        A(f"v_sub_f32 v{t}, v{XF+e}, v{MEAN}")
        A(f"v_fmac_f32 v{SUM}, v{t}, v{t}")
    allreduce_row("v_add_f32", SUM)
    swap_reduce("v_add_f32", SUM, T1, 16)
    A(f"v_mul_f32 v{SUM}, {f32(1/576)}, v{SUM}")
    bfround(MEAN, MEAN)
    bfround(SUM, SUM)
    A(f"v_add_f32 v{SUM}, {f32(1e-5)}, v{SUM}")
    bfround(SUM, SUM)
    A(f"v_sqrt_f32 v{SUM}, v{SUM}")
    A("s_nop 0")
    bfround(SUM, SUM)
    A(f"v_rcp_f32 v{SUM}, v{SUM}")
    for e in range(18):
        A(f"v_sub_f32 v{XF+e}, v{XF+e}, v{MEAN}")
    for d in range(9):
        A(f"v_cvt_pk_bf16_f32 v{XR+d}, v{XF+2*d}, v{XF+2*d+1}")
    for d in range(9):
        A(f"v_lshlrev_b32 v{XF+2*d}, 16, v{XR+d}")
        A(f"v_and_b32 v{XF+2*d+1}, 0xffff0000, v{XR+d}")
    for e in range(18):
        A(f"v_mul_f32 v{XF+e}, v{XF+e}, v{SUM}")
    for e in range(18):
        A(f"v_cvt_pk_bf16_f32 v{XF+e}, v{XF+e}, v{XF+e}")
    ln_code = o[ln_start:]
    del o[ln_start:]
    rest = list(range(N0, 8))
    step = (len(ln_code) + len(rest) - 1) // max(len(rest), 1)
    for n in rest:
        o.extend(ln_code[:step]); ln_code = ln_code[step:]
        q_first(n)
    o.extend(ln_code)
    A(f"v_lshl_add_u32 v{HT}, v{HT}, 1, v{HLB}")
    A(f"v_lshrrev_b32 v{HXA}, 3, v2")
    A(f"v_mov_b32 v3, 1")
    A(f"v_cmp_eq_u32 vcc, s28, v{HXA}")
    A("s_and_saveexec_b64 s[34:35], vcc")
    for d in range(9):
        A(f"ds_write_b64 v{HT}, {vr(XF+2*d,2)} offset:{O_XN+8*d}")
    A("s_mov_b64 exec, -1")
    A(f"v_lshl_add_u32 v{HXA}, v{HRW}, 2, v{HLB}")
    A("s_waitcnt lgkmcnt(0)")
    pv_masks(VM, HC, HT + 4)
    for r in range(4):
        A(f"v_mov_b32 v{VACC+r}, 0")
    stamp(2)
    XV = 48

    def read_x():
        A("s_lshl_b32 s3, s32, 6")
        A(f"v_add_u32 v{HT+4}, s3, v{HXA}")
        A(f"ds_read_b128 {vr(XV,4)}, v{HT+4} offset:{O_XN}")

    def diag(j):
        for r in range(4):
            A(f"v_and_b32 v{VAO+4*(j&1)+r}, v{XV+j}, v{VM+r}")

    A("s_mov_b32 s77, 2")
    Lb("L_h_q")
    for st in range(2):
        read_x()
        bump("s32")
        A("s_lshl_b32 s34, s33, 17")
        A("s_cmp_ge_u32 s77, 9")
        A(f"s_cselect_b32 s34, {OOB}, s34")
        bump("s33")
        A("s_add_u32 s77, s77, 1")
        A("s_waitcnt lgkmcnt(0)")
        for j in range(4):
            diag(j)
            A(pace(min(8, NQ), j))
            A("s_nop 0")
            pv_mfma(j, HF + 16 * st + 4 * j)
            A(f"buffer_load_dwordx4 {vr(HF+16*st+4*j,4)}, v{HW1}, s[12:15], s34 offen {wpol}")
            A("s_add_u32 s34, s34, 8192")
        if st == 0:
            A("s_cmp_eq_u32 s77, 11")
            A("s_cbranch_scc1 L_h_q_done")
    A("s_branch L_h_q")
    Lb("L_h_q_done")
    A(f"v_subrev_u32 v{HT+4}, 256, v0")
    A(f"v_lshl_add_u32 v{HT+4}, v{HT+4}, 3, v{HLB}")
    A("s_nop 1")
    A(f"ds_write_b64 v{HT+4}, {vr(VACC,2)} offset:{O_E}")
    A("s_waitcnt lgkmcnt(0)")
    A("s_mov_b64 exec, 1")
    A(f"ds_add_rtn_u32 v{HT+5}, v{HLB}, v3 offset:{O_CNT+C_S1}")
    A("s_mov_b64 exec, -1")
    A(f"v_lshl_add_u32 v{HOP}, v2, 3, v{HLB}")
    A("s_waitcnt lgkmcnt(0)")
    A(f"v_readfirstlane_b32 s3, v{HT+5}")
    stamp(3)
    A("s_cmp_lg_u32 s3, 3")
    A("s_cbranch_scc1 L_h_q_out")
    for k in range(4):
        A(f"ds_read_b64 {vr(XV+2*k,2)}, v{HOP} offset:{O_E+512*k}")
    A(f"v_lshl_add_u32 v{HT+5}, v{HC}, 3, v{HG}")
    A(f"v_lshl_add_u32 v{HT+5}, v{HT+5}, 1, v{HLB}")
    A("s_waitcnt lgkmcnt(0)")
    A(f"v_pk_add_f32 {vr(XV,2)}, {vr(XV,2)}, {vr(XV+2,2)}")
    A(f"v_pk_add_f32 {vr(XV+4,2)}, {vr(XV+4,2)}, {vr(XV+6,2)}")
    A(f"v_pk_add_f32 {vr(XV,2)}, {vr(XV,2)}, {vr(XV+4,2)}")
    A(f"v_cvt_pk_bf16_f32 v{XV}, v{XV}, v{XV+1}")
    A(f"ds_write_b16 v{HT+5}, v{XV} offset:{O_Q}")
    A(f"ds_write_b16_d16_hi v{HT+5}, v{XV} offset:{O_Q+8}")
    A("s_waitcnt lgkmcnt(0)")
    A(f"ds_write_b32 v{HLB}, v3 offset:{O_CNT+C_Q}")
    stamp(6)
    Lb("L_h_q_out")
    if hprio:
        A("s_setprio 0")

    if st0:
        A("s_cmp_lg_u32 s28, 3")
        A("s_cbranch_scc1 L_nost0")
        A("s_lshl_b32 s3, s2, 7")
        A(f"s_add_u32 s3, s3, {WS_STAMP}")
        A(f"v_mov_b32 v{HT+8}, s3")
        A(f"v_mov_b32 v{HT+9}, s74")
        A("s_mov_b64 exec, 1")
        A(f"global_store_dword v{HT+8}, v{HT+9}, s[{SWS}:{SWS+1}] sc1")
        A("s_mov_b64 exec, -1")
        Lb("L_nost0")
    if clat == "q":
        mark_stores()
    if clat != "h":
        mark_report()

    A("s_and_b32 s31, s2, 7")
    A("s_lshl_b32 s31, s31, 2")
    A("s_bfe_u32 s3, s2, 0x20003")
    A("s_add_u32 s31, s31, s3")
    A("s_mul_i32 s3, s31, 288")
    srd(12, SW1, "s3", 575 * 9216 + 288)
    srd(20, SB1, "s3", 288)
    HN1, GB = HT + 5, 60
    A(f"v_mul_u32_u24 v{HW1}, 9216, v{HRW}")
    A(f"v_lshl_add_u32 v{HN1}, v{HC}, 1, v{HW1}")
    A(f"v_lshl_add_u32 v{HW1}, v{HC}, 4, v{HW1}")
    if smf:
        A(f"v_and_b32 v{HT+6}, 8, v2")
        A(f"v_bfe_u32 v{HT+7}, v2, 5, 1")
        A(f"v_lshl_add_u32 v{HT+6}, v{HT+7}, 2, v{HT+6}")
        A(f"v_and_b32 v{HT+7}, 1, v2")
        A(f"v_lshl_add_u32 v{HT+6}, v{HT+7}, 1, v{HT+6}")
        A(f"v_bfe_u32 v{HT+7}, v2, 2, 1")
        A(f"v_add_u32 v{HT+6}, v{HT+6}, v{HT+7}")
        A(f"v_bfe_u32 v{HT+7}, v2, 4, 1")
        A(f"v_bfe_u32 v{HT+8}, v2, 1, 1")
        A(f"v_lshl_add_u32 v{HT+7}, v{HT+7}, 1, v{HT+8}")
        A(f"v_lshl_add_u32 v{HOP}, v{HT+7}, 4, v{HT+6}")
        A(f"v_lshl_add_u32 v{HOP}, v{HOP}, 3, v{HLB}")
        A(f"v_lshl_add_u32 v{HT+6}, v{HT+6}, 3, v{HT+7}")
    else:
        A(f"v_lshl_add_u32 v{HT+6}, v{HC}, 3, v{HG}")
    A(f"v_lshlrev_b32 v{HT+6}, 1, v{HT+6}")
    A(f"v_lshlrev_b32 v{HT+7}, 1, v{HC}")
    A("s_waitcnt vmcnt(0)")
    A(f"buffer_load_ushort v{GB}, v{HT+6}, s[20:23], 0 offen")
    A(f"buffer_load_ushort v{GB+1}, v{HT+6}, s[20:23], 0 offen offset:8")
    A(f"buffer_load_ushort v{GB+2}, v{HT+7}, s[20:23], 0 offen offset:256")
    RA, PA, PB = 52, 56, 58
    for r in range(4):
        A(f"v_mov_b32 v{VACC+r}, 0")
        A(f"v_mov_b32 v{RA+r}, 0")
    A("s_mov_b32 s32, s30" if rot else "s_mov_b32 s32, 0")
    A("s_mov_b32 s77, 9")
    Lb("L_h_h")
    read_x()
    A(f"s_mul_i32 s34, s32, {16*9216}")
    bump("s32")
    for half in range(2):
        for j in (2 * half, 2 * half + 1):
            A(f"buffer_load_dwordx4 {vr(HF+4*j,4)}, v{HW1}, s[12:15], s34 offen {wpol}")
            A(f"buffer_load_ushort v{HF+16+j}, v{HN1}, s[12:15], s34 offen offset:256 {wpol}")
            A("s_add_u32 s34, s34, 9216")
        A("s_waitcnt lgkmcnt(0)")
        diag(2 * half)
        diag(2 * half + 1)
        A(f"v_perm_b32 v{PA+half}, v{XV+2*half+1}, v{XV+2*half}, s94")
        A("s_waitcnt vmcnt(0)")
        A(f"v_lshl_or_b32 v{PB+half}, v{HF+17+2*half}, 16, v{HF+16+2*half}")
        pv_mfma(2 * half, HF + 8 * half)
        pv_mfma(2 * half + 1, HF + 8 * half + 4)
    A(f"v_mfma_f32_16x16x16_bf16 {vr(RA,4)}, {vr(PA,2)}, {vr(PB,2)}, {vr(RA,4)}")
    A("s_sub_u32 s77, s77, 1")
    A("s_cmp_lg_u32 s77, 0")
    A("s_cbranch_scc1 L_h_h")
    A(f"v_lshl_add_u32 v{HT+4}, v0, 3, v{HLB}")
    A("s_lshl_b32 s3, s28, 6")
    A(f"v_lshl_add_u32 v{HT+6}, v{HC}, 2, v{HLB}")
    A(f"v_add_u32 v{HT+6}, s3, v{HT+6}")
    A("s_nop 1")
    A(f"ds_write_b64 v{HT+4}, {vr(VACC,2)} offset:{O_OP}")
    A(f"ds_write_b32 v{HT+6}, v{RA} offset:{O_HS}")
    A("s_waitcnt lgkmcnt(0)")
    lds_arrive(HLB, O_CNT + C_H, 3)
    stamp(4)
    if clat == "h":
        mark_stores()
        mark_report()
    A(f"v_mul_u32_u24 v{HVB}, 1152, v{HG}")
    A(f"v_lshl_add_u32 v{HVS}, v{HC}, 1, v{HVB}")
    A("s_lshl_b32 s3, s28, 5")
    A("s_add_u32 s3, s3, 1024")
    A(f"v_add_u32 v{HVS}, s3, v{HVS}")
    A("s_lshl_b32 s3, s28, 8")
    A(f"v_lshl_add_u32 v{HVB}, v{HC}, 4, v{HVB}")
    A(f"v_add_u32 v{HVB}, s3, v{HVB}")
    A(f"v_lshlrev_b32 v{HPM}, 5, v{HC}")
    A(f"v_lshl_add_u32 v{HPM}, v{HG}, 4, v{HPM}")
    A("s_lshl_b32 s3, s28, 9")
    A(f"v_add_u32 v{HPM}, s3, v{HPM}")
    A(f"v_mov_b32 v{HT}, {OOB}")
    A(f"v_cmp_gt_u32 vcc, 2, v{HG}")
    A("s_lshl_b32 s3, s28, 6")
    A("s_add_u32 s3, s3, 2048")
    A(f"v_cndmask_b32 v{HPM}, v{HT}, v{HPM}, vcc")
    A(f"v_lshl_add_u32 v{HPR}, v{HC}, 2, s3")
    A(f"v_cmp_eq_u32 vcc, 0, v{HG}")
    A("s_nop 1")
    A(f"v_cndmask_b32 v{HPR}, v{HT}, v{HPR}, vcc")
    A(f"s_mov_b32 s96, {'0xf0f0f0f0' if smf else '0xffff0000'}")
    A("s_mov_b32 s97, s96")

    A(f"s_mul_i32 s3, s31, {144*1152}")
    srd(20, SW2, "s3", 144 * 1152)
    HT = 104
    PS = 110
    for e in range(4):
        A(f"s_mov_b32 s33, {(128+4*e)*1152}")
        A(f"buffer_load_dwordx4 {vr(ST+4*e,4)}, v{HVB}, s[20:23], s33 offen {spol}")
        A(f"buffer_load_ushort v{ST+16+e}, v{HVS}, s[20:23], s33 offen {spol}")
    A("s_waitcnt vmcnt(0)")
    for r in range(2):
        for t in range(8):
            lo = ST + 8 * r + (t >> 1)
            A(f"v_perm_b32 v{HF2+2*t+r}, v{lo+4}, v{lo}, s{94+(t&1)}")
        A(f"v_lshl_or_b32 v{HF2+16+r}, v{ST+17+2*r}, 16, v{ST+16+2*r}")
    A("s_call_b64 s[62:63], L_sub_load")
    stamp(7)
    lds_spin("L_h_hwait", HLB, O_CNT + C_H, HT, 4)
    GL = 16
    A(f"v_lshl_add_u32 v{HT}, v{HC}, 2, v{HLB}")
    for k in range(4):
        A(f"ds_read_b64 {vr(GL+4*k,2)}, v{HOP} offset:{O_OP+512*(4+k)}")
        A(f"ds_read_b32 v{GL+4*k+2}, v{HT} offset:{O_HS+64*k}")
    A(f"v_and_b32 v{HT}, 3, v{HC}")
    A(f"v_lshrrev_b32 v{HT+1}, 2, v{HC}")
    A(f"v_lshl_add_u32 v{HT}, v{HT}, 2, v{HT+1}")
    A(f"v_lshl_add_u32 v{HT}, v{HT}, 1, v{HLB}")
    A("s_waitcnt lgkmcnt(0)")
    c1 = -2.0 * LOG2E * 0.7978845608028654
    for r in range(3):
        A(f"v_add_f32 v{GL+r}, v{GL+r}, v{GL+4+r}")
        A(f"v_add_f32 v{GL+8+r}, v{GL+8+r}, v{GL+12+r}")
        A(f"v_add_f32 v{GL+r}, v{GL+r}, v{GL+8+r}")
        bfround(GL + r, GL + r)
        A(f"v_lshlrev_b32 v{GB+r}, 16, v{GB+r}")
        A(f"v_add_f32 v{GL+r}, v{GL+r}, v{GB+r}")
        bfround(GL + r, GL + r)
        A(f"v_mul_f32 v{GB+r}, v{GL+r}, v{GL+r}")
        A(f"v_mov_b32 v{GL+3}, {f32(c1)}")
        A(f"v_fmac_f32 v{GL+3}, {f32(c1*0.044715)}, v{GB+r}")
        A(f"v_mul_f32 v{GB+r}, v{GL+3}, v{GL+r}")
        A(f"v_exp_f32 v{GB+r}, v{GB+r}")
        A("s_nop 0")
        A(f"v_add_f32 v{GB+r}, 1.0, v{GB+r}")
        A(f"v_rcp_f32 v{GB+r}, v{GB+r}")
        A("s_nop 0")
        A(f"v_mul_f32 v{GL+r}, v{GL+r}, v{GB+r}")
        bfround(PS + r if r < 2 else GL + r, GL + r)
    A(f"ds_write_b16_d16_hi v{HT}, v{GL+2} offset:{O_HR}")
    A("s_waitcnt lgkmcnt(0)")
    A(f"v_lshl_add_u32 v{HT}, v{HG}, 3, v{HLB}")
    A(f"ds_read_b64 {vr(HT+2,2)}, v{HT} offset:{O_HR}")
    A("s_lshl_b32 s3, s29, 3")
    A("s_add_u32 s3, s3, s30")
    A(f"s_mul_i32 s3, s3, {SLOT2}")
    srd(24, SWS, "s3", 0)
    A("s_waitcnt lgkmcnt(0)")
    IDX = HA + 8

    def set_idx():
        A(f"v_mov_b32 v{IDX}, 0x4444")
        A(f"v_mov_b32 v{IDX+1}, 0xeeee")
        A(f"v_cndmask_b32 v{IDX}, v{IDX}, v{IDX+1}, s[96:97]")
    if smf:
        for r in range(2):
            A(f"v_cndmask_b32 v{HT+2+r}, v{HT+2+r}, 0, s[96:97]")
        set_idx()
    for t in range(9):
        A(f"v_mfma_f32_16x16x16_bf16 {vr(HD+4*t,4)}, {vr(HT+2,2)}, {vr(HF2+2*t,2)}, 0")
    A("s_call_b64 s[62:63], L_sub_gemv")
    OR = HF2
    for r in range(4):
        A(f"v_mov_b32 v{GH+r}, v{OR+4+r}")
    A(f"v_mov_b32 v{GH+4}, v{HD+32}")
    A(f"s_mov_b32 s26, {SLOT2}")
    lds_arrive(HLB, O_CNT + C_SM, 3)
    stamp(8)
    A(f"s_mul_i32 s3, s29, {128*1152}")
    srd(20, SWO, "s3", 128 * 1152)
    A("s_call_b64 s[62:63], L_sub_load")
    stamp(9)

    A("s_cmp_lg_u32 s28, 3")
    A("s_cbranch_scc1 L_h_pvpre")
    A(f"v_and_b32 v{HT+1}, {ncl-1}, v2")
    A(f"v_lshlrev_b32 v{HT+1}, {3 if ncl == 32 else 2}, v{HT+1}")
    A(f"global_load_dword v{HT}, v{HT+1}, s[{SDBG}:{SDBG+1}]")
    Lb("L_h_bpoll")
    A("s_waitcnt vmcnt(0)")
    A(f"v_cmp_ne_u32 vcc, 1, v{HT}")
    A("s_cbranch_vccz L_h_bpoll_ok")
    A("s_sleep 32")
    A(f"global_load_dword v{HT}, v{HT+1}, s[{SDBG}:{SDBG+1}] sc1")
    A("s_sub_u32 s69, s69, 16")
    A("s_cbranch_scc0 L_h_bpoll")
    A("s_mov_b32 s69, 0")
    A("s_waitcnt vmcnt(0)")
    Lb("L_h_bpoll_ok")
    if tw:
        A(f"v_mov_b32 v{HT+1}, 0x1f0000")
        A(f"global_load_dword v{HT+4}, v{HT+1}, s[{SWS}:{SWS+1}]")
        A("s_waitcnt vmcnt(0)")
    if cmap:
        A("s_and_b32 s33, s29, 15")
        A("s_cmp_ge_u32 s33, 9")
        A("s_cbranch_scc1 L_h_pvpre")
        A("s_lshl_b32 s33, s33, 6")
        A("s_and_b32 s3, s29, 16")
        A("s_lshl_b32 s3, s3, 1")
        A("s_add_u32 s33, s33, s3")
        final_srds(SOUT, False)
    else:
        A("s_cmp_ge_u32 s29, 18")
        A("s_cbranch_scc1 L_h_pvpre")
        final_srds(SOUT, False)
        A("s_lshl_b32 s33, s29, 5")
    A(f"v_lshrrev_b32 v{HT}, 3, v2")
    A(f"v_mul_u32_u24 v{HT}, {8*SLOT2}, v{HT}")
    A(f"v_and_b32 v{HT+1}, 7, v2")
    A(f"v_lshl_add_u32 v{HT+1}, v{HT+1}, 2, s33")
    A(f"v_lshl_add_u32 v{GS}, v{HT+1}, 2, v{HT}")
    A(f"v_bfe_u32 v{HT+2}, v2, 4, 1")
    A(f"v_lshrrev_b32 v{HT+3}, 5, v2")
    A(f"v_lshl_add_u32 v{HT+2}, v{HT+2}, 1, v{HT+3}")
    A(f"v_add_lshl_u32 v{HOA}, v{HT+2}, v{HT+1}, 1")
    srd(20, SB2, None, 1152)
    A(f"buffer_load_ushort v{HXV}, v{HOA}, s[8:11], s68 offen")
    A(f"buffer_load_ushort v{HB2}, v{HOA}, s[20:23], 0 offen")
    if tout is not None:
        A(f"v_add_u32 v{HT+4}, s68, v{HOA}")
        A(f"global_load_ushort v{HT+5}, v{HT+4}, s[{SOUT}:{SOUT+1}] {tout}")
    A("s_waitcnt vmcnt(0)")
    A(f"v_lshlrev_b32 v{HXV}, 16, v{HXV}")
    A(f"v_lshlrev_b32 v{HB2}, 16, v{HB2}")
    A(f"v_mov_b32 v{HT}, {OOB}")
    A(f"v_and_b32 v{HT+1}, 8, v2")
    A(f"v_cmp_eq_u32 vcc, 0, v{HT+1}")
    A("s_nop 1")
    A(f"v_cndmask_b32 v{HOA}, v{HT}, v{HOA}, vcc")
    A(f"v_lshl_add_u32 v{HT}, v2, 4, v{HLB}")
    A(f"ds_write_b128 v{HT}, {vr(HB2,4)} offset:{O_CX}")
    if warm1:
        if gearly:
            A("s_call_b64 s[62:63], L_sub_gate")
        if ge:
            A("s_call_b64 s[62:63], L_sub_final_g")
        A("s_call_b64 s[62:63], L_sub_final")
    if warm2:
        for r in range(32, 64):
            A(f"v_mov_b32 v{r}, -1")
        A("s_call_b64 s[62:63], L_f_g_again")
    A("s_waitcnt vmcnt(0)")

    Lb("L_h_pvpre")
    PT = 28
    pv_masks(VM, HC, PT)
    for r in range(4):
        A(f"v_mov_b32 v{VACC+r}, 0")
    stamp(10)
    lds_spin("L_h_smwait", HLB, O_CNT + C_SM, PT, 8, sleep=4)
    A("s_lshl_b32 s3, s28, 3")
    A(f"v_add_u32 v{PT}, s3, v{HLB}")
    A(f"ds_read_b32 v{PT+1}, v{PT} offset:{O_ST}")
    A("s_lshl_b32 s3, s28, 9")
    A(f"v_lshl_add_u32 v{PT}, v2, 2, v{HLB}")
    A(f"v_add_u32 v{PT}, s3, v{PT}")
    A(f"ds_read_b32 v{VPC}, v{PT} offset:{O_E}")
    A(f"ds_read_b32 v{VPC+1}, v{PT} offset:{O_E+256}")
    softmax_factor(HLB, RING, PT, PT + 1)
    for u in range(2):
        A(f"v_mul_f32 v{VPC+u}, v{VPC+u}, v{PT}")
        A(f"v_cvt_pk_bf16_f32 v{VPC+u}, v{VPC+u}, v{VPC+u}")
    A("s_lshl_b32 s3, s28, 15")
    A(f"v_lshl_add_u32 v{PT}, v2, 4, s3")
    A("s_mov_b32 s34, 2")
    Lb("L_h_pv")
    for i in range(16):
        if i == 8:
            A("s_waitcnt lgkmcnt(0)")
        A(f"ds_read_b128 {vr(RING+4*i,4)}, v{PT} offset:{i*1024}")
    A("s_waitcnt lgkmcnt(0)")
    A("s_call_b64 s[62:63], L_sub_pv")
    A(f"v_mov_b32 v{VPC}, v{VPC+1}")
    A(f"v_add_u32 v{PT}, 16384, v{PT}")
    A("s_sub_u32 s34, s34, 1")
    A("s_cmp_lg_u32 s34, 0")
    A("s_cbranch_scc1 L_h_pv")
    A(f"v_lshl_add_u32 v{PT}, v0, 3, v{HLB}")
    A("s_nop 1")
    A(f"ds_write_b64 v{PT}, {vr(VACC,2)} offset:{O_OP}")
    for r in range(5):
        A(f"v_mov_b32 v{GT+r}, v{GH+r}")
    A("s_waitcnt lgkmcnt(0)")
    lds_arrive(HLB, O_CNT + C_PV, 3)
    for r in range(36):
        A(f"v_mov_b32 v{HD+r}, 0")
    lds_spin("L_h_pvwait", HLB, O_CNT + C_PV, HT, 4)
    for k in range(4):
        A(f"ds_read_b64 {vr(OR+2*k,2)}, v{HOP} offset:{O_OP+512*(4+k)}")
    A("s_waitcnt lgkmcnt(0)")
    for r in range(2):
        A(f"v_add_f32 v{OR+r}, v{OR+r}, v{OR+2+r}")
        A(f"v_add_f32 v{OR+4+r}, v{OR+4+r}, v{OR+6+r}")
        A(f"v_add_f32 v{PS+r}, v{OR+r}, v{OR+4+r}")
    if smf:
        set_idx()
    stamp(11)
    A("s_setprio 2")
    if gearly:
        A("s_barrier")
        A(f"buffer_store_dwordx4 {vr(GT,4)}, v{HPM}, s[24:27], 0 offen {ypol}")
        A(f"buffer_store_dword v{GT+4}, v{HPR}, s[24:27], 0 offen {ypol}")
    A("s_barrier")
    stamp(12)
    A("s_call_b64 s[62:63], L_sub_gemv")
    stamp(13)
    if ge == -1:
        if gack:
            A("s_waitcnt vmcnt(2)")
        A("s_barrier")
    if b4 == 2:
        A("s_waitcnt vmcnt(0)")
    if b4:
        A("s_barrier")

    Lb("L_fin")
    if fixdur:
        Lb("L_fix")
        A("s_memrealtime s[76:77]")
        A("s_waitcnt lgkmcnt(0)")
        A("s_sub_u32 s76, s76, s74")
        A(f"s_cmp_lt_u32 s76, {fixdur*100}")
        A("s_cbranch_scc1 L_fix")
    if stamps:
        A("s_waitcnt vmcnt(0)")
        stamp(15)
        A(f"v_writelane_b32 v{VST}, s74, 0")
        A("s_getreg_b32 s70, hwreg(HW_REG_XCC_ID)")
        A(f"v_writelane_b32 v{VST}, s70, 16")
        A("s_getreg_b32 s70, hwreg(HW_REG_HW_ID)")
        A(f"v_writelane_b32 v{VST}, s70, 63")
        A(f"s_add_u32 s72, s72, {WS_STAMP}")
        A("s_addc_u32 s73, s73, 0")
        A("s_lshl_b32 s3, s2, 11")
        A("v_lshlrev_b32 v0, 2, v0")
        A("v_add_u32 v0, s3, v0")
        A(f"global_store_dword v0, v{VST}, s[72:73]")
    Lb("L_end")
    A("s_endpgm")

    Lb("L_sub_load")
    if noslab:
        A("s_setpc_b64 s[62:63]")

    freg = (lambda sg, t: HF + 72 * (sg >> 1) + 8 * t + 4 * (sg & 1)) if smf else (lambda sg, t: HF + 36 * sg + 4 * t)

    def issue_pair(n):
        sl = ST + 10 * (n % NSL)
        A(f"s_mov_b32 s33, {8*n*1152}")
        A(f"s_mov_b32 s34, {(8*n+4)*1152}")
        A(f"buffer_load_dwordx4 {vr(sl,4)}, v{HVB}, s[20:23], s33 offen {spol}")
        A(f"buffer_load_dwordx4 {vr(sl+4,4)}, v{HVB}, s[20:23], s34 offen {spol}")
        A(f"buffer_load_ushort v{sl+8}, v{HVS}, s[20:23], s33 offen {spol}")
        A(f"buffer_load_ushort v{sl+9}, v{HVS}, s[20:23], s34 offen {spol}")

    for n in range(NSL):
        issue_pair(n)
    for n in range(16):
        sg, r = n >> 2, n & 3
        sl = ST + 10 * (n % NSL)
        A(f"s_waitcnt vmcnt({4 * (min(n + NSL, 16) - n - 1)})")
        for t in range(8):
            A(f"v_perm_b32 v{freg(sg,t)+r}, v{sl+4+(t>>1)}, v{sl+(t>>1)}, s{94+(t&1)}")
        A(f"v_lshl_or_b32 v{freg(sg,8)+r}, v{sl+9}, 16, v{sl+8}")
        if n + NSL < 16:
            if hs:
                A(f"s_sleep {hs}")
            issue_pair(n + NSL)
    A("s_setpc_b64 s[62:63]")

    Lb("L_sub_gemv")
    for k in range(4):
        A(f"ds_read_b64 {vr(OR+2*k,2)}, v{HOP} offset:{O_OP+512*k}")
    if not nog and not gearly:
        A(f"buffer_store_dwordx4 {vr(GT,4)}, v{HPM}, s[24:27], 0 offen {ypol}")
        A(f"buffer_store_dword v{GT+4}, v{HPR}, s[24:27], 0 offen {ypol}")
    if smf:
        A("s_waitcnt lgkmcnt(2)")
        A(f"v_pk_add_f32 {vr(OR,2)}, {vr(OR,2)}, {vr(PS,2)}")
        A(f"v_pk_add_f32 {vr(OR,2)}, {vr(OR,2)}, {vr(OR+2,2)}")
        A("s_waitcnt lgkmcnt(0)")
        A(f"v_pk_add_f32 {vr(OR,2)}, {vr(OR,2)}, {vr(OR+4,2)}")
        A(f"v_pk_add_f32 {vr(OR,2)}, {vr(OR,2)}, {vr(OR+6,2)}")
        A(f"v_cvt_pk_bf16_f32 v{HA}, v{OR}, v{OR+1}")
        A("s_nop 1")
        bc = [f"v_mov_b32_dpp v{HA+n}, v{HA} row_shl:{8*(n>>2)+(n&3)} {DPP_ALL}" for n in range(1, 8)]
        for n in range(5):
            A(bc.pop(0))
        tail = []
        for S in range(2):
            order = range(9) if S == 0 else (8, 0, 4, 1, 5, 2, 6, 3, 7)
            for t in order:
                A(f"v_smfmac_f32_16x16x64_bf16 {vr(HD+4*t,4)}, {vr(HA+4*S,4)}, {vr(freg(2*S,t),8)}, v{IDX}")
                if bc:
                    A(bc.pop(0))
        A("s_nop 3")
        A(f"v_permlane16_swap_b32 v{HD+32}, v{HD+33}")
        A(f"v_add_f32 v{HD+32}, v{HD+32}, v{HD+33}")
        A(f"buffer_store_dword v{HD+32}, v{HPR}, s[24:27], 0 offen offset:{SLOT} {ypol}")
        for r in range(4):
            A(f"v_permlane16_swap_b32 v{HD+4*r}, v{HD+16+4*r}")
            A(f"v_add_f32 v{OR+4+r}, v{HD+4*r}, v{HD+16+4*r}")
    else:
        for k in range(4):
            A(f"s_waitcnt lgkmcnt({3-k})")
            src = PS if k == 0 else OR + 2 * k
            A(f"v_add_f32 v{OR}, v{OR}, v{src}")
            A(f"v_add_f32 v{OR+1}, v{OR+1}, v{src+1}")
        A(f"v_cvt_pk_bf16_f32 v{OR}, v{OR}, v{OR+1}")
        A("s_nop 1")
        bc = [f"v_mov_b32_dpp v{HA+n}, v{OR} row_newbcast:{n} {DPP_ALL}" for n in range(16)]
        for n in range(6):
            A(bc.pop(0))
        for sg in range(4):
            order = range(9) if sg < 3 else (8, 0, 4, 1, 5, 2, 6, 3, 7)
            for t in order:
                A(f"v_mfma_f32_16x16x32_bf16 {vr(HD+4*t,4)}, {vr(HA+4*sg,4)}, {vr(HF+36*sg+4*t,4)}, {vr(HD+4*t,4)}")
                if bc:
                    A(bc.pop(0))
        A(f"buffer_store_dword v{HD+32}, v{HPR}, s[24:27], 0 offen offset:{SLOT} {ypol}")
        A("s_nop 3")
        for r in range(4):
            A(f"v_cndmask_b32 v{OR+4+r}, v{HD+4*r}, v{HD+16+4*r}, s[96:97]")
    A(f"buffer_store_dwordx4 {vr(OR+4,4)}, v{HPM}, s[24:27], 0 offen offset:{SLOT} {ypol}")
    A("s_setpc_b64 s[62:63]")

    GA, YA, SA = 32, 48, HA

    def part_load(base, off, k):
        so = "0" if k == 0 else f"s{64+k}"
        A(f"buffer_load_dwordx4 {vr(base+4*k,4)}, v{GS}, s[12:15], {so} offen offset:{off} {lpol}")

    def reload(base, off, tag, done):
        for k in range(4):
            A(f"v_max3_u32 v{SA+8+k}, v{base+4*k}, v{base+4*k+1}, v{base+4*k+2}")
        for k in range(4):
            A(f"v_max_u32 v{SA+8+k}, v{SA+8+k}, v{base+4*k+3}")
        for k in range(4):
            A(f"v_cmp_eq_u32 s[{80+2*k}:{81+2*k}], -1, v{SA+8+k}")
        A("s_or_b64 s[88:89], s[80:81], s[82:83]")
        A("s_or_b64 s[90:91], s[84:85], s[86:87]")
        A("s_or_b64 s[88:89], s[88:89], s[90:91]")
        A(f"s_cbranch_scc0 {done}")
        for k in range(4):
            A(f"s_mov_b64 exec, s[{80+2*k}:{81+2*k}]")
            A(f"s_cbranch_execz L_f{tag}{k}")
            part_load(base, off, k)
            Lb(f"L_f{tag}{k}")
        A("s_mov_b64 exec, -1")

    def total(base):
        for r in (0, 2):
            A(f"v_pk_add_f32 {vr(SA+r,2)}, {vr(base+r,2)}, {vr(base+4+r,2)}")
            A(f"v_pk_add_f32 {vr(SA+4+r,2)}, {vr(base+8+r,2)}, {vr(base+12+r,2)}")
        for r in (0, 2):
            A(f"v_pk_add_f32 {vr(SA+r,2)}, {vr(SA+r,2)}, {vr(SA+4+r,2)}")
        A("s_nop 0")
        A(f"v_permlane32_swap_b32 v{SA}, v{SA+1}")
        A(f"v_permlane32_swap_b32 v{SA+2}, v{SA+3}")
        A(f"v_add_f32 v{SA}, v{SA}, v{SA+1}")
        A(f"v_add_f32 v{SA+2}, v{SA+2}, v{SA+3}")
        A("s_nop 1")
        A(f"v_permlane16_swap_b32 v{SA}, v{SA+2}")
        A(f"v_add_f32 v{SA}, v{SA}, v{SA+2}")
        A("s_nop 1")
        A(f"v_add_f32_dpp v{SA}, v{SA}, v{SA} row_ror:8 {DPP_ALL}")
        A(f"v_cmp_u_f32 vcc, v{SA}, v{SA}")
        bfround(SA, SA)

    Lb("L_sub_gate" if gearly else "L_sub_final_g" if ge else "L_sub_final")
    for k in range(4):
        part_load(GA, 0, k)
    if ge:
        A("s_setpc_b64 s[62:63]")
        Lb("L_sub_final")
    if gfirst or gearly:
        A("s_waitcnt vmcnt(0)")
    else:
        for k in range(4):
            part_load(YA, SLOT, k)
        A("s_waitcnt vmcnt(4)")
    Lb("L_f_g")
    total(GA)
    A("s_cbranch_vccnz L_f_g_again")
    Lb("L_f_gate")
    if gfirst:
        for k in range(4):
            part_load(YA, SLOT, k)
    stamp(11)
    A(f"v_add_f32 v{HT+1}, v{SA}, v{HB2}")
    bfround(HT + 1, HT + 1)
    A(f"v_mul_f32 v{HT}, {f32(-LOG2E)}, v{HT+1}")
    A(f"v_exp_f32 v{HT}, v{HT}")
    A("s_nop 0")
    A(f"v_add_f32 v{HT}, 1.0, v{HT}")
    A(f"v_rcp_f32 v{HT}, v{HT}")
    A("s_nop 0")
    A(f"v_mul_f32 v{HT+1}, v{HT+1}, v{HT}")
    bfround(HT + 1, HT + 1)
    if gearly:
        A("s_setpc_b64 s[62:63]")
        Lb("L_sub_final")
        for k in range(4):
            part_load(YA, SLOT, k)
    Lb("L_f_y")
    A("s_waitcnt vmcnt(0)")
    total(YA)
    A("s_cbranch_vccnz L_f_y_again")
    Lb("L_f_out")
    stamp(12)
    A(f"v_mul_f32 v{HT}, v{SA}, v{HT+1}")
    bfround(HT, HT)
    A(f"v_add_f32 v{HT}, v{HT}, v{HXV}")
    A(f"v_cvt_pk_bf16_f32 v{HT}, v{HT}, v{HT}")
    A(f"buffer_store_short v{HT}, v{HOA}, s[16:19], s68 offen {outpol}")
    A("s_setpc_b64 s[62:63]")
    Lb("L_f_y_again")
    reload(YA, SLOT, "y", "L_f_out")
    A("s_sub_u32 s69, s69, 4")
    A("s_cbranch_scc0 L_f_y")
    A("s_mov_b32 s69, 0")
    A("s_setpc_b64 s[62:63]")
    Lb("L_f_g_again")
    reload(GA, 0, "g", "L_f_gate")
    A("s_waitcnt vmcnt(0)")
    A("s_sub_u32 s69, s69, 4")
    A("s_cbranch_scc0 L_f_g")
    A("s_mov_b32 s69, 0")
    A("s_setpc_b64 s[62:63]")

    o[:] = o[:head_end] + o[helper_start:] + o[head_end:helper_start]
    o.append("L_code_end:")
    o.append('.section .rodata,"a"')
    o.append(".p2align 6")
    o.append(f".amdhsa_kernel {NAME}_kernel")
    o.append("  .amdhsa_next_free_vgpr 256")
    o.append("  .amdhsa_next_free_sgpr 100")
    o.append("  .amdhsa_accum_offset 256")
    o.append("  .amdhsa_group_segment_fixed_size 0")
    o.append("  .amdhsa_kernarg_size 104")
    o.append("  .amdhsa_user_sgpr_count 2")
    o.append("  .amdhsa_user_sgpr_kernarg_segment_ptr 1")
    o.append("  .amdhsa_system_sgpr_workgroup_id_x 1")
    o.append("  .amdhsa_float_denorm_mode_32 3")
    o.append(".end_amdhsa_kernel")
    return "\n".join(o) + "\n"


if __name__ == "__main__":
    cfg = json.loads(sys.argv[2]) if len(sys.argv) > 2 else {}
    open(sys.argv[1], "w").write(gen(**cfg))
```
